```python
import torch

def _softmax(x, axis=-1):
    return torch.softmax(x, dim=axis)
def _gelu(x):
    return torch.nn.functional.gelu(x, approximate="tanh")
def _silu(x):
    return torch.nn.functional.silu(x)
def _sigmoid(x):
    return torch.sigmoid(x)
def _layernorm(x, axis=-1, eps=1e-5):
    m = x.mean(dim=axis, keepdim=True)
    v = x.var(dim=axis, keepdim=True, unbiased=False)
    return (x - m) / torch.sqrt(v + eps)
def _scatter_add(tgt, idx, src, axis=0):
    return tgt.clone().index_add_(axis, idx, src)
def _segment_sum(src, seg, n):
    out = torch.zeros((n,) + src.shape[1:], dtype=src.dtype)
    return out.index_add_(0, seg, src)
def _pad(x, pw):
    flat = tuple(v for pair in reversed(pw) for v in pair)
    return torch.nn.functional.pad(x, flat)

kernel_name = 'gated_mix__mha_block_cached__swiglu_ffn__decode'

def setup_inputs():

    _w = (lambda a: (lambda t: t.to(torch.bfloat16) if t.is_floating_point() else t)(torch.as_tensor(a)))
    def _A_setup():
        B, Sq, D = 8, 1, 576
        H, Sk, Dh = 32, 8192, 128
        return {
            "x": _w((lambda *s: torch.randn(*s, dtype=torch.bfloat16) * 0.05)(B, Sq, D)),
            "k_cache": _w((lambda *s: torch.randn(*s, dtype=torch.bfloat16) * 6.4)(B, H, Sk, Dh)),
            "v_cache": _w((lambda *s: torch.randn(*s, dtype=torch.bfloat16) * 0.4)(B, H, Sk, Dh)),
            "wq": _w((lambda *s: torch.randn(*s, dtype=torch.bfloat16) * 6.4)(D, H * Dh) * (D ** -0.5)),
            "wo": _w((lambda *s: torch.randn(*s, dtype=torch.bfloat16) * 0.4)(H * Dh, D) * ((H * Dh) ** -0.5)),
        }
    _A_in = _A_setup()

    def _B_setup():
        B, S, D, F = 8, 1, 576, 4608
        return {
            "x": _w((lambda *s: torch.randn(*s, dtype=torch.bfloat16) * 0.05)(B, S, D)),
            "w_gate": _w((lambda *s: torch.randn(*s, dtype=torch.bfloat16) * 0.05)(D, F)),
            "w_up": _w((lambda *s: torch.randn(*s, dtype=torch.bfloat16) * 0.05)(D, F)),
            "w_down": _w((lambda *s: torch.randn(*s, dtype=torch.bfloat16) * 0.05)(F, D)),
        }
    _B_in = _B_setup()

    return {
        "A_x": _A_in["x"],
        "A_k_cache": _A_in["k_cache"],
        "A_v_cache": _A_in["v_cache"],
        "A_wq": _A_in["wq"],
        "A_wo": _A_in["wo"],
        "B_x": _B_in["x"],
        "B_w_gate": _B_in["w_gate"],
        "B_w_up": _B_in["w_up"],
        "B_w_down": _B_in["w_down"],
        "gate_w": _w((lambda *s: torch.randn(*s, dtype=torch.bfloat16) * 0.05)(576) * 16.0),
    }

def reference(A_x, A_k_cache, A_v_cache, A_wq, A_wo, B_x, B_w_gate, B_w_up, B_w_down, gate_w):
    def _A_ref(x, k_cache, v_cache, wq, wo):
        B, Sq, D = x.shape
        H, Dh = 32, 128
        q = (lambda x, *d: x.permute(*d))((x @ wq).reshape(B, Sq, H, Dh), 0, 2, 1, 3)
        scores = torch.einsum("bhqd,bhkd->bhqk", q, k_cache) * (Dh ** -0.5)
        p = _softmax(scores, axis=-1)
        o = torch.einsum("bhqk,bhkd->bhqd", p, v_cache)
        return (lambda x, *d: x.permute(*d))(o, 0, 2, 1, 3).reshape(B, Sq, H * Dh) @ wo

    def _B_ref(x, w_gate, w_up, w_down):
        g = _silu(x @ w_gate)
        u = x @ w_up
        return (g * u) @ w_down

    x = A_x
    g = _sigmoid((x * gate_w).sum(-1, keepdims=True))
    a = _A_ref(x, A_k_cache, A_v_cache, A_wq, A_wo)
    b = _B_ref(x, B_w_gate, B_w_up, B_w_down)
    return g * a + (1 - g) * b
```

```python
import sys, math, struct

KN = 'gated_mix__mha_block_cached__swiglu_ffn__decode_kernel'

HEADER = '''; Kernarg layout for this problem (104 bytes, ptrs only, base s[0:1]):
'''

PRE = 0x0
PRE_STRIDE = 26624
OREC = 0x40000
MLB = 0x60000
YIN = 0x80000
FIN = 0x110000
WS_SIZE = 0x200000
L_X = 0
L_W = 9216
L_WO = 119808
L_Q = 136192
LDS_BYTES = 136448 + 64

def f2u(x):
    return struct.unpack('<I', struct.pack('<f', x))[0]

CSC = f2u(math.log2(math.e) / math.sqrt(128.0))
LOG2E = f2u(math.log2(math.e))


def gen(n=10, q=2, D=16, wa=24, wd=16, diag=0, spin=1 << 17, prio=3, vacc=0, slp=2):
    L = []
    def A(s):
        for x in s.split('\n'):
            x = x.strip()
            if x: L.append(x)
    lab = [0]
    def newlab(p):
        lab[0] += 1
        return '%s_%d' % (p, lab[0])

    A(KN + ':')
    A('s_cmp_ge_u32 s2, 256\ns_cbranch_scc1 L_end')
    if diag: A('s_memrealtime s[90:91]')
    A('''s_load_dwordx16 s[4:19], s[0:1], 0
s_load_dwordx8 s[20:27], s[0:1], 64
s_load_dwordx2 s[28:29], s[0:1], 96
v_lshrrev_b32 v1, 6, v0
v_and_b32 v0, 63, v0
v_readfirstlane_b32 s3, v1
v_lshlrev_b32 v1, 4, v0
s_lshr_b32 s30, s2, 5
s_and_b32 s31, s2, 31
s_waitcnt lgkmcnt(0)
s_mov_b32 s48, s28
s_mov_b32 s49, s29
s_mov_b32 s50, %d
s_mov_b32 s51, 0x20000
s_cmp_eq_u32 s3, 2
s_cbranch_scc1 L_HA
s_cmp_eq_u32 s3, 3
s_cbranch_scc1 L_HB''' % WS_SIZE)

    def stamp(slot, reg='s[92:93]'):
        if not diag: return
        A('''s_memrealtime s[92:93]
s_add_u32 s80, s28, 0x40000000
s_addc_u32 s81, s29, 0
s_mov_b32 s82, 0x10000
s_mov_b32 s83, 0x20000
s_lshl_b32 s84, s2, 6
s_mov_b64 s[86:87], exec
s_mov_b64 exec, 1
s_waitcnt lgkmcnt(0)
v_mov_b32 v250, s92
v_mov_b32 v251, s93
v_mov_b32 v252, s84
buffer_store_dwordx2 v[250:251], v252, s[80:83], 0 offen offset:%d''' % (slot * 8))
        if slot == 1:
            A('''s_getreg_b32 s85, hwreg(HW_REG_XCC_ID)
v_mov_b32 v250, s90
v_mov_b32 v251, s91
buffer_store_dwordx2 v[250:251], v252, s[80:83], 0 offen
s_nop 1
v_mov_b32 v250, s85
v_mov_b32 v251, 0
buffer_store_dwordx2 v[250:251], v252, s[80:83], 0 offen offset:48''')
        A('s_mov_b64 exec, s[86:87]')

    vQ = 4
    vMask = 8
    vA = 16
    vAcc = 24
    vS0, vS1, vC, vT, vT2, vT3, vM, vMC, vL = 28, 29, 30, 31, 32, 33, 34, 35, 36
    vAddr, vAddr2 = 37, 38
    RING = 40
    assert D % 4 == 0 and n + q <= D and D % q == 0
    def slotreg(t):
        pos = t % D
        grp, r = pos // 4, pos % 4
        if vacc:
            if r < 2: return 'v', RING + (grp * 2 + r) * 4
            return 'a', (grp * 2 + r - 2) * 4
        return 'v', RING + pos * 4
    def rr(t):
        k, b = slotreg(t)
        return '%s[%d:%d]' % (k, b, b + 3)
    TOT = 2048
    A('''s_lshl_b32 s52, s2, 21
s_lshr_b32 s53, s2, 11
s_add_u32 s32, s6, s52
s_addc_u32 s33, s7, s53
s_mov_b32 s34, 0x200000
s_mov_b32 s35, 0x20000
s_add_u32 s36, s8, s52
s_addc_u32 s37, s9, s53
s_mov_b32 s38, 0x200000
s_mov_b32 s39, 0x20000
s_lshl_b32 s54, s3, 11''')
    st = {'issued': 0, 'landed': -1}
    def issue(t):
        r = t % 4
        srd = 's[32:35]' if r < 2 else 's[36:39]'
        A('buffer_load_dwordx4 %s, v1, %s, s54 offen offset:%d nt' % (rr(t), srd, (r & 1) * 1024))
        if r == 3: A('s_add_u32 s54, s54, 4096')
        st['issued'] = t + 1
    def wait_landed(t):
        c = st['issued'] - 1 - t
        assert 0 <= c < 63
        if t > st['landed']:
            A('s_waitcnt vmcnt(%d)' % c)
            st['landed'] = t
    rare = []
    def proc(u):
        t = 2 * u
        if u % 2 == 0:
            k0 = slotreg(t)[1]; k1 = slotreg(t + 1)[1]
            for i in range(4):
                A('v_dot2_f32_bf16 v%d, v%d, v%d, %s' % (vS0, k0 + i, vQ + i, '0' if i == 0 else 'v%d' % vS0))
                A('v_dot2_f32_bf16 v%d, v%d, v%d, %s' % (vS1, k1 + i, vQ + i, '0' if i == 0 else 'v%d' % vS1))
            lr, lb = newlab('L_rare'), newlab('L_back')
            rare.append((lr, lb))
            A('''s_nop 1
v_add_f32_dpp v{C}, v{S0}, v{S0} row_ror:8 row_mask:0xf bank_mask:0x3
v_add_f32_dpp v{C}, v{S1}, v{S1} row_ror:8 row_mask:0xf bank_mask:0xc
s_nop 1
v_add_f32_dpp v{C}, v{C}, v{C} row_half_mirror row_mask:0xf bank_mask:0xf
s_nop 1
v_add_f32_dpp v{C}, v{C}, v{C} quad_perm:[1,0,3,2] row_mask:0xf bank_mask:0xf
s_nop 1
v_add_f32_dpp v{C}, v{C}, v{C} quad_perm:[2,3,0,1] row_mask:0xf bank_mask:0xf
v_cmp_gt_f32 vcc, v{C}, v{M}
s_cbranch_vccnz {lr}
{lb}:
v_fma_f32 v{T}, v{C}, s55, -v{MC}
v_exp_f32 v{T}, v{T}
s_nop 0
v_add_f32 v{Lr}, v{Lr}, v{T}
v_cvt_pk_bf16_f32 v{T2}, v{T}, v{T}'''.format(C=vC, S0=vS0, S1=vS1, M=vM, MC=vMC, T=vT, T2=vT2, Lr=vL, lr=lr, lb=lb))
            for j in range(8):
                A('v_and_b32 v%d, v%d, v%d' % (vA + j, vT2, vMask + j))
        else:
            if L[-1].startswith('v_and'): A('s_nop 0')
            A('v_mfma_f32_16x16x32_bf16 v[%d:%d], v[%d:%d], %s, v[%d:%d]' % (vAcc, vAcc + 3, vA, vA + 3, rr(t), vAcc, vAcc + 3))
            A('v_mfma_f32_16x16x32_bf16 v[%d:%d], v[%d:%d], %s, v[%d:%d]' % (vAcc, vAcc + 3, vA + 4, vA + 7, rr(t + 1), vAcc, vAcc + 3))
    def paced_issue(cnt):
        for _ in range(cnt // q):
            t = st['issued']
            if t + q - 1 - n >= 0:
                wait_landed(t + q - 1 - n)
            for i in range(q): issue(t + i)
    n0 = (n // q) * q
    paced_issue(n0)
    A('''v_and_b32 v{T}, 1, v0
v_lshlrev_b32 v{T}, 4, v{T}
v_mov_b32 v{T2}, 0xffff
v_lshlrev_b32 v{T2}, v{T}, v{T2}
v_bfe_u32 v{T}, v0, 1, 3'''.format(T=vT, T2=vT2))
    for j in range(8):
        A('v_cmp_eq_u32 vcc, %d, v%d\ns_nop 1\nv_cndmask_b32 v%d, 0, v%d, vcc' % (j, vT, vMask + j, vT2))
    A('''v_mov_b32 v{M}, 0xff800000
v_mov_b32 v{MC}, 0xff800000
v_mov_b32 v{Lr}, 0
v_mov_b32 v{a0}, 0
v_mov_b32 v{a1}, 0
v_mov_b32 v{a2}, 0
v_mov_b32 v{a3}, 0
s_mov_b32 s55, {csc}
v_and_b32 v{T}, 15, v0
v_lshlrev_b32 v{T}, 4, v{T}
v_bfe_u32 v{T2}, v0, 4, 1
v_lshl_add_u32 v{Ad}, v{T2}, 3, v{T}
s_lshl_b32 s56, s3, 3
s_add_u32 s56, s56, s30
s_lshl_b32 s57, s31, 4
s_add_u32 s56, s56, s57
s_lshl_b32 s57, s56, 8
s_add_u32 s57, s57, {orec}
s_lshl_b32 s56, s56, 3
s_add_u32 s56, s56, {mlb}
v_add_u32 v{T}, {lq}, v{T}
v_mov_b32 v{Ad2}, 0'''.format(M=vM, MC=vMC, Lr=vL, a0=vAcc, a1=vAcc + 1, a2=vAcc + 2, a3=vAcc + 3, csc=hex(CSC), T=vT, T2=vT2,
                              Ad=vAddr, Ad2=vAddr2, orec=OREC, mlb=MLB, lq=L_Q))
    paced_issue(D - n0 - ((D - n0) & 1))
    A('s_barrier')
    A('ds_read_b128 v[%d:%d], v%d\ns_waitcnt lgkmcnt(0)' % (vQ, vQ + 3, vT))
    if diag:
        A('s_cmp_lg_u32 s3, 0\ns_cbranch_scc1 L_nost2')
        stamp(2)
        A('s_waitcnt vmcnt(0)\nL_nost2:')
    done = [0]
    def do_proc():
        u = done[0]
        wait_landed(2 * u + 1)
        proc(u)
        done[0] += 1
    target_ahead = 2 + (n // q) * q
    k1 = n0 // 2 if D > target_ahead else 0
    for _ in range(k1):
        do_proc(); paced_issue(2)
    while st['issued'] - 2 * done[0] > target_ahead - 2:
        if st['issued'] - 2 * done[0] >= target_ahead + 2:
            do_proc(); do_proc(); paced_issue(2)
        else:
            do_proc()
    def steady():
        paced_issue(2); do_proc()
    while (2 * done[0]) % D != 0:
        steady()
    body_pairs = D // 2
    remaining_issue = TOT - st['issued']
    niter = remaining_issue // D
    assert niter >= 2
    A('s_mov_b32 s58, %d' % niter)
    A('L_loop:')
    for _ in range(body_pairs): steady()
    A('s_sub_u32 s58, s58, 1\ns_cmp_lg_u32 s58, 0\ns_cbranch_scc1 L_loop')
    st['issued'] += (niter - 1) * D
    st['landed'] += (niter - 1) * D
    done[0] += (niter - 1) * body_pairs
    while st['issued'] < TOT: steady()
    while done[0] < TOT // 2: do_proc()
    A('''v_add_f32_dpp v{Lr}, v{Lr}, v{Lr} row_ror:8 row_mask:0xf bank_mask:0xf
s_nop 0
v_mov_b32 v{T}, v{Lr}
s_nop 1
v_permlane16_swap_b32 v{Lr}, v{T}
v_add_f32 v{Lr}, v{Lr}, v{T}
v_mov_b32 v{T}, v{Lr}
s_nop 1
v_permlane32_swap_b32 v{Lr}, v{T}
v_add_f32 v{ML}, v{Lr}, v{T}'''.format(Lr=vL, T=vT, ML=vL))
    for i in range(4): A('v_mov_b32 v%d, v%d' % (vA + i, vAcc + i))
    A('v_mov_b32 v%d, v%d\nv_mov_b32 v%d, v%d' % (vA + 4, vMC, vA + 5, vL))
    for i in range(4): A('v_permlane32_swap_b32 v%d, v%d' % (vAcc + i, vA + i))
    for i in range(4): A('v_add_f32 v%d, v%d, v%d' % (vAcc + i, vAcc + i, vA + i))
    A('''v_cvt_pk_bf16_f32 v{a0}, v{a0}, v{a1}
v_cvt_pk_bf16_f32 v{a1}, v{a2}, v{a3}
s_mov_b32 exec_hi, 0
buffer_store_dwordx2 v[{a0}:{a1}], v{Ad}, s[48:51], s57 offen sc1
s_mov_b64 exec, 1
buffer_store_dwordx2 v[{m0}:{m1}], v{Ad2}, s[48:51], s56 offen sc1
s_mov_b64 exec, -1
s_barrier'''.format(a0=vAcc, a1=vAcc + 1, a2=vAcc + 2, a3=vAcc + 3, Ad=vAddr, Ad2=vAddr2, m0=vA + 4, m1=vA + 5))
    if diag:
        A('s_cmp_lg_u32 s3, 0\ns_cbranch_scc1 L_end')
        stamp(3)
    A('s_endpgm')
    for lr, lb in rare:
        A('%s:\ns_call_b64 s[60:61], L_rescale\ns_branch %s' % (lr, lb))
    A('''L_rescale:
v_max_f32_dpp v{T}, v{C}, v{C} row_ror:8 row_mask:0xf bank_mask:0xf
s_nop 0
v_mov_b32 v{T2}, v{T}
s_nop 1
v_permlane16_swap_b32 v{T}, v{T2}
v_max_f32 v{T}, v{T}, v{T2}
v_mov_b32 v{T2}, v{T}
s_nop 1
v_permlane32_swap_b32 v{T}, v{T2}
v_max3_f32 v{M}, v{T}, v{T2}, v{M}
v_mul_f32 v{T3}, s55, v{M}
v_sub_f32 v{T2}, v{MC}, v{T3}
v_exp_f32 v{T2}, v{T2}
v_mov_b32 v{MC}, v{T3}
v_mul_f32 v{Lr}, v{Lr}, v{T2}
v_mul_f32 v{a0}, v{a0}, v{T2}
v_mul_f32 v{a1}, v{a1}, v{T2}
v_mul_f32 v{a2}, v{a2}, v{T2}
v_mul_f32 v{a3}, v{a3}, v{T2}
s_setpc_b64 s[60:61]'''.format(T=vT, T2=vT2, T3=vT3, C=vC, M=vM, MC=vMC, Lr=vL, a0=vAcc, a1=vAcc + 1, a2=vAcc + 2, a3=vAcc + 3))

    def poll_counter(off, target, tagbit):
        lp, ld = newlab('L_poll'), newlab('L_pdone')
        A('''v_mov_b32 v3, {off}
s_mov_b32 s62, {spin}
{lp}:
buffer_load_dword v2, v3, s[44:47], 0 offen sc1
s_waitcnt vmcnt(0)
v_readfirstlane_b32 s63, v2
s_cmp_ge_u32 s63, {tg}
s_cbranch_scc1 {ld}
s_sleep {slp}
s_sub_u32 s62, s62, 1
s_cbranch_scc0 {lp}
{ld}:'''.format(off=off, spin=spin, lp=lp, ld=ld, tg=target, slp=slp))
    def poll_data(loads, regs, sleep):
        lp, ld = newlab('L_poll'), newlab('L_pdone')
        A('s_mov_b32 s62, %d\n%s:' % (spin, lp))
        for x in loads: A(x)
        A('s_waitcnt vmcnt(0)')
        rs = list(regs)
        A('v_max3_u32 v2, v%d, v%d, v%d' % (rs[0], rs[1], rs[2]))
        rs = rs[3:]
        while len(rs) >= 2:
            A('v_max3_u32 v2, v2, v%d, v%d' % (rs[0], rs[1])); rs = rs[2:]
        if rs: A('v_max_u32 v2, v2, v%d' % rs[0])
        A('''v_cmp_eq_u32 vcc, -1, v2
s_cbranch_vccz {ld}
s_sleep {sl}
s_sub_u32 s62, s62, 1
s_cbranch_scc0 {lp}
{ld}:'''.format(lp=lp, ld=ld, sl=sleep))
    def srd(sn, ptr, size):
        A('s_mov_b32 s%d, s%d\ns_mov_b32 s%d, s%d\ns_mov_b32 s%d, %s\ns_mov_b32 s%d, 0x20000' % (sn, ptr, sn + 1, ptr + 1, sn + 2, size, sn + 3))
    def trbase(dst, rowstride, colmul, tmp):
        A('''v_lshrrev_b32 v{d}, 4, v0
v_lshlrev_b32 v{d}, 3, v{d}
v_bfe_u32 v{t}, v0, 2, 2
v_add_u32 v{d}, v{d}, v{t}
v_mul_u32_u24 v{d}, {rs}, v{d}
v_and_b32 v{t}, 3, v0
v_mul_u32_u24 v{t}, {cm}, v{t}
v_add_u32 v{d}, v{d}, v{t}'''.format(d=dst, t=tmp, rs=rowstride, cm=colmul))
    def xsum(regs, tmp):
        for r in regs: A('v_add_f32_dpp v%d, v%d, v%d row_ror:8 row_mask:0xf bank_mask:0xf' % (r, r, r))
        for sw in ('v_permlane16_swap_b32', 'v_permlane32_swap_b32'):
            for i, r in enumerate(regs): A('v_mov_b32 v%d, v%d' % (tmp + i, r))
            A('s_nop 1')
            for i, r in enumerate(regs): A('%s v%d, v%d' % (sw, r, tmp + i))
            for i, r in enumerate(regs): A('v_add_f32 v%d, v%d, v%d' % (r, r, tmp + i))

    A('L_HA:')
    if prio: A('s_setprio %d' % prio)
    srd(44, 26, 256)
    A('s_cmp_ge_u32 s2, 208\ns_cbranch_scc1 L_HD')
    A('''s_cmp_lt_u32 s2, 136
s_cselect_b32 s32, s16, s18
s_cselect_b32 s33, s17, s19
s_cselect_b32 s52, 64, 136
s_cmp_lt_u32 s2, 64
s_cselect_b32 s32, s10, s32
s_cselect_b32 s33, s11, s33
s_cselect_b32 s52, 0, s52
s_mov_b32 s53, 9216
s_cselect_b32 s53, 8192, s53
s_mul_i32 s34, s53, 576
s_mov_b32 s35, 0x20000
s_sub_u32 s52, s2, s52
s_lshl_b32 s54, s52, 7
s_lshl_b32 s55, s53, 3
v_lshrrev_b32 v4, 3, v0
v_mul_lo_u32 v4, v4, s53
v_and_b32 v5, 7, v0
v_lshl_add_u32 v4, v5, 4, v4''')
    srd(36, 4, 9216)
    ha = {'issued': 0}
    seq = []
    seq += [('w', i) for i in range(4)] + [('x', i) for i in range(9)] + [('w', i) for i in range(4, 72)]
    pos = {e: i for i, e in enumerate(seq)}
    def ha_issue():
        e = seq[ha['issued']]
        t = ha['issued']
        if t - wa >= 0: A('s_waitcnt vmcnt(%d)' % (wa - 1))
        if e[0] == 'w':
            A('s_mov_b32 m0, %d\ns_nop 0\nbuffer_load_dwordx4 v4, s[32:35], s54 offen nt lds\ns_add_u32 s54, s54, s55' % (L_W + e[1] * 1024))
        else:
            A('s_mov_b32 m0, %d\ns_mov_b32 s56, %d\nbuffer_load_dwordx4 v1, s[36:39], s56 offen nt lds' % (L_X + e[1] * 1024, e[1] * 1024))
        ha['issued'] += 1
    def ha_wait(t):
        c = ha['issued'] - 1 - t
        if c < 63: A('s_waitcnt vmcnt(%d)' % c)
    for _ in range(min(wa, len(seq))): ha_issue()
    trbase(6, 128, 16, 8)
    A('v_add_u32 v6, %d, v6\nv_add_u32 v7, 36864, v6' % L_W)
    A('''v_and_b32 v9, 7, v0
v_mul_u32_u24 v9, 1152, v9
v_lshrrev_b32 v8, 4, v0
v_lshl_add_u32 v9, v8, 4, v9''')
    AC = 16
    for i in range(16): A('v_mov_b32 v%d, 0' % (AC + i))
    FR = 32
    def ha_reads(ks):
        b = FR + (ks % 2) * 20
        A('ds_read_b128 v[%d:%d], v9 offset:%d' % (b, b + 3, L_X + ks * 64))
        for nt in range(4):
            for hf in range(2):
                off = (ks % 9) * 4096 + hf * 512 + (nt >> 1) * 64 + (nt & 1) * 8
                r = b + 4 + nt * 4 + hf * 2
                A('ds_read_b64_tr_b16 v[%d:%d], v%d offset:%d' % (r, r + 1, 6 if ks < 9 else 7, off))
    def ha_need(ks):
        return max(pos[('w', 4 * ks + 3)], pos[('x', 8)])
    def ha_fill(ks):
        need = ha_need(ks)
        while ha['issued'] < len(seq) and ha['issued'] - wa <= need: ha_issue()
        ha_wait(need)
    ha_fill(0); ha_reads(0)
    for ks in range(18):
        if ks + 1 < 18:
            ha_fill(ks + 1); ha_reads(ks + 1)
            A('s_waitcnt lgkmcnt(9)')
        else:
            A('s_waitcnt lgkmcnt(0)')
        b = FR + (ks % 2) * 20
        for nt in range(4):
            A('v_mfma_f32_16x16x32_bf16 v[%d:%d], v[%d:%d], v[%d:%d], v[%d:%d]' % (AC + nt * 4, AC + nt * 4 + 3, b + 4 + nt * 4, b + 7 + nt * 4, b, b + 3, AC + nt * 4, AC + nt * 4 + 3))
    A('''v_and_b32 v10, 15, v0
v_mul_u32_u24 v11, {ps}, v10
v_lshl_add_u32 v11, v8, 4, v11
s_lshl_b32 s56, s2, 7
v_cmp_gt_u32 vcc, 8, v10
s_nop 4'''.format(ps=PRE_STRIDE))
    for i in range(8): A('v_cvt_pk_bf16_f32 v%d, v%d, v%d' % (FR + i, AC + 2 * i, AC + 2 * i + 1))
    A('''s_and_saveexec_b64 s[58:59], vcc
buffer_store_dwordx4 v[{f0}:{f3}], v11, s[48:51], s56 offen sc1
buffer_store_dwordx4 v[{f4}:{f7}], v11, s[48:51], s56 offen offset:64 sc1
s_mov_b64 exec, 1
s_waitcnt vmcnt(0)
s_cmp_ge_u32 s2, 64
s_cbranch_scc1 L_HA_noq
s_lshr_b32 s56, s2, 1
s_lshl_b32 s56, s56, 3
v_mov_b32 v2, 1
v_mov_b32 v3, s56
buffer_atomic_add v2, v3, s[44:47], 0 offen
L_HA_noq:
s_mov_b64 exec, -1
s_barrier
s_mov_b64 exec, 1
v_mov_b32 v2, 1
v_mov_b32 v3, 4
buffer_atomic_add v2, v3, s[44:47], 0 offen
s_mov_b64 exec, -1
s_cmp_ge_u32 s2, 32
s_cbranch_scc1 L_end
s_add_u32 s64, s2, 256
s_mov_b32 s65, {lw}
s_setprio 0
s_call_b64 s[60:61], L_wodma
s_waitcnt vmcnt(0)
s_branch L_wojob'''.format(f0=FR, f3=FR + 3, f4=FR + 4, f7=FR + 7, lw=L_W))

    A('L_HD:')
    A('s_sub_u32 s52, s2, 208\ns_mul_i32 s54, s52, 110592')
    srd(32, 20, 4608 * 1152)
    for i in range(108):
        if i >= wd: A('s_waitcnt vmcnt(%d)' % (wd - 1))
        if i % 4 == 0:
            A('s_mov_b32 m0, %d\ns_nop 0' % (L_W + i * 1024))
        A('buffer_load_dwordx4 v1, s[32:35], s54 offen offset:%d nt lds' % ((i % 4) * 1024))
        if i % 4 == 3: A('s_add_u32 s54, s54, 4096')
        if i == 60:
            A('''s_barrier
s_mov_b64 exec, 1
v_mov_b32 v2, 1
v_mov_b32 v3, 4
buffer_atomic_add v2, v3, s[44:47], 0 offen
s_mov_b64 exec, -1
s_setprio 0''')
    poll_counter(4, 256, 0)
    A('''v_and_b32 v5, 7, v0
v_mul_u32_u24 v5, {ps}, v5
v_lshrrev_b32 v8, 4, v0
v_lshl_add_u32 v5, v8, 4, v5
s_mul_i32 s56, s52, 192
s_add_u32 s56, s56, 8192
s_add_u32 s57, s56, 9216'''.format(ps=PRE_STRIDE))
    for ks in range(3):
        A('buffer_load_dwordx4 v[%d:%d], v5, s[48:51], s56 offen offset:%d sc1' % (16 + ks * 4, 19 + ks * 4, ks * 64))
        A('buffer_load_dwordx4 v[%d:%d], v5, s[48:51], s57 offen offset:%d sc1' % (28 + ks * 4, 31 + ks * 4, ks * 64))
    trbase(6, 1152, 8, 8)
    A('v_add_u32 v6, %d, v6\nv_add_u32 v7, 36864, v6\nv_add_u32 v9, 36864, v7' % L_W)
    A('s_mov_b32 s58, %s\ns_mov_b32 s59, 0xffff0000\ns_waitcnt vmcnt(0)' % hex(LOG2E | 0x80000000))
    for r in range(12):
        g, u = 16 + r, 28 + r
        A('''v_lshlrev_b32 v40, 16, v{g}
v_and_b32 v41, s59, v{g}
v_mul_f32 v42, s58, v40
v_mul_f32 v43, s58, v41
v_exp_f32 v42, v42
v_exp_f32 v43, v43
v_lshlrev_b32 v44, 16, v{u}
v_add_f32 v42, 1.0, v42
v_add_f32 v43, 1.0, v43
v_rcp_f32 v42, v42
v_rcp_f32 v43, v43
v_and_b32 v45, s59, v{u}
v_mul_f32 v42, v40, v42
v_mul_f32 v43, v41, v43
v_cvt_pk_bf16_f32 v42, v42, v43
v_lshlrev_b32 v40, 16, v42
v_and_b32 v41, s59, v42
v_mul_f32 v40, v40, v44
v_mul_f32 v41, v41, v45
v_cvt_pk_bf16_f32 v{g}, v40, v41'''.format(g=g, u=u))
    A('''v_and_b32 v10, 15, v0
v_lshrrev_b32 v8, 4, v0
v_mul_u32_u24 v11, {bs}, v10
v_lshl_add_u32 v11, v8, 4, v11
s_lshl_b32 s56, s52, 7
s_add_u32 s56, s56, {fin}
v_cmp_gt_u32 s[66:67], 8, v10
s_mov_b32 s57, 18
L_HD_loop:'''.format(bs=18 * 48 * 128, fin=FIN))
    for nt in range(2):
        for ks in range(3):
            for hf in range(2):
                r = 48 + (nt * 3 + ks) * 4 + hf * 2
                A('ds_read_b64_tr_b16 v[%d:%d], v%d offset:%d' % (r, r + 1, (6, 7, 9)[ks], hf * 4608 + nt * 32))
    A('v_add_u32 v6, 64, v6\nv_add_u32 v7, 64, v7\nv_add_u32 v9, 64, v9\ns_waitcnt lgkmcnt(0)')
    for nt in range(2):
        for ks in range(3):
            r = 48 + (nt * 3 + ks) * 4
            A('v_mfma_f32_16x16x32_bf16 v[%d:%d], v[%d:%d], v[%d:%d], %s' % (40 + nt * 4, 43 + nt * 4, r, r + 3, 16 + ks * 4, 19 + ks * 4, '0' if ks == 0 else 'v[%d:%d]' % (40 + nt * 4, 43 + nt * 4)))
    A('''s_nop 7
s_nop 1
s_mov_b64 exec, s[66:67]
buffer_store_dwordx4 v[40:43], v11, s[48:51], s56 offen sc1
buffer_store_dwordx4 v[44:47], v11, s[48:51], s56 offen offset:64 sc1
s_mov_b64 exec, -1
s_add_u32 s56, s56, 6144
s_sub_u32 s57, s57, 1
s_cmp_lg_u32 s57, 0
s_waitcnt vmcnt(0)
s_cbranch_scc1 L_HD_loop
s_endpgm''')

    A('''L_wodma:
s_mul_i32 s68, s64, 7282
s_lshr_b32 s68, s68, 16
s_mul_i32 s69, s68, 9
s_sub_u32 s69, s64, s69
s_mul_i32 s70, s68, 147456
s_lshl_b32 s71, s69, 7
s_add_u32 s70, s70, s71
v_lshrrev_b32 v4, 3, v0
v_mul_u32_u24 v4, 1152, v4
v_and_b32 v5, 7, v0
v_lshl_add_u32 v4, v5, 4, v4''')
    srd(40, 12, 4096 * 1152)
    for i in range(16):
        A('s_add_u32 m0, s65, %d\ns_nop 0\nbuffer_load_dwordx4 v4, s[40:43], s70 offen nt lds\ns_add_u32 s70, s70, 9216' % (i * 1024))
    A('s_setpc_b64 s[60:61]')

    A('L_HB:')
    if prio: A('s_setprio %d' % prio)
    srd(44, 26, 256)
    A('''s_mov_b32 s64, s2
s_mov_b32 s65, {lwo}
v_mov_b32 v8, -1
v_mov_b32 v9, -1
v_mov_b32 v10, -1
v_mov_b32 v11, -1
s_lshl_b32 s56, s31, 4
s_add_u32 s56, s56, s30
s_lshl_b32 s57, s56, 8
s_add_u32 s57, s57, {orec}
s_lshl_b32 s56, s56, 3
s_add_u32 s56, s56, {mlb}
v_and_b32 v6, 15, v0
v_lshlrev_b32 v6, 4, v6
v_lshrrev_b32 v7, 4, v0
v_lshl_add_u32 v5, v7, 11, v6
v_lshlrev_b32 v7, 6, v0
s_mov_b32 exec_hi, 0
buffer_store_dwordx4 v[8:11], v5, s[48:51], s57 offen sc1
s_mov_b64 exec, 3
buffer_store_dwordx2 v[8:9], v7, s[48:51], s56 offen sc1
s_mov_b64 exec, -1
s_cmp_ge_u32 s2, 144
s_cbranch_scc1 L_HB_noclr
s_lshl_b32 s56, s2, 12
s_add_u32 s56, s56, {yin}
s_mul_i32 s57, s2, 6144
s_add_u32 s57, s57, {fin}'''.format(lwo=L_WO, orec=OREC, mlb=MLB, yin=YIN, fin=FIN))
    for i in range(4): A('buffer_store_dwordx4 v[8:11], v1, s[48:51], s56 offen offset:%d sc1' % (i * 1024))
    for i in range(4): A('buffer_store_dwordx4 v[8:11], v1, s[48:51], s57 offen offset:%d sc1' % (i * 1024))
    A('s_add_u32 s57, s57, 4096')
    for i in range(2): A('buffer_store_dwordx4 v[8:11], v1, s[48:51], s57 offen offset:%d sc1' % (i * 1024))
    A('L_HB_noclr:\ns_call_b64 s[60:61], L_wodma')
    A('s_lshl_b32 s56, s31, 3')
    poll_counter('s56', 2, 0)
    A('''s_mul_i32 s56, s30, {ps}
s_lshl_b32 s57, s31, 8
s_add_u32 s56, s56, s57
buffer_load_dwordx4 v[8:11], v6, s[48:51], s56 offen sc1
v_add_u32 v6, {lq}, v6
s_waitcnt vmcnt(0)
ds_write_b128 v6, v[8:11]
s_waitcnt lgkmcnt(0)
s_barrier
s_setprio 0'''.format(ps=PRE_STRIDE, lq=L_Q))
    A('L_wojob:')
    WF = 64
    trbase(6, 128, 8, 8)
    A('v_add_u32 v6, s65, v6')
    for nt in range(4):
        for ks in range(4):
            for hf in range(2):
                r = WF + (nt * 4 + ks) * 4 + hf * 2
                A('ds_read_b64_tr_b16 v[%d:%d], v6 offset:%d' % (r, r + 1, ks * 4096 + hf * 512 + nt * 32))
        A('s_waitcnt lgkmcnt(0)')
    poll_counter(4, 256, 0)
    A('''v_and_b32 v10, 15, v0
v_lshrrev_b32 v8, 4, v0
v_lshlrev_b32 v12, 8, v10
v_lshl_add_u32 v12, v8, 4, v12
v_lshlrev_b32 v13, 3, v10
s_lshl_b32 s72, s68, 12
s_add_u32 s72, s72, {orec}
s_lshl_b32 s73, s68, 7
s_add_u32 s73, s73, {mlb}
v_mul_u32_u24 v14, {bs}, v10
v_lshl_add_u32 v14, v8, 4, v14
s_lshl_b32 s74, s69, 13
s_lshl_b32 s75, s68, 7
s_add_u32 s74, s74, s75
s_add_u32 s74, s74, {yin}
s_add_u32 s75, s74, 4096
v_cmp_gt_u32 s[66:67], 8, v10
s_cmp_ge_u32 s64, 144
s_cbranch_scc1 L_nofin1
s_mul_i32 s76, s64, 3641
s_lshr_b32 s76, s76, 16
s_mul_i32 s77, s76, 18
s_sub_u32 s77, s64, s77
s_mul_i32 s56, s76, 1152
s_add_u32 s57, s56, 1152'''.format(orec=OREC, mlb=MLB, bs=18 * 4096, yin=YIN))
    srd(32, 4, 's57')
    srd(36, 22, 1152)
    A('''v_lshlrev_b32 v5, 5, v0
buffer_load_dwordx4 v[16:19], v5, s[32:35], s56 offen
buffer_load_dwordx4 v[20:23], v5, s[32:35], s56 offen offset:16
buffer_load_dwordx4 v[24:27], v5, s[36:39], 0 offen
buffer_load_dwordx4 v[28:31], v5, s[36:39], 0 offen offset:16
s_mov_b32 s59, 0xffff0000
s_mov_b32 s58, 0x3f803f80
v_mov_b32 v32, 0
s_waitcnt vmcnt(0)''')
    for r in range(8):
        A('''v_lshlrev_b32 v34, 16, v{x}
v_and_b32 v35, s59, v{x}
v_lshlrev_b32 v36, 16, v{w}
v_and_b32 v37, s59, v{w}
v_mul_f32 v34, v34, v36
v_mul_f32 v35, v35, v37
v_cvt_pk_bf16_f32 v34, v34, v35
v_dot2_f32_bf16 v32, v34, s58, v32'''.format(x=16 + r, w=24 + r))
    A('''s_nop 2
v_add_f32_dpp v32, v32, v32 quad_perm:[1,0,3,2] row_mask:0xf bank_mask:0xf
s_nop 1
v_add_f32_dpp v32, v32, v32 quad_perm:[2,3,0,1] row_mask:0xf bank_mask:0xf
s_nop 1
v_add_f32_dpp v32, v32, v32 row_half_mirror row_mask:0xf bank_mask:0xf
s_nop 1''')
    xsum([32], 34)
    A('''v_cvt_pk_bf16_f32 v32, v32, v32
v_and_b32 v32, s59, v32
v_mul_f32 v32, {nl2e}, v32
v_exp_f32 v32, v32
s_nop 0
v_add_f32 v32, 1.0, v32
v_rcp_f32 v32, v32
s_nop 0
v_cvt_pk_bf16_f32 v32, v32, v32
v_and_b32 v32, s59, v32
v_sub_f32 v33, 1.0, v32
v_cvt_pk_bf16_f32 v33, v33, v33
v_and_b32 v33, s59, v33
s_mul_i32 s56, s64, 6144
s_add_u32 s56, s56, {fin}
s_add_u32 s57, s56, 4096'''.format(nl2e=hex(LOG2E | 0x80000000), fin=FIN))
    poll_data(['buffer_load_dwordx4 v[%d:%d], v1, s[48:51], %s offen offset:%d sc1' % (36 + 4 * i, 39 + 4 * i, 's56' if i < 4 else 's57', (i % 4) * 1024) for i in range(6)],
              range(36, 60), 16)
    for i in range(1, 6):
        for c in range(4): A('v_add_f32 v%d, v%d, v%d' % (36 + c, 36 + c, 36 + 4 * i + c))
    A('s_nop 0')
    xsum([36, 37, 38, 39], 40)
    A('''v_cvt_pk_bf16_f32 v40, v36, v37
v_cvt_pk_bf16_f32 v41, v38, v39
v_lshlrev_b32 v36, 16, v40
v_and_b32 v37, s59, v40
v_lshlrev_b32 v38, 16, v41
v_and_b32 v39, s59, v41
v_mul_f32 v36, v33, v36
v_mul_f32 v37, v33, v37
v_mul_f32 v38, v33, v38
v_mul_f32 v39, v33, v39
v_cvt_pk_bf16_f32 v40, v36, v37
v_cvt_pk_bf16_f32 v41, v38, v39
v_lshlrev_b32 v36, 16, v40
v_and_b32 v37, s59, v40
v_lshlrev_b32 v38, 16, v41
v_and_b32 v39, s59, v41
s_lshl_b32 s78, s64, 12
s_add_u32 s78, s78, {yin}
s_mul_i32 s79, s76, 1152
s_lshl_b32 s56, s77, 6
s_add_u32 s79, s79, s56
v_lshlrev_b32 v15, 3, v0'''.format(yin=YIN))
    srd(32, 24, 8 * 1152)
    A('L_nofin1:')
    if prio: A('s_setprio %d' % prio)
    A('s_barrier')
    poll_data(['buffer_load_dwordx4 v[%d:%d], v12, s[48:51], s72 offen offset:%d sc1' % (16 + 4 * ks, 19 + 4 * ks, ks * 64) for ks in range(4)] +
              ['buffer_load_dwordx2 v[40:41], v13, s[48:51], s73 offen sc1'],
              list(range(16, 32)) + [40, 41], 1)
    YA = 44
    for ks in range(4):
        for nt in range(4):
            r = WF + (nt * 4 + ks) * 4
            A('v_mfma_f32_16x16x32_bf16 v[%d:%d], v[%d:%d], v[%d:%d], %s' % (YA + nt * 4, YA + nt * 4 + 3, r, r + 3, 16 + ks * 4, 19 + ks * 4, '0' if ks == 0 else 'v[%d:%d]' % (YA + nt * 4, YA + nt * 4 + 3)))
        if ks == 0:
            A('''v_max_f32_dpp v42, v40, v40 row_ror:8 row_mask:0xf bank_mask:0xf
v_sub_f32 v42, v40, v42
v_exp_f32 v42, v42''')
        if ks == 1:
            A('''v_mul_f32 v41, v41, v42
s_nop 1
v_add_f32_dpp v41, v41, v41 row_ror:8 row_mask:0xf bank_mask:0xf
v_rcp_f32 v41, v41''')
        if ks == 2:
            A('v_mul_f32 v42, v42, v41')
    A('s_nop 4')
    for nt in range(4):
        for i in range(4): A('v_mul_f32 v%d, v%d, v42' % (YA + nt * 4 + i, YA + nt * 4 + i))
    for nt in range(4):
        for i in range(4):
            r = YA + nt * 4 + i
            A('v_add_f32_dpp v%d, v%d, v%d row_ror:8 row_mask:0xf bank_mask:0xf' % (r, r, r))
    A('s_mov_b64 exec, s[66:67]')
    for nt in range(4):
        A('buffer_store_dwordx4 v[%d:%d], v14, s[48:51], %s offen offset:%d sc1' % (YA + nt * 4, YA + nt * 4 + 3, 's74' if nt < 2 else 's75', (nt & 1) * 64))
    A('s_mov_b64 exec, -1')
    if diag:
        A('s_cmp_ge_u32 s64, 256\ns_cbranch_scc1 L_end')
        stamp(4)
    A('s_cmp_ge_u32 s64, 144\ns_cbranch_scc1 L_fin_end')
    poll_data(['buffer_load_dwordx4 v[%d:%d], v1, s[48:51], s78 offen offset:%d sc1' % (16 + 4 * i, 19 + 4 * i, i * 1024) for i in range(4)],
              range(16, 32), 1)
    for c in range(4):
        A('v_add_f32 v%d, v%d, v%d' % (16 + c, 16 + c, 20 + c))
        A('v_add_f32 v%d, v%d, v%d' % (24 + c, 24 + c, 28 + c))
    for c in range(4): A('v_add_f32 v%d, v%d, v%d' % (16 + c, 16 + c, 24 + c))
    xsum([16, 17, 18, 19], 20)
    A('''v_cvt_pk_bf16_f32 v20, v16, v17
v_cvt_pk_bf16_f32 v21, v18, v19
v_lshlrev_b32 v16, 16, v20
v_and_b32 v17, s59, v20
v_lshlrev_b32 v18, 16, v21
v_and_b32 v19, s59, v21
v_mul_f32 v16, v32, v16
v_mul_f32 v17, v32, v17
v_mul_f32 v18, v32, v18
v_mul_f32 v19, v32, v19
v_cvt_pk_bf16_f32 v20, v16, v17
v_cvt_pk_bf16_f32 v21, v18, v19
v_lshlrev_b32 v16, 16, v20
v_and_b32 v17, s59, v20
v_lshlrev_b32 v18, 16, v21
v_and_b32 v19, s59, v21
v_add_f32 v16, v16, v36
v_add_f32 v17, v17, v37
v_add_f32 v18, v18, v38
v_add_f32 v19, v19, v39
v_cvt_pk_bf16_f32 v20, v16, v17
v_cvt_pk_bf16_f32 v21, v18, v19
s_mov_b64 exec, 0xff
buffer_store_dwordx2 v[20:21], v15, s[32:35], s79 offen
s_mov_b64 exec, -1
L_fin_end:''')
    if diag:
        A('s_waitcnt vmcnt(0)')
        stamp(1)
    A('L_end:\ns_endpgm')

    nacc = (D // 2) * 4 if vacc else 0
    nv = max(RING + (D // 2 if vacc else D) * 4, 128)
    if diag: nv = 256
    assert nv <= 256
    out = HEADER + '; @launch grid=(256,1,1) block=(256,1,1) lds=%d\n' % LDS_BYTES
    out += '.amdgcn_target "amdgcn-amd-amdhsa--gfx950"\n.text\n.globl %s\n.p2align 8\n.type %s,@function\n' % (KN, KN)
    out += '\n'.join(('' if x.endswith(':') else '    ') + x for x in L) + '\n'
    out += '''.section .rodata,"a"
.p2align 6
.amdhsa_kernel %s
  .amdhsa_next_free_vgpr %d
  .amdhsa_next_free_sgpr 102
  .amdhsa_accum_offset %d
  .amdhsa_group_segment_fixed_size 0
  .amdhsa_kernarg_size 104
  .amdhsa_user_sgpr_count 2
  .amdhsa_user_sgpr_kernarg_segment_ptr 1
  .amdhsa_system_sgpr_workgroup_id_x 1
.end_amdhsa_kernel
''' % (KN, nv + nacc, nv)
    return out


if __name__ == '__main__':
    names = []
    for spec in sys.argv[1:]:
        kw = {}
        for p in spec.split(','):
            if not p: continue
            k, v = p.split('=')
            kw[k] = int(v)
        nm = 'k_' + spec.replace(',', '_').replace('=', '') + '.s'
        open(nm, 'w').write(gen(**kw))
        names.append(nm)
    print(' '.join(names))
```

```python
import sys, math, struct

KN = 'gated_mix__mha_block_cached__swiglu_ffn__decode_kernel'

HEADER = '''; Kernarg layout for this problem (104 bytes, ptrs only, base s[0:1]):
'''

PRE = 0x200000
PRE_STRIDE = 36864
EPOCH = 0x61000
CLR = 0x62000
QP = 0x250000
OREC = 0x40000
MLB = 0x60000
YIN = 0x80000
FIN = 0x110000
WS_SIZE = 0x2B0000
L_QW = 0
L_W = 24576
L_D = 0
L_WO = 110592
L_Q = 126976
LDS_BYTES = 127232

def f2u(x):
    return struct.unpack('<I', struct.pack('<f', x))[0]

CSC = f2u(math.log2(math.e) / math.sqrt(128.0))
LOG2E = f2u(math.log2(math.e))


def gen(n=10, q=2, D=16, wa=24, wd=16, diag=0, spin=1 << 17, prio=3, vacc=0, slp=64, qslp=2, b0=1, fb=0, sm=127, noproc=0, fslp=16, tslp=1):
    secs = {}
    cur = [None]
    def sec(name):
        cur[0] = secs.setdefault(name, [])
    def A(s):
        for x in s.split('\n'):
            x = x.strip()
            if x: cur[0].append(x)
    sec('entry')
    lab = [0]
    def newlab(p):
        lab[0] += 1
        return '%s_%d' % (p, lab[0])

    A(KN + ':')
    A('s_cmp_ge_u32 s2, 256\ns_cbranch_scc1 L_end')
    if diag: A('s_memrealtime s[90:91]')
    A('''s_load_dwordx16 s[4:19], s[0:1], 0
s_load_dwordx8 s[20:27], s[0:1], 64
s_load_dwordx2 s[28:29], s[0:1], 96
v_lshrrev_b32 v1, 6, v0
v_and_b32 v0, 63, v0
v_readfirstlane_b32 s3, v1
v_lshlrev_b32 v1, 4, v0
s_lshr_b32 s30, s2, 5
s_and_b32 s31, s2, 31
s_waitcnt lgkmcnt(0)
s_mov_b32 s48, s28
s_mov_b32 s49, s29
s_mov_b32 s50, %d
s_mov_b32 s51, 0x20000
s_cmp_lt_u32 s3, 2
s_cbranch_scc1 L_S
s_load_dword s88, s[28:29], %d
s_cmp_eq_u32 s3, 3
s_cbranch_scc1 L_HB''' % (WS_SIZE, EPOCH))

    def stamp(slot, reg='s[92:93]'):
        if not diag: return
        if diag == 2 and slot > 4: return
        if diag == 2:
            A('''s_memrealtime s[92:93]
s_mov_b32 s80, s26
s_mov_b32 s81, s27
s_mov_b32 s82, 256
s_mov_b32 s83, 0x20000
s_mov_b64 s[86:87], exec
s_mov_b64 exec, 1
s_waitcnt lgkmcnt(0)
v_mov_b32 v250, s92
v_mov_b32 v252, 0
buffer_atomic_umax v250, v252, s[80:83], 0 offen offset:%d''' % ({1: 12, 2: 28, 3: 36, 4: 52}[slot]))
            if slot in (1, 3):
                A('''s_not_b32 s85, %s
v_mov_b32 v251, s85
buffer_atomic_umax v251, v252, s[80:83], 0 offen offset:%d''' % (('s90', 20) if slot == 1 else ('s92', 44)))
            A('s_mov_b64 exec, s[86:87]')
            return
        A('''s_memrealtime s[92:93]
s_add_u32 s80, s28, 0x40000000
s_addc_u32 s81, s29, 0
s_mov_b32 s82, 0x20000
s_mov_b32 s83, 0x20000
s_lshl_b32 s84, s2, 7
s_mov_b64 s[86:87], exec
s_mov_b64 exec, 1
s_waitcnt lgkmcnt(0)
v_mov_b32 v250, s92
v_mov_b32 v251, s93
v_mov_b32 v252, s84
buffer_store_dwordx2 v[250:251], v252, s[80:83], 0 offen offset:%d''' % (slot * 8))
        if slot == 1:
            A('''s_getreg_b32 s85, hwreg(HW_REG_XCC_ID)
v_mov_b32 v250, s90
v_mov_b32 v251, s91
buffer_store_dwordx2 v[250:251], v252, s[80:83], 0 offen
s_nop 1
v_mov_b32 v250, s85
v_mov_b32 v251, 0
buffer_store_dwordx2 v[250:251], v252, s[80:83], 0 offen offset:48''')
        A('s_mov_b64 exec, s[86:87]')

    vQ = 4
    vMask = 8
    vA = 16
    vAcc = 24
    vS0, vS1, vC, vT, vT2, vT3, vM, vMC, vL = 28, 29, 30, 31, 32, 33, 34, 35, 36
    vAddr, vAddr2 = 37, 38
    RING = 40
    assert D % 4 == 0 and n + q <= D and D % q == 0
    def slotreg(t):
        pos = t % D
        grp, r = pos // 4, pos % 4
        if vacc:
            if r < 2: return 'v', RING + (grp * 2 + r) * 4
            return 'a', (grp * 2 + r - 2) * 4
        return 'v', RING + pos * 4
    def rr(t):
        k, b = slotreg(t)
        return '%s[%d:%d]' % (k, b, b + 3)
    TOT = 2048
    sec('stream')
    A('L_S:')
    A('''s_lshl_b32 s52, s2, 21
s_lshr_b32 s53, s2, 11
s_add_u32 s32, s6, s52
s_addc_u32 s33, s7, s53
s_mov_b32 s34, 0x200000
s_mov_b32 s35, 0x20000
s_add_u32 s36, s8, s52
s_addc_u32 s37, s9, s53
s_mov_b32 s38, 0x200000
s_mov_b32 s39, 0x20000
s_lshl_b32 s54, s3, 11''')
    st = {'issued': 0, 'landed': -1}
    def issue(t):
        r = t % 4
        srd = 's[32:35]' if r < 2 else 's[36:39]'
        A('buffer_load_dwordx4 %s, v1, %s, s54 offen offset:%d nt' % (rr(t), srd, (r & 1) * 1024))
        if r == 3: A('s_add_u32 s54, s54, 4096')
        st['issued'] = t + 1
    def wait_landed(t):
        c = st['issued'] - 1 - t
        assert 0 <= c < 63
        if t > st['landed']:
            A('s_waitcnt vmcnt(%d)' % c)
            st['landed'] = t
    rare = []
    def proc(u):
        t = 2 * u
        if noproc == 1 or (noproc == 2 and u % 2 == 0) or (noproc == 3 and u % 2 == 1): return
        if u % 2 == 0:
            k0 = slotreg(t)[1]; k1 = slotreg(t + 1)[1]
            for i in range(4):
                A('v_dot2_f32_bf16 v%d, v%d, v%d, %s' % (vS0, k0 + i, vQ + i, '0' if i == 0 else 'v%d' % vS0))
                A('v_dot2_f32_bf16 v%d, v%d, v%d, %s' % (vS1, k1 + i, vQ + i, '0' if i == 0 else 'v%d' % vS1))
            lr, lb = newlab('L_rare'), newlab('L_back')
            rare.append((lr, lb))
            A('''s_nop 1
v_add_f32_dpp v{C}, v{S0}, v{S0} row_ror:8 row_mask:0xf bank_mask:0x3
v_add_f32_dpp v{C}, v{S1}, v{S1} row_ror:8 row_mask:0xf bank_mask:0xc
s_nop 1
v_add_f32_dpp v{C}, v{C}, v{C} row_half_mirror row_mask:0xf bank_mask:0xf
s_nop 1
v_add_f32_dpp v{C}, v{C}, v{C} quad_perm:[1,0,3,2] row_mask:0xf bank_mask:0xf
s_nop 1
v_add_f32_dpp v{C}, v{C}, v{C} quad_perm:[2,3,0,1] row_mask:0xf bank_mask:0xf
v_cmp_gt_f32 vcc, v{C}, v{M}
s_cbranch_vccnz {lr}
{lb}:
v_fma_f32 v{T}, v{C}, s55, -v{MC}
v_exp_f32 v{T}, v{T}
s_nop 0
v_add_f32 v{Lr}, v{Lr}, v{T}
v_cvt_pk_bf16_f32 v{T2}, v{T}, v{T}'''.format(C=vC, S0=vS0, S1=vS1, M=vM, MC=vMC, T=vT, T2=vT2, Lr=vL, lr=lr, lb=lb))
            for j in range(8):
                A('v_and_b32 v%d, v%d, v%d' % (vA + j, vT2, vMask + j))
        else:
            if cur[0][-1].startswith('v_and'): A('s_nop 0')
            A('v_mfma_f32_16x16x32_bf16 v[%d:%d], v[%d:%d], %s, v[%d:%d]' % (vAcc, vAcc + 3, vA, vA + 3, rr(t), vAcc, vAcc + 3))
            A('v_mfma_f32_16x16x32_bf16 v[%d:%d], v[%d:%d], %s, v[%d:%d]' % (vAcc, vAcc + 3, vA + 4, vA + 7, rr(t + 1), vAcc, vAcc + 3))
    def paced_issue(cnt):
        for _ in range(cnt // q):
            t = st['issued']
            if t + q - 1 - n >= 0:
                wait_landed(t + q - 1 - n)
            for i in range(q): issue(t + i)
    n0 = (n // q) * q
    if b0: A('s_barrier')
    paced_issue(n0)
    A('''v_and_b32 v{T}, 1, v0
v_lshlrev_b32 v{T}, 4, v{T}
v_mov_b32 v{T2}, 0xffff
v_lshlrev_b32 v{T2}, v{T}, v{T2}
v_bfe_u32 v{T}, v0, 1, 3'''.format(T=vT, T2=vT2))
    for j in range(8):
        A('v_cmp_eq_u32 vcc, %d, v%d\ns_nop 1\nv_cndmask_b32 v%d, 0, v%d, vcc' % (j, vT, vMask + j, vT2))
    A('''v_mov_b32 v{M}, 0xff800000
v_mov_b32 v{MC}, 0xff800000
v_mov_b32 v{Lr}, 0
v_mov_b32 v{a0}, 0
v_mov_b32 v{a1}, 0
v_mov_b32 v{a2}, 0
v_mov_b32 v{a3}, 0
s_mov_b32 s55, {csc}
v_and_b32 v{T}, 15, v0
v_lshlrev_b32 v{T}, 4, v{T}
v_bfe_u32 v{T2}, v0, 4, 1
v_lshl_add_u32 v{Ad}, v{T2}, 3, v{T}
s_lshl_b32 s56, s3, 3
s_add_u32 s56, s56, s30
s_lshl_b32 s57, s31, 4
s_add_u32 s56, s56, s57
s_lshl_b32 s57, s56, 8
s_add_u32 s57, s57, {orec}
s_lshl_b32 s56, s56, 3
s_add_u32 s56, s56, {mlb}
v_add_u32 v{T}, {lq}, v{T}
v_mov_b32 v{Ad2}, 0'''.format(M=vM, MC=vMC, Lr=vL, a0=vAcc, a1=vAcc + 1, a2=vAcc + 2, a3=vAcc + 3, csc=hex(CSC), T=vT, T2=vT2,
                              Ad=vAddr, Ad2=vAddr2, orec=OREC, mlb=MLB, lq=L_Q))
    paced_issue(D - n0 - ((D - n0) & 1))
    A('s_barrier')
    A('ds_read_b128 v[%d:%d], v%d\ns_waitcnt lgkmcnt(0)' % (vQ, vQ + 3, vT))
    if diag:
        A('s_cmp_lg_u32 s3, 0\ns_cbranch_scc1 L_nost2')
        stamp(2)
        A('s_waitcnt vmcnt(0)\nL_nost2:')
    done = [0]
    def do_proc():
        u = done[0]
        wait_landed(2 * u + 1)
        proc(u)
        done[0] += 1
    target_ahead = 2 + (n // q) * q
    k1 = n0 // 2 if D > target_ahead else 0
    for _ in range(k1):
        do_proc(); paced_issue(2)
    while st['issued'] - 2 * done[0] > target_ahead - 2:
        if st['issued'] - 2 * done[0] >= target_ahead + 2:
            do_proc(); do_proc(); paced_issue(2)
        else:
            do_proc()
    def steady():
        paced_issue(2); do_proc()
    while (2 * done[0]) % D != 0:
        steady()
    body_pairs = D // 2
    remaining_issue = TOT - st['issued']
    niter = remaining_issue // D
    assert niter >= 2
    A('s_mov_b32 s58, %d' % niter)
    A('L_loop:')
    for _ in range(body_pairs): steady()
    A('''s_sub_u32 s58, s58, 1
s_cmp_eq_u32 s58, %d
s_cbranch_scc1 L_mid
L_midback:
s_cmp_lg_u32 s58, 0
s_cbranch_scc1 L_loop''' % (niter // 2))
    st['issued'] += (niter - 1) * D
    st['landed'] += (niter - 1) * D
    done[0] += (niter - 1) * body_pairs
    while st['issued'] < TOT: steady()
    while done[0] < TOT // 2: do_proc()
    A('''v_add_f32_dpp v{Lr}, v{Lr}, v{Lr} row_ror:8 row_mask:0xf bank_mask:0xf
s_nop 0
v_mov_b32 v{T}, v{Lr}
s_nop 1
v_permlane16_swap_b32 v{Lr}, v{T}
v_add_f32 v{Lr}, v{Lr}, v{T}
v_mov_b32 v{T}, v{Lr}
s_nop 1
v_permlane32_swap_b32 v{Lr}, v{T}
v_add_f32 v{ML}, v{Lr}, v{T}'''.format(Lr=vL, T=vT, ML=vL))
    for i in range(4): A('v_mov_b32 v%d, v%d' % (vA + i, vAcc + i))
    A('v_mov_b32 v%d, v%d\nv_mov_b32 v%d, v%d' % (vA + 4, vMC, vA + 5, vL))
    for i in range(4): A('v_permlane32_swap_b32 v%d, v%d' % (vAcc + i, vA + i))
    for i in range(4): A('v_add_f32 v%d, v%d, v%d' % (vAcc + i, vAcc + i, vA + i))
    A('''v_cvt_pk_bf16_f32 v{a0}, v{a0}, v{a1}
v_cvt_pk_bf16_f32 v{a1}, v{a2}, v{a3}
s_mov_b32 exec_hi, 0
buffer_store_dwordx2 v[{a0}:{a1}], v{Ad}, s[48:51], s57 offen sc1
s_mov_b64 exec, 1
buffer_store_dwordx2 v[{m0}:{m1}], v{Ad2}, s[48:51], s56 offen sc1
s_mov_b64 exec, -1
s_barrier'''.format(a0=vAcc, a1=vAcc + 1, a2=vAcc + 2, a3=vAcc + 3, Ad=vAddr, Ad2=vAddr2, m0=vA + 4, m1=vA + 5))
    if diag:
        A('s_cmp_lg_u32 s3, 0\ns_cbranch_scc1 L_end')
        stamp(3)
    A('s_endpgm')
    A('L_mid:\ns_barrier\ns_branch L_midback')
    for lr, lb in rare:
        A('%s:\ns_call_b64 s[60:61], L_rescale\ns_branch %s' % (lr, lb))
    A('''L_rescale:
v_max_f32_dpp v{T}, v{C}, v{C} row_ror:8 row_mask:0xf bank_mask:0xf
s_nop 0
v_mov_b32 v{T2}, v{T}
s_nop 1
v_permlane16_swap_b32 v{T}, v{T2}
v_max_f32 v{T}, v{T}, v{T2}
v_mov_b32 v{T2}, v{T}
s_nop 1
v_permlane32_swap_b32 v{T}, v{T2}
v_max3_f32 v{M}, v{T}, v{T2}, v{M}
v_mul_f32 v{T3}, s55, v{M}
v_sub_f32 v{T2}, v{MC}, v{T3}
v_exp_f32 v{T2}, v{T2}
v_mov_b32 v{MC}, v{T3}
v_mul_f32 v{Lr}, v{Lr}, v{T2}
v_mul_f32 v{a0}, v{a0}, v{T2}
v_mul_f32 v{a1}, v{a1}, v{T2}
v_mul_f32 v{a2}, v{a2}, v{T2}
v_mul_f32 v{a3}, v{a3}, v{T2}
s_setpc_b64 s[60:61]'''.format(T=vT, T2=vT2, T3=vT3, C=vC, M=vM, MC=vMC, Lr=vL, a0=vAcc, a1=vAcc + 1, a2=vAcc + 2, a3=vAcc + 3))

    def epoch():
        A('''s_waitcnt lgkmcnt(0)
s_mul_i32 s89, s88, 0x9E3779B1
s_add_u32 s89, s89, 0x7F4A7C15
s_add_u32 s88, s88, 1
s_and_b32 s58, s88, 0xff
v_mov_b32 v62, s58
s_mov_b32 s59, 0xffffff00''')
    def poll_tag(loads, regs, sleep, masked=False):
        lp, ld = newlab('L_poll'), newlab('L_pdone')
        A('s_mov_b32 s62, %d\n%s:' % (spin, lp))
        for x in loads: A(x)
        A('s_waitcnt vmcnt(0)')
        rs = list(regs)
        A('v_xor_b32 v2, v%d, v62\nv_xor_b32 v3, v%d, v62' % (rs[0], rs[1]))
        for i, r in enumerate(rs[2:]):
            A('v_bitop3_b32 v%d, v%d, v%d, v62 bitop3:0xf6' % (2 + (i & 1), 2 + (i & 1), r))
        A('''v_or_b32 v2, v2, v3
v_and_b32 v2, 0xff, v2
v_cmp_ne_u32 vcc, 0, v2
s_cbranch_vccz {ld}'''.format(ld=ld))
        if masked: A('s_mov_b64 exec, vcc')
        A('''s_sleep {sl}
s_sub_u32 s62, s62, 1
s_cbranch_scc0 {lp}
{ld}:'''.format(lp=lp, ld=ld, sl=sleep))
        if masked: A('s_mov_b64 exec, -1')
    def poll_counter(off, target, tagbit):
        lp, ld = newlab('L_poll'), newlab('L_pdone')
        A('''v_mov_b32 v3, {off}
s_mov_b32 s62, {spin}
{lp}:
buffer_load_dword v2, v3, s[44:47], 0 offen sc1
s_waitcnt vmcnt(0)
v_readfirstlane_b32 s63, v2
s_cmp_ge_u32 s63, {tg}
s_cbranch_scc1 {ld}
s_sleep {slp}
s_sub_u32 s62, s62, 1
s_cbranch_scc0 {lp}
{ld}:'''.format(off=off, spin=spin, lp=lp, ld=ld, tg=target, slp=slp))
    def poll_data(loads, regs, sleep):
        lp, ld = newlab('L_poll'), newlab('L_pdone')
        A('s_mov_b32 s62, %d\n%s:' % (spin, lp))
        for x in loads: A(x)
        A('s_waitcnt vmcnt(0)')
        rs = list(regs)
        A('v_max3_u32 v2, v%d, v%d, v%d' % (rs[0], rs[1], rs[2]))
        rs = rs[3:]
        while len(rs) >= 2:
            A('v_max3_u32 v2, v2, v%d, v%d' % (rs[0], rs[1])); rs = rs[2:]
        if rs: A('v_max_u32 v2, v2, v%d' % rs[0])
        A('''v_cmp_eq_u32 vcc, -1, v2
s_cbranch_vccz {ld}
s_mov_b64 exec, vcc
s_sleep {sl}
s_sub_u32 s62, s62, 1
s_cbranch_scc0 {lp}
{ld}:
s_mov_b64 exec, -1'''.format(lp=lp, ld=ld, sl=sleep))
    def srd(sn, ptr, size):
        A('s_mov_b32 s%d, s%d\ns_mov_b32 s%d, s%d\ns_mov_b32 s%d, %s\ns_mov_b32 s%d, 0x20000' % (sn, ptr, sn + 1, ptr + 1, sn + 2, size, sn + 3))
    def trbase(dst, rowstride, colmul, tmp):
        A('''v_lshrrev_b32 v{d}, 4, v0
v_lshlrev_b32 v{d}, 3, v{d}
v_bfe_u32 v{t}, v0, 2, 2
v_add_u32 v{d}, v{d}, v{t}
v_mul_u32_u24 v{d}, {rs}, v{d}
v_and_b32 v{t}, 3, v0
v_mul_u32_u24 v{t}, {cm}, v{t}
v_add_u32 v{d}, v{d}, v{t}'''.format(d=dst, t=tmp, rs=rowstride, cm=colmul))
    def xsum(regs, tmp):
        for r in regs: A('v_add_f32_dpp v%d, v%d, v%d row_ror:8 row_mask:0xf bank_mask:0xf' % (r, r, r))
        for sw in ('v_permlane16_swap_b32', 'v_permlane32_swap_b32'):
            for i, r in enumerate(regs): A('v_mov_b32 v%d, v%d' % (tmp + i, r))
            A('s_nop 1')
            for i, r in enumerate(regs): A('%s v%d, v%d' % (sw, r, tmp + i))
            for i, r in enumerate(regs): A('v_add_f32 v%d, v%d, v%d' % (r, r, tmp + i))

    sec('haq')
    A('L_HA:')
    if prio: A('s_setprio %d' % prio)
    A('s_cmp_ge_u32 s2, 192\ns_cbranch_scc1 L_HA_noq')
    srd(32, 10, 576 * 8192)
    srd(36, 4, 9216)
    A("""s_and_b32 s52, s2, 63
s_lshr_b32 s53, s2, 6
s_mul_i32 s54, s53, 1572864
s_lshl_b32 s55, s52, 7
s_add_u32 s54, s54, s55
s_mul_i32 s56, s53, 384
v_lshrrev_b32 v4, 3, v0
v_lshlrev_b32 v4, 13, v4
v_and_b32 v5, 7, v0
v_lshl_add_u32 v4, v5, 4, v4
v_mul_u32_u24 v9, 1152, v5
v_lshrrev_b32 v8, 4, v0
v_lshl_add_u32 v9, v8, 4, v9""")
    XF = 72
    def wdma(ldsoff, stepreg):
        A('s_mov_b32 m0, %d\ns_nop 0\nbuffer_load_dwordx4 v4, s[32:35], s54 offen nt lds\ns_add_u32 s54, s54, %s' % (ldsoff, stepreg))
    for ks in range(6):
        A('buffer_load_dwordx4 v[%d:%d], v9, s[36:39], s56 offen offset:%d' % (XF + 4 * ks, XF + 4 * ks + 3, ks * 64))
    for i in range(24): wdma(L_QW + i * 1024, '65536')
    if b0: A('s_barrier')
    trbase(6, 128, 16, 10)
    AC = 16
    FR = 144
    def w_reads(ks, base, koff):
        b = FR + (ks % 2) * 16
        for nt in range(4):
            for hf in range(2):
                off = koff * 4096 + hf * 512 + (nt >> 1) * 64 + (nt & 1) * 8
                r = b + nt * 4 + hf * 2
                A('ds_read_b64_tr_b16 v[%d:%d], v%d offset:%d' % (r, r + 1, base, off))
    def w_mfma(ks):
        b = FR + (ks % 2) * 16
        for nt in range(4):
            A('v_mfma_f32_16x16x32_bf16 v[%d:%d], v[%d:%d], v[%d:%d], %s' % (AC + nt * 4, AC + nt * 4 + 3, b + nt * 4, b + 3 + nt * 4, XF + 4 * ks, XF + 4 * ks + 3,
              '0' if ks == 0 else 'v[%d:%d]' % (AC + nt * 4, AC + nt * 4 + 3)))
    A("""v_bfe_u32 v10, v0, 3, 1
v_lshl_add_u32 v10, v10, 2, v8
v_lshlrev_b32 v12, 4, v10
v_mul_u32_u24 v11, 49152, v5
v_add_u32 v11, v11, v12
v_and_b32 v10, 8, v0
v_cmp_ne_u32 s[66:67], 0, v10
s_mul_i32 s57, s52, 3
s_add_u32 s57, s57, s53
s_lshl_b32 s57, s57, 8
s_add_u32 s57, s57, %d""" % QP)
    epoch()
    def publish8():
        A('s_nop 6')
        for i in range(8):
            A('v_cndmask_b32 v%d, v%d, v%d, s[66:67]' % (64 + i, AC + i, AC + 8 + i))
        for i in range(8):
            A('v_bfi_b32 v%d, s59, v%d, v62' % (64 + i, 64 + i))
        for i in range(2):
            A('buffer_store_dwordx4 v[%d:%d], v11, s[48:51], s57 offen offset:%d sc1' % (64 + 4 * i, 67 + 4 * i, i * 128))
    if diag == 1: A('s_memrealtime s[94:95]')
    A('s_waitcnt vmcnt(20)')
    if diag == 1: A('s_memrealtime s[96:97]\ns_waitcnt lgkmcnt(0)')
    w_reads(0, 6, 0)
    for ks in range(6):
        if ks + 1 < 6:
            A('s_waitcnt vmcnt(%d)' % (16 - 4 * ks))
            w_reads(ks + 1, 6, ks + 1)
            A('s_waitcnt lgkmcnt(8)')
        else:
            A('s_waitcnt lgkmcnt(0)')
        w_mfma(ks)
    if diag == 1: A('s_memrealtime s[98:99]')
    publish8()
    if diag == 1:
        A('s_waitcnt vmcnt(0)')
        stamp(5)
        A("""s_mov_b64 exec, 1
v_mov_b32 v240, s94
v_mov_b32 v241, s95
v_mov_b32 v242, s96
v_mov_b32 v243, s97
v_mov_b32 v244, s98
v_mov_b32 v245, s99
buffer_store_dwordx4 v[240:243], v252, s[80:83], 0 offen offset:64
buffer_store_dwordx2 v[244:245], v252, s[80:83], 0 offen offset:80
s_mov_b64 exec, -1""")
    A('s_branch L_HA2')

    sec('ha2')
    A('L_HA2:\ns_setprio 0')
    if not sm & 4: A('s_barrier\ns_endpgm')
    A('s_cmp_lt_u32 s2, 144\ns_cbranch_scc1 L_FFN')
    A("""s_barrier
s_cmp_ge_u32 s2, {lim2}
s_cbranch_scc1 L_end
s_add_u32 s64, s2, 112
s_mov_b32 s65, {lw}
s_call_b64 s[60:61], L_wodma
s_waitcnt vmcnt(0)
s_branch L_wojob
L_HA_noq:
s_cmp_ge_u32 s2, 208
s_cbranch_scc1 L_HD""".format(lw=L_W, lim2=176 if sm & 32 else 0))
    if b0: A('s_barrier')
    A('s_barrier\ns_endpgm')
    A("""L_FFN:
s_cmp_lt_u32 s2, 72
s_cselect_b32 s32, s16, s18
s_cselect_b32 s33, s17, s19
s_cselect_b32 s52, 0, 72
s_mov_b32 s34, 5308416
s_mov_b32 s35, 0x20000
s_sub_u32 s52, s2, s52
s_lshl_b32 s54, s52, 7
v_lshrrev_b32 v4, 3, v0
v_mul_u32_u24 v4, 9216, v4
v_lshl_add_u32 v4, v5, 4, v4""")
    ha = {'issued': 0}
    seq = []
    for ks in range(18): seq += [('x', ks)] + [('w', 4 * ks + i) for i in range(4)]
    pos = {e: i for i, e in enumerate(seq)}
    def ha_issue():
        e = seq[ha['issued']]
        t = ha['issued']
        if t - wa >= 0: A('s_waitcnt vmcnt(%d)' % (wa - 1))
        if e[0] == 'w': wdma(L_W + e[1] * 1024, '73728')
        else: A('buffer_load_dwordx4 v[%d:%d], v9, s[36:39], 0 offen offset:%d' % (XF + 4 * e[1], XF + 4 * e[1] + 3, e[1] * 64))
        ha['issued'] += 1
    for _ in range(fb): ha_issue()
    A('s_barrier')
    for _ in range(wa - fb): ha_issue()
    A('v_add_u32 v6, %d, v6\nv_add_u32 v7, 36864, v6' % L_W)
    def ha_fill(ks):
        need = pos[('w', 4 * ks + 3)]
        while ha['issued'] < len(seq) and ha['issued'] - wa <= need: ha_issue()
        A('s_waitcnt vmcnt(%d)' % (ha['issued'] - 1 - need))
    ha_fill(0); w_reads(0, 6, 0)
    for ks in range(18):
        if ks + 1 < 18:
            ha_fill(ks + 1); w_reads(ks + 1, 6 if ks + 1 < 9 else 7, (ks + 1) % 9)
            A('s_waitcnt lgkmcnt(8)')
        else:
            A('s_waitcnt lgkmcnt(0)')
        w_mfma(ks)
    A("""v_mul_u32_u24 v11, {ps}, v5
v_add_u32 v11, v11, v12
s_lshl_b32 s57, s2, 8
s_add_u32 s57, s57, {pre}""".format(ps=PRE_STRIDE, pre=PRE))
    publish8()
    A('s_endpgm')

    A('L_HD:')
    if not sm & 8: A('s_barrier\ns_barrier\ns_endpgm')
    A('s_sub_u32 s52, s2, 208\ns_mul_i32 s54, s52, 110592')
    srd(32, 20, 4608 * 1152)
    for i in range(108):
        if i >= wd: A('s_waitcnt vmcnt(%d)' % (wd - 1))
        if i % 4 == 0:
            A('s_mov_b32 m0, %d\ns_nop 0' % (L_D + i * 1024))
        A('buffer_load_dwordx4 v1, s[32:35], s54 offen offset:%d nt lds' % ((i % 4) * 1024))
        if i % 4 == 3: A('s_add_u32 s54, s54, 4096')
        if i == wd - 1:
            if b0: A('s_barrier')
            A('s_setprio 0')
            epoch()
        if i == wd + 3: A('s_barrier')
    if not sm & 16: A('s_endpgm')
    A("""v_and_b32 v5, 7, v0
v_mul_u32_u24 v5, {ps}, v5
v_lshrrev_b32 v8, 4, v0
s_mul_i32 s56, s52, 12
s_mov_b32 s57, {pre}
s_add_u32 s58, s57, 18432""".format(ps=PRE_STRIDE, pre=PRE))
    for ks in range(3):
        A("""s_add_u32 s63, s56, {o}
v_add_u32 v10, s63, v8
v_lshrrev_b32 v11, 3, v10
v_lshl_add_u32 v11, v11, 8, v5
v_and_b32 v10, 7, v10
v_lshl_add_u32 v{d}, v10, 4, v11""".format(o=4 * ks, d=12 + ks))
    lds_ = []
    for m in range(2):
        for ks in range(3):
            for i in range(2):
                r = 64 + m * 24 + ks * 8 + i * 4
                lds_.append('buffer_load_dwordx4 v[%d:%d], v%d, s[48:51], %s offen offset:%d sc1' % (r, r + 3, 12 + ks, 's57' if m == 0 else 's58', i * 128))
    poll_tag(lds_, range(64, 112), slp, masked=True)
    for r in range(64, 112): A('v_and_b32 v%d, s59, v%d' % (r, r))
    for r in range(24): A('v_cvt_pk_bf16_f32 v%d, v%d, v%d' % (16 + r, 64 + 2 * r, 65 + 2 * r))
    trbase(6, 1152, 8, 8)
    A('v_add_u32 v6, %d, v6\nv_add_u32 v7, 36864, v6\nv_add_u32 v9, 36864, v7' % L_D)
    A('s_mov_b32 s58, %s\ns_mov_b32 s63, 0xffff0000' % hex(LOG2E | 0x80000000))
    for r in range(12):
        g, u = 16 + r, 28 + r
        A('''v_lshlrev_b32 v40, 16, v{g}
v_and_b32 v41, s63, v{g}
v_mul_f32 v42, s58, v40
v_mul_f32 v43, s58, v41
v_exp_f32 v42, v42
v_exp_f32 v43, v43
v_lshlrev_b32 v44, 16, v{u}
v_add_f32 v42, 1.0, v42
v_add_f32 v43, 1.0, v43
v_rcp_f32 v42, v42
v_rcp_f32 v43, v43
v_and_b32 v45, s63, v{u}
v_mul_f32 v42, v40, v42
v_mul_f32 v43, v41, v43
v_cvt_pk_bf16_f32 v42, v42, v43
v_lshlrev_b32 v40, 16, v42
v_and_b32 v41, s63, v42
v_mul_f32 v40, v40, v44
v_mul_f32 v41, v41, v45
v_cvt_pk_bf16_f32 v{g}, v40, v41'''.format(g=g, u=u))
    A('''v_and_b32 v10, 15, v0
v_lshrrev_b32 v8, 4, v0
v_mul_u32_u24 v11, {bs}, v10
v_lshl_add_u32 v11, v8, 4, v11
s_lshl_b32 s56, s52, 7
s_add_u32 s56, s56, {fin}
v_cmp_gt_u32 s[66:67], 8, v10
s_mov_b32 s57, 18
L_HD_loop:'''.format(bs=18 * 48 * 128, fin=FIN))
    for nt in range(2):
        for ks in range(3):
            for hf in range(2):
                r = 112 + (nt * 3 + ks) * 4 + hf * 2
                A('ds_read_b64_tr_b16 v[%d:%d], v%d offset:%d' % (r, r + 1, (6, 7, 9)[ks], hf * 4608 + nt * 32))
    A('v_add_u32 v6, 64, v6\nv_add_u32 v7, 64, v7\nv_add_u32 v9, 64, v9\ns_waitcnt lgkmcnt(0)')
    for nt in range(2):
        for ks in range(3):
            r = 112 + (nt * 3 + ks) * 4
            A('v_mfma_f32_16x16x32_bf16 v[%d:%d], v[%d:%d], v[%d:%d], %s' % (40 + nt * 4, 43 + nt * 4, r, r + 3, 16 + ks * 4, 19 + ks * 4, '0' if ks == 0 else 'v[%d:%d]' % (40 + nt * 4, 43 + nt * 4)))
    A('s_nop 7')
    for r in range(40, 48): A('v_bfi_b32 v%d, s59, v%d, v62' % (r, r))
    A('''s_mov_b64 exec, s[66:67]
buffer_store_dwordx4 v[40:43], v11, s[48:51], s56 offen sc1
buffer_store_dwordx4 v[44:47], v11, s[48:51], s56 offen offset:64 sc1
s_mov_b64 exec, -1
s_add_u32 s56, s56, 6144
s_sub_u32 s57, s57, 1
s_cmp_lg_u32 s57, 0
s_waitcnt vmcnt(0)
s_cbranch_scc1 L_HD_loop
s_endpgm''')

    A('''L_wodma:
s_mul_i32 s68, s64, 7282
s_lshr_b32 s68, s68, 16
s_mul_i32 s69, s68, 9
s_sub_u32 s69, s64, s69
s_mul_i32 s70, s68, 147456
s_lshl_b32 s71, s69, 7
s_add_u32 s70, s70, s71
v_lshrrev_b32 v4, 3, v0
v_mul_u32_u24 v4, 1152, v4
v_and_b32 v5, 7, v0
v_lshl_add_u32 v4, v5, 4, v4''')
    srd(40, 12, 4096 * 1152)
    for i in range(16):
        A('s_add_u32 m0, s65, %d\ns_nop 0\nbuffer_load_dwordx4 v4, s[40:43], s70 offen nt lds\ns_add_u32 s70, s70, 9216' % (i * 1024))
    A('s_setpc_b64 s[60:61]')

    sec('hbq')
    A('L_HB:')
    if prio: A('s_setprio %d' % prio)
    A("""v_bfe_u32 v6, v0, 3, 1
v_mul_u32_u24 v6, 768, v6
v_lshrrev_b32 v7, 4, v0
v_min_u32 v5, 2, v7
v_lshl_add_u32 v6, v5, 8, v6
v_and_b32 v5, 7, v0
v_lshl_add_u32 v6, v5, 4, v6
v_cmp_gt_u32 vcc, 3, v7
s_lshl_b32 s56, s30, 6
s_lshl_b32 s57, s31, 1
s_add_u32 s56, s56, s57
s_mul_i32 s56, s56, 768
s_add_u32 s56, s56, {qp}
v_mov_b32 v8, 0xffffff00
v_cndmask_b32 v8, 0, v8, vcc
v_and_b32 v5, 15, v0
v_lshlrev_b32 v5, 4, v5
v_add_u32 v4, {lq}, v5""".format(qp=QP, lq=L_Q))
    epoch()
    if b0: A('s_barrier')
    poll_tag(['buffer_load_dwordx4 v[%d:%d], v6, s[48:51], s56 offen offset:%d sc1' % (16 + 4 * i, 19 + 4 * i, i * 128) for i in range(2)],
             range(16, 24), qslp, masked=True)
    stamp(12)
    for i in range(8): A('v_and_b32 v%d, v8, v%d' % (32 + i, 16 + i))
    for sw in ('v_permlane16_swap_b32', 'v_permlane32_swap_b32'):
        for i in range(8): A('v_mov_b32 v%d, v%d' % (40 + i, 32 + i))
        for i in range(8): A('%s v%d, v%d' % (sw, 32 + i, 40 + i))
        for i in range(8): A('v_add_f32 v%d, v%d, v%d' % (32 + i, 32 + i, 40 + i))
    for i in range(4): A('v_cvt_pk_bf16_f32 v%d, v%d, v%d' % (8 + i, 32 + 2 * i, 33 + 2 * i))
    A("""ds_write_b128 v4, v[8:11]
s_waitcnt lgkmcnt(0)
s_barrier
s_branch L_HB2""")
    sec('hb2')
    A('L_HB2:\ns_setprio 0')
    A("""s_mov_b32 s64, s2
s_mov_b32 s65, {lwo}
v_mov_b32 v8, -1
v_mov_b32 v9, -1
v_mov_b32 v10, -1
v_mov_b32 v11, -1
s_lshl_b32 s56, s31, 4
s_add_u32 s56, s56, s30
s_lshl_b32 s57, s56, 8
s_add_u32 s57, s57, {orec}
s_lshl_b32 s56, s56, 3
s_add_u32 s56, s56, {mlb}
v_lshl_add_u32 v5, v7, 11, v5
v_lshlrev_b32 v7, 6, v0
s_mov_b32 exec_hi, 0
buffer_store_dwordx4 v[8:11], v5, s[48:51], s57 offen sc1
s_mov_b64 exec, 3
buffer_store_dwordx2 v[8:9], v7, s[48:51], s56 offen sc1
s_mov_b64 exec, 1
s_lshl_b32 s56, s31, 7
s_lshl_b32 s57, s30, 2
s_add_u32 s56, s56, s57
s_add_u32 s56, s56, {clr}
v_mov_b32 v2, s89
s_waitcnt vmcnt(0)
buffer_store_dword v2, v7, s[48:51], s56 offen sc1
s_mov_b64 exec, -1""".format(lwo=L_WO, orec=OREC, mlb=MLB, clr=CLR))
    if sm & 2: A('s_call_b64 s[60:61], L_wodma\ns_waitcnt vmcnt(0)')
    stamp(11)
    if not sm & 32:
        A('s_barrier\ns_barrier')
        stamp(1)
        A('s_endpgm')
    A('L_wojob:')
    WF = 64
    trbase(6, 128, 8, 8)
    A('v_add_u32 v6, s65, v6')
    for nt in range(4):
        for ks in range(4):
            for hf in range(2):
                r = WF + (nt * 4 + ks) * 4 + hf * 2
                A('ds_read_b64_tr_b16 v[%d:%d], v6 offset:%d' % (r, r + 1, ks * 4096 + hf * 512 + nt * 32))
        A('s_waitcnt lgkmcnt(0)')
    A('''v_and_b32 v10, 15, v0
v_lshrrev_b32 v8, 4, v0
v_lshlrev_b32 v12, 8, v10
v_lshl_add_u32 v12, v8, 4, v12
v_lshlrev_b32 v13, 3, v10
s_lshl_b32 s72, s68, 12
s_add_u32 s72, s72, {orec}
s_lshl_b32 s73, s68, 7
s_add_u32 s73, s73, {mlb}
v_mul_u32_u24 v14, {bs}, v10
v_lshl_add_u32 v14, v8, 4, v14
s_lshl_b32 s74, s69, 13
s_lshl_b32 s75, s68, 7
s_add_u32 s74, s74, s75
s_add_u32 s74, s74, {yin}
s_add_u32 s75, s74, 4096
v_cmp_gt_u32 s[66:67], 8, v10
s_cmp_ge_u32 s64, 144
s_cbranch_scc1 L_nofin0
s_mul_i32 s76, s64, 3641
s_lshr_b32 s76, s76, 16
s_mul_i32 s77, s76, 18
s_sub_u32 s77, s64, s77
s_mul_i32 s56, s76, 1152
s_add_u32 s57, s56, 1152'''.format(orec=OREC, mlb=MLB, bs=18 * 4096, yin=YIN))
    srd(32, 4, 's57')
    srd(36, 22, 1152)
    A('''v_lshlrev_b32 v5, 5, v0
buffer_load_dwordx4 v[16:19], v5, s[32:35], s56 offen
buffer_load_dwordx4 v[20:23], v5, s[32:35], s56 offen offset:16
buffer_load_dwordx4 v[24:27], v5, s[36:39], 0 offen
buffer_load_dwordx4 v[28:31], v5, s[36:39], 0 offen offset:16
s_mov_b32 s63, 0xffff0000
s_mov_b32 s58, 0x3f803f80
v_mov_b32 v32, 0
s_waitcnt vmcnt(0)''')
    for r in range(8):
        A('''v_lshlrev_b32 v34, 16, v{x}
v_and_b32 v35, s63, v{x}
v_lshlrev_b32 v36, 16, v{w}
v_and_b32 v37, s63, v{w}
v_mul_f32 v34, v34, v36
v_mul_f32 v35, v35, v37
v_cvt_pk_bf16_f32 v34, v34, v35
v_dot2_f32_bf16 v32, v34, s58, v32'''.format(x=16 + r, w=24 + r))
    A('''s_nop 2
v_add_f32_dpp v32, v32, v32 quad_perm:[1,0,3,2] row_mask:0xf bank_mask:0xf
s_nop 1
v_add_f32_dpp v32, v32, v32 quad_perm:[2,3,0,1] row_mask:0xf bank_mask:0xf
s_nop 1
v_add_f32_dpp v32, v32, v32 row_half_mirror row_mask:0xf bank_mask:0xf
s_nop 1''')
    xsum([32], 34)
    A('''v_cvt_pk_bf16_f32 v32, v32, v32
v_and_b32 v32, s63, v32
v_mul_f32 v32, {nl2e}, v32
v_exp_f32 v32, v32
s_nop 0
v_add_f32 v32, 1.0, v32
v_rcp_f32 v32, v32
s_nop 0
v_cvt_pk_bf16_f32 v32, v32, v32
v_and_b32 v32, s63, v32
v_sub_f32 v33, 1.0, v32
v_cvt_pk_bf16_f32 v33, v33, v33
v_and_b32 v33, s63, v33
s_mul_i32 s56, s64, 6144
s_add_u32 s56, s56, {fin}
s_add_u32 s57, s56, 4096
L_nofin0:
s_barrier
s_lshl_b32 s70, s68, 7
s_add_u32 s70, s70, {clr}
v_and_b32 v5, 7, v0
v_lshlrev_b32 v5, 2, v5
s_mov_b32 s62, {spin}
L_clrpoll:
buffer_load_dword v16, v5, s[48:51], s70 offen sc1
s_waitcnt vmcnt(0)
v_cmp_ne_u32 vcc, s89, v16
s_cbranch_vccz L_clrdone
s_sleep {sl}
s_sub_u32 s62, s62, 1
s_cbranch_scc0 L_clrpoll
L_clrdone:
s_cmp_ge_u32 s64, 144
s_cbranch_scc1 L_nofin1'''.format(nl2e=hex(LOG2E | 0x80000000), fin=FIN, clr=CLR, spin=spin, sl=slp))
    poll_tag(['buffer_load_dwordx4 v[%d:%d], v1, s[48:51], %s offen offset:%d sc1' % (36 + 4 * i, 39 + 4 * i, 's56' if i < 4 else 's57', (i % 4) * 1024) for i in range(6)],
              range(36, 60), fslp, masked=True)
    stamp(13)
    for r in range(36, 60): A('v_and_b32 v%d, s59, v%d' % (r, r))
    for i in range(1, 6):
        for c in range(4): A('v_add_f32 v%d, v%d, v%d' % (36 + c, 36 + c, 36 + 4 * i + c))
    A('s_nop 0')
    xsum([36, 37, 38, 39], 40)
    A('''v_cvt_pk_bf16_f32 v40, v36, v37
v_cvt_pk_bf16_f32 v41, v38, v39
v_lshlrev_b32 v36, 16, v40
v_and_b32 v37, s63, v40
v_lshlrev_b32 v38, 16, v41
v_and_b32 v39, s63, v41
v_mul_f32 v36, v33, v36
v_mul_f32 v37, v33, v37
v_mul_f32 v38, v33, v38
v_mul_f32 v39, v33, v39
v_cvt_pk_bf16_f32 v40, v36, v37
v_cvt_pk_bf16_f32 v41, v38, v39
v_lshlrev_b32 v36, 16, v40
v_and_b32 v37, s63, v40
v_lshlrev_b32 v38, 16, v41
v_and_b32 v39, s63, v41
s_lshl_b32 s78, s64, 12
s_add_u32 s78, s78, {yin}
s_mul_i32 s79, s76, 1152
s_lshl_b32 s56, s77, 6
s_add_u32 s79, s79, s56
v_lshlrev_b32 v15, 3, v0'''.format(yin=YIN))
    srd(32, 24, 8 * 1152)
    A('L_nofin1:')
    if prio: A('s_setprio %d' % prio)
    A('s_barrier')
    if not sm & 64:
        if diag: A('s_cmp_ge_u32 s64, 256\ns_cbranch_scc1 L_end')
        stamp(1)
        A('s_endpgm')
    poll_data(['buffer_load_dwordx4 v[%d:%d], v12, s[48:51], s72 offen offset:%d sc1' % (16 + 4 * ks, 19 + 4 * ks, ks * 64) for ks in range(4)] +
              ['buffer_load_dwordx2 v[40:41], v13, s[48:51], s73 offen sc1'],
              list(range(16, 32)) + [40, 41], tslp)
    YA = 44
    for ks in range(4):
        for nt in range(4):
            r = WF + (nt * 4 + ks) * 4
            A('v_mfma_f32_16x16x32_bf16 v[%d:%d], v[%d:%d], v[%d:%d], %s' % (YA + nt * 4, YA + nt * 4 + 3, r, r + 3, 16 + ks * 4, 19 + ks * 4, '0' if ks == 0 else 'v[%d:%d]' % (YA + nt * 4, YA + nt * 4 + 3)))
        if ks == 0:
            A('''v_max_f32_dpp v42, v40, v40 row_ror:8 row_mask:0xf bank_mask:0xf
v_sub_f32 v42, v40, v42
v_exp_f32 v42, v42''')
        if ks == 1:
            A('''v_mul_f32 v41, v41, v42
s_nop 1
v_add_f32_dpp v41, v41, v41 row_ror:8 row_mask:0xf bank_mask:0xf
v_rcp_f32 v41, v41''')
        if ks == 2:
            A('v_mul_f32 v42, v42, v41')
    A('s_nop 4')
    for nt in range(4):
        for i in range(4): A('v_mul_f32 v%d, v%d, v42' % (YA + nt * 4 + i, YA + nt * 4 + i))
    for nt in range(4):
        for i in range(4):
            r = YA + nt * 4 + i
            A('v_add_f32_dpp v%d, v%d, v%d row_ror:8 row_mask:0xf bank_mask:0xf' % (r, r, r))
    for r in range(YA, YA + 16): A('v_bfi_b32 v%d, s59, v%d, v62' % (r, r))
    A('s_mov_b64 exec, s[66:67]')
    for nt in range(4):
        A('buffer_store_dwordx4 v[%d:%d], v14, s[48:51], %s offen offset:%d sc1' % (YA + nt * 4, YA + nt * 4 + 3, 's74' if nt < 2 else 's75', (nt & 1) * 64))
    A('s_mov_b64 exec, -1')
    if diag:
        A('s_cmp_ge_u32 s64, 256\ns_cbranch_scc1 L_end')
        stamp(4)
    A('s_cmp_ge_u32 s64, 144\ns_cbranch_scc1 L_fin_end')
    poll_tag(['buffer_load_dwordx4 v[%d:%d], v1, s[48:51], s78 offen offset:%d sc1' % (16 + 4 * i, 19 + 4 * i, i * 1024) for i in range(4)],
              range(16, 32), tslp, masked=True)
    for r in range(16, 32): A('v_and_b32 v%d, s59, v%d' % (r, r))
    for c in range(4):
        A('v_add_f32 v%d, v%d, v%d' % (16 + c, 16 + c, 20 + c))
        A('v_add_f32 v%d, v%d, v%d' % (24 + c, 24 + c, 28 + c))
    for c in range(4): A('v_add_f32 v%d, v%d, v%d' % (16 + c, 16 + c, 24 + c))
    xsum([16, 17, 18, 19], 20)
    A('''v_cvt_pk_bf16_f32 v20, v16, v17
v_cvt_pk_bf16_f32 v21, v18, v19
v_lshlrev_b32 v16, 16, v20
v_and_b32 v17, s63, v20
v_lshlrev_b32 v18, 16, v21
v_and_b32 v19, s63, v21
v_mul_f32 v16, v32, v16
v_mul_f32 v17, v32, v17
v_mul_f32 v18, v32, v18
v_mul_f32 v19, v32, v19
v_cvt_pk_bf16_f32 v20, v16, v17
v_cvt_pk_bf16_f32 v21, v18, v19
v_lshlrev_b32 v16, 16, v20
v_and_b32 v17, s63, v20
v_lshlrev_b32 v18, 16, v21
v_and_b32 v19, s63, v21
v_add_f32 v16, v16, v36
v_add_f32 v17, v17, v37
v_add_f32 v18, v18, v38
v_add_f32 v19, v19, v39
v_cvt_pk_bf16_f32 v20, v16, v17
v_cvt_pk_bf16_f32 v21, v18, v19
s_mov_b64 exec, 0xff
buffer_store_dwordx2 v[20:21], v15, s[32:35], s79 offen
s_cmp_lg_u32 s64, 0
s_cbranch_scc1 L_noepoch
s_mov_b64 exec, 1
v_mov_b32 v2, s88
v_mov_b32 v3, %d
buffer_store_dword v2, v3, s[48:51], 0 offen sc1
L_noepoch:
s_mov_b64 exec, -1
L_fin_end:''' % EPOCH)
    if diag:
        A('s_waitcnt vmcnt(0)')
        stamp(1)
    A('L_end:\ns_endpgm')

    nacc = (D // 2) * 4 if vacc else 0
    nv = max(RING + (D // 2 if vacc else D) * 4, 176)
    if diag: nv = 256
    assert nv <= 256
    out = HEADER + '; @launch grid=(256,1,1) block=(256,1,1) lds=%d\n' % LDS_BYTES
    out += '.amdgcn_target "amdgcn-amd-amdhsa--gfx950"\n.text\n.globl %s\n.p2align 8\n.type %s,@function\n' % (KN, KN)
    L = []
    for nm in ('entry', 'haq', 'hbq', 'stream', 'ha2', 'hb2'): L += secs[nm]
    out += '\n'.join(('' if x.endswith(':') else '    ') + x for x in L) + '\n'
    out += '''.section .rodata,"a"
.p2align 6
.amdhsa_kernel %s
  .amdhsa_next_free_vgpr %d
  .amdhsa_next_free_sgpr 102
  .amdhsa_accum_offset %d
  .amdhsa_group_segment_fixed_size 0
  .amdhsa_kernarg_size 104
  .amdhsa_user_sgpr_count 2
  .amdhsa_user_sgpr_kernarg_segment_ptr 1
  .amdhsa_system_sgpr_workgroup_id_x 1
.end_amdhsa_kernel
''' % (KN, nv + nacc, nv)
    return out


if __name__ == '__main__':
    names = []
    for spec in sys.argv[1:]:
        kw = {}
        for p in spec.split(','):
            if not p: continue
            k, v = p.split('=')
            kw[k] = int(v)
        nm = 'k_' + spec.replace(',', '_').replace('=', '') + '.s'
        open(nm, 'w').write(gen(**kw))
        names.append(nm)
    print(' '.join(names))
```

```python
import sys, math, struct

KN = 'gated_mix__mha_block_cached__swiglu_ffn__decode_kernel'

HEADER = '''; Kernarg layout for this problem (104 bytes, ptrs only, base s[0:1]):
'''

EPOCH = 0x0
RK = 0x1000
QP = 0x10000
HM = 0x70000
FIN = 0xA0000
PREG = 0xD0000
OREC = 0x100000
YIN = 0x140000
WS_SIZE = 0x200000
L_QW = 0
L_W = 24576
L_WO = 98304
L_Q = 114688
L_SC = 114944
L_ACC = 147712
L_MX = 148736
L_L = 148744
L_CTL = 148752
LDS_BYTES = 148800

def f2u(x):
    return struct.unpack('<I', struct.pack('<f', x))[0]

CSC = f2u(math.log2(math.e) / math.sqrt(128.0))
NLOG2E = f2u(-math.log2(math.e))


def gen(n=10, q=2, D=16, G=2, w0=12, na=0, nend=0, kend=0, ctl=0, nf=14, ns=8, gA=45, gAs=50, gB=25, gBs=28, pB=55, pC=0, gC=20, gCs=22, pD=0, gD=15, gDs=16, rks=1280, wa=4, diag=0, spin=1 << 17, prio=3, vacc=0, slp=64, qslp=2, b0=1, fb=0,
        sm=127, noproc=0, tslp=4, mnt=0, qnt=0, tnt=0, lds=LDS_BYTES, ww=2, wa2=0, n1=0, n1it=0):
    secs = {}
    cur = [None]
    def sec(name):
        cur[0] = secs.setdefault(name, [])
    def A(s):
        for x in s.split('\n'):
            x = x.strip()
            if x: cur[0].append(x)
    lab = [0]
    def newlab(p):
        lab[0] += 1
        return '%s_%d' % (p, lab[0])
    MF = 'sc1 nt' if mnt else 'sc1'
    QF = 'sc1 nt' if qnt else 'sc1'
    TF = 'sc1 nt' if tnt else 'sc1'
    TAG = 62

    sec('entry')
    A(KN + ':')
    A('s_cmp_ge_u32 s2, 256\ns_cbranch_scc1 L_end')
    if diag: A('s_memrealtime s[90:91]')
    A("""s_load_dwordx16 s[4:19], s[0:1], 0
s_load_dwordx8 s[20:27], s[0:1], 64
s_load_dwordx2 s[28:29], s[0:1], 96
v_lshrrev_b32 v1, 6, v0
v_and_b32 v0, 63, v0
v_readfirstlane_b32 s3, v1
v_lshlrev_b32 v1, 4, v0
s_lshr_b32 s30, s2, 5
s_and_b32 s31, s2, 31
s_waitcnt lgkmcnt(0)
s_load_dword s88, s[28:29], %d
s_mov_b32 s48, s28
s_mov_b32 s49, s29
s_mov_b32 s50, %d
s_mov_b32 s51, 0x20000
s_cmp_lt_u32 s3, 2
s_cbranch_scc1 L_S
s_cmp_eq_u32 s3, 3
s_cbranch_scc1 L_HB""" % (EPOCH, WS_SIZE))

    def stamp(slot):
        if not diag: return
        if diag == 3:
            if slot == 1:
                lp = newlab('L_hold')
                A('%s:\ns_memrealtime s[92:93]\ns_waitcnt lgkmcnt(0)\ns_sub_u32 s92, s92, s90\ns_cmp_lt_u32 s92, 25000\ns_cbranch_scc1 %s' % (lp, lp))
            return
        A("""s_memrealtime s[92:93]
s_add_u32 s80, s28, 0x40000000
s_addc_u32 s81, s29, 0
s_mov_b32 s82, 0x20000
s_mov_b32 s83, 0x20000
s_lshl_b32 s84, s2, 7
s_mov_b64 s[86:87], exec
s_mov_b64 exec, 1
s_waitcnt lgkmcnt(0)
v_mov_b32 v250, s92
v_mov_b32 v251, s93
v_mov_b32 v252, s84
buffer_store_dwordx2 v[250:251], v252, s[80:83], 0 offen offset:%d""" % (slot * 8))
        if slot == 1:
            A("""s_getreg_b32 s85, hwreg(HW_REG_XCC_ID)
v_mov_b32 v250, s90
v_mov_b32 v251, s91
buffer_store_dwordx2 v[250:251], v252, s[80:83], 0 offen
s_nop 1
v_mov_b32 v250, s85
v_mov_b32 v251, 0
buffer_store_dwordx2 v[250:251], v252, s[80:83], 0 offen offset:48""")
        A('s_mov_b64 exec, s[86:87]')

    def epoch(tagreg=TAG):
        A("""s_waitcnt lgkmcnt(0)
s_mul_i32 s89, s88, 0x9E3779B1
s_add_u32 s89, s89, 0x7F4A7C15
s_add_u32 s88, s88, 1
s_and_b32 s63, s88, 0xff
v_mov_b32 v%d, s63
s_mov_b32 s59, 0xffffff00""" % tagreg)
    def poll_tag(loads, regs, sleep, full=()):
        lp, ld = newlab('L_poll'), newlab('L_pdone')
        A('s_mov_b32 s62, %d\n%s:' % (spin, lp))
        for x in loads: A(x)
        A('s_waitcnt vmcnt(0)')
        rs = list(regs)
        A('v_xor_b32 v2, v%d, v62\nv_xor_b32 v3, v%d, v62' % (rs[0], rs[1]))
        for i, r in enumerate(rs[2:]):
            A('v_bitop3_b32 v%d, v%d, v%d, v62 bitop3:0xf6' % (2 + (i & 1), 2 + (i & 1), r))
        A('v_or_b32 v2, v2, v3\nv_and_b32 v2, 0xff, v2')
        for r in full:
            A('v_bitop3_b32 v2, v2, v%d, s89 bitop3:0xf6' % r)
        A("""v_cmp_ne_u32 vcc, 0, v2
s_cbranch_vccz {ld}
s_mov_b64 exec, vcc
s_sleep {sl}
s_sub_u32 s62, s62, 1
s_cbranch_scc0 {lp}
{ld}:
s_mov_b64 exec, -1""".format(lp=lp, ld=ld, sl=sleep))
    def srd(sn, ptr, size):
        A('s_mov_b32 s%d, s%d\ns_mov_b32 s%d, s%d\ns_mov_b32 s%d, %s\ns_mov_b32 s%d, 0x20000' % (sn, ptr, sn + 1, ptr + 1, sn + 2, size, sn + 3))
    def trbase(dst, rowstride, colmul, tmp, gm=8):
        A("""v_lshrrev_b32 v{d}, 4, v0
v_mul_u32_u24 v{d}, {gm}, v{d}
v_bfe_u32 v{t}, v0, 2, 2
v_add_u32 v{d}, v{d}, v{t}
v_mul_u32_u24 v{d}, {rs}, v{d}
v_and_b32 v{t}, 3, v0
v_mul_u32_u24 v{t}, {cm}, v{t}
v_add_u32 v{d}, v{d}, v{t}""".format(d=dst, t=tmp, rs=rowstride, cm=colmul, gm=gm))
    def xsum(regs, tmp):
        for r in regs: A('v_add_f32_dpp v%d, v%d, v%d row_ror:8 row_mask:0xf bank_mask:0xf' % (r, r, r))
        for sw in ('v_permlane16_swap_b32', 'v_permlane32_swap_b32'):
            for i, r in enumerate(regs): A('v_mov_b32 v%d, v%d' % (tmp + i, r))
            if len(regs) < 3: A('s_nop 1')
            for i, r in enumerate(regs): A('%s v%d, v%d' % (sw, r, tmp + i))
            for i, r in enumerate(regs): A('v_add_f32 v%d, v%d, v%d' % (r, r, tmp + i))
    def round4(regs, tmp):
        a, b, c, d = regs
        A("""v_cvt_pk_bf16_f32 v{t0}, v{a}, v{b}
v_cvt_pk_bf16_f32 v{t1}, v{c}, v{d}
v_lshlrev_b32 v{a}, 16, v{t0}
v_and_b32 v{b}, s63, v{t0}
v_lshlrev_b32 v{c}, 16, v{t1}
v_and_b32 v{d}, s63, v{t1}""".format(a=a, b=b, c=c, d=d, t0=tmp, t1=tmp + 1))

    vQ = 4
    vMask = 8
    vT0, vU0, vX0 = 12, 14, 2
    vA = 16
    vAcc = 24
    vS0, vS1, vR, vT, vT2, vPK, vM, vMC, vL = 28, 29, 30, 31, 32, 33, 34, 35, 36
    vAddr, vSA, vTag = 37, 38, 39
    RING = 40
    assert D % 16 == 0 and n + q <= D and D % q == 0
    def rr(t):
        b = RING + (t % D) * 4
        return 'v[%d:%d]' % (b, b + 3)
    HALF = 1024
    TOT = 2 * HALF
    sec('stream')
    A("""L_S:
s_lshl_b32 s52, s2, 21
s_lshr_b32 s53, s2, 11
s_add_u32 s32, s6, s52
s_addc_u32 s33, s7, s53
s_mov_b32 s34, 0x200000
s_mov_b32 s35, 0x20000
s_add_u32 s36, s8, s52
s_addc_u32 s37, s9, s53
s_mov_b32 s38, 0x200000
s_mov_b32 s39, 0x20000
s_mul_i32 s54, s3, %d
s_mov_b32 s53, s54""" % (G * 1024))
    st = {'issued': 0, 'landed': -1}
    info = {}
    def issue(t):
        sr, so = ('s[32:35]', 's54') if t < HALF else ('s[36:39]', 's53')
        A('buffer_load_dwordx4 %s, v1, %s, %s offen offset:%d nt' % (rr(t), sr, so, (t % G) * 1024))
        if t % G == G - 1: A('s_add_u32 %s, %s, %d' % (so, so, 2 * G * 1024))
        st['issued'] = t + 1
    def wait_landed(t):
        c = st['issued'] - 1 - t
        assert 0 <= c < 63
        if t > st['landed']:
            A('s_waitcnt vmcnt(%d)' % c)
            st['landed'] = t
    def dpp(op, d, a, ctl, bank=0xf):
        A('%s_dpp v%d, v%d, v%d %s row_mask:0xf bank_mask:%s' % (op, d, a, a, ctl, hex(bank)))
    lane_of = lambda j: ((j & 1) << 3) | (((j >> 1) & 1) << 2) | ((j >> 2) & 1) | (((j >> 3) & 1) << 1)
    GPB = D // 16
    def sc_off(grp):
        return (grp % GPB) * 256
    def prepA(u):
        a = u % 8
        grp = u // 8
        if a == 0:
            A("""s_waitcnt lgkmcnt(0)
v_fma_f32 v{T}, v{R}, s55, -v{MC}
v_exp_f32 v{T}, v{T}""".format(T=vT, R=vR, MC=vMC))
            if grp + 1 < HALF // 16:
                if (grp + 1) % GPB == 0: A('v_add_u32 v%d, %d, v%d' % (vSA, GPB * 256, vSA))
                A('ds_read_b32 v%d, v%d offset:%d' % (vR, vSA, sc_off(grp + 1)))
            else:
                A('s_nop 0')
            A("""v_cvt_pk_bf16_f32 v{PK}, v{T}, v{T}
v_add_f32 v{Lr}, v{Lr}, v{T}
s_nop 0""".format(T=vT, PK=vPK, Lr=vL))
        for i in range(2):
            for k in range(4):
                A('v_and_b32_dpp v%d, v%d, v%d row_newbcast:%d row_mask:0xf bank_mask:0xf' % (vA + 4 * i + k, vPK, vMask + k, lane_of(2 * a + i)))
    def finish_l():
        for ctl in ('row_ror:8', 'row_ror:4', 'row_ror:2', 'row_ror:1'):
            dpp('v_add_f32', vL, vL, ctl); A('s_nop 1')
        A("""v_mov_b32 v{T}, v{Lr}
s_nop 1
v_permlane16_swap_b32 v{Lr}, v{T}
v_add_f32 v{Lr}, v{Lr}, v{T}
v_mov_b32 v{T}, v{Lr}
s_nop 1
v_permlane32_swap_b32 v{Lr}, v{T}
v_add_f32 v{Lr}, v{Lr}, v{T}
ds_write_b32 v{Ad2}, v{Lr} offset:8""".format(T=vT, Lr=vL, Ad2=vT0))
    def proc(u):
        t = 2 * u
        if t < HALF:
            if noproc & 1: return
            k0 = RING + (t % D) * 4; k1 = RING + ((t + 1) % D) * 4
            for i in range(4):
                A('v_dot2_f32_bf16 v%d, v%d, v%d, %s' % (vS0, k0 + i, vQ + i, '0' if i == 0 else 'v%d' % vS0))
                A('v_dot2_f32_bf16 v%d, v%d, v%d, %s' % (vS1, k1 + i, vQ + i, '0' if i == 0 else 'v%d' % vS1))
            a = u % 8
            A('s_nop 1')
            dpp('v_add_f32', vT0 + (a & 1), vS0, 'row_ror:8', 0x3)
            dpp('v_add_f32', vT0 + (a & 1), vS1, 'row_ror:8', 0xc)
            if a & 1:
                bb = a >> 1
                dpp('v_add_f32', vU0 + (bb & 1), vT0, 'row_half_mirror', 0x5)
                A('s_nop 0')
                dpp('v_add_f32', vU0 + (bb & 1), vT0 + 1, 'row_half_mirror', 0xa)
                if bb & 1:
                    c = bb >> 1
                    dpp('v_add_f32', vU0, vU0, 'quad_perm:[1,0,3,2]')
                    A('s_nop 0')
                    dpp('v_add_f32', vU0 + 1, vU0 + 1, 'quad_perm:[1,0,3,2]')
                    A('v_cndmask_b32 v%d, v%d, v%d, s[70:71]' % (vX0 + c, vU0, vU0 + 1))
                    if c:
                        dpp('v_add_f32', vX0, vX0, 'quad_perm:[2,3,0,1]')
                        A('s_nop 0')
                        dpp('v_add_f32', vX0 + 1, vX0 + 1, 'quad_perm:[2,3,0,1]')
                        grp = u // 8
                        A('v_cndmask_b32 v%d, v%d, v%d, s[72:73]' % (vR, vX0, vX0 + 1))
                        A('v_max_f32 v%d, v%d, v%d' % (vM, vM, vR))
                        A('ds_write_b32 v%d, v%d offset:%d' % (vSA, vR, sc_off(grp)))
                        if (grp + 1) % GPB == 0 and grp + 1 < HALF // 16: A('v_add_u32 v%d, %d, v%d' % (vSA, GPB * 256, vSA))
            if t + 2 == HALF:
                A('v_subrev_u32 v%d, %d, v%d' % (vSA, ((HALF // 16 - 1) // GPB) * GPB * 256, vSA))
                A('ds_read_b32 v%d, v%d' % (vR, vSA))
                A('v_mov_b32 v%d, s56\nv_mov_b32 v%d, %d' % (vT0, vT0 + 1, L_MX))
                for ctl in ('row_ror:8', 'row_ror:4', 'row_ror:2', 'row_ror:1'):
                    dpp('v_max_f32', vM, vM, ctl); A('s_nop 1')
                for sw in ('v_permlane16_swap_b32', 'v_permlane32_swap_b32'):
                    A('v_mov_b32 v{T}, v{M}\ns_nop 1\n{sw} v{M}, v{T}\nv_max_f32 v{M}, v{M}, v{T}'.format(T=vT, M=vM, sw=sw))
                A('''ds_write_b32 v{Ad2}, v{M}
s_waitcnt lgkmcnt(0)
s_barrier
ds_read_b64 v[2:3], v{Ad3}
s_waitcnt lgkmcnt(0)
v_max_f32 v{M}, v2, v3
v_mul_f32 v{MC}, s55, v{M}'''.format(Ad2=vT0, Ad3=vT0 + 1, M=vM, MC=vMC))
                prepA(0)
        else:
            if noproc & 2: return
            if cur[0][-1].startswith('v_and'): A('s_nop 0')
            A('v_mfma_f32_16x16x32_bf16 v[%d:%d], v[%d:%d], %s, v[%d:%d]' % (vAcc, vAcc + 3, vA, vA + 3, rr(t), vAcc, vAcc + 3))
            A('v_mfma_f32_16x16x32_bf16 v[%d:%d], v[%d:%d], %s, v[%d:%d]' % (vAcc, vAcc + 3, vA + 4, vA + 7, rr(t + 1), vAcc, vAcc + 3))
            uu = u - HALF // 2
            if uu + 1 < HALF // 2: prepA(uu + 1)
            if uu + 1 == HALF // 2 - 8:
                pass
    win = [n]
    def paced_issue(cnt):
        for _ in range(cnt // q):
            t = st['issued']
            if t + q - 1 - win[0] >= 0:
                wait_landed(t + q - 1 - win[0])
            for i in range(q): issue(t + i)
    n0 = (n // q) * q
    def job_off(dst, jreg, rowbytes):
        A('''s_mul_i32 s68, {j}, 7282
s_lshr_b32 s68, s68, 16
s_mul_i32 s69, s68, 9
s_sub_u32 s69, {j}, s69
s_mul_i32 {d}, s68, {rb}
s_lshl_b32 s69, s69, 7
s_add_u32 {d}, {d}, s69'''.format(j=jreg, d=dst, rb=rowbytes))
    def side_dma(cnt, sr, so, step, ldsreg, vreg):
        for i in range(cnt):
            A('s_add_u32 m0, %s, %d\ns_waitcnt vmcnt(%d)\nbuffer_load_dwordx4 %s, %s, %s offen nt lds\ns_add_u32 %s, %s, %s' % (ldsreg, i * 1024, w0 - 1, vreg, sr, so, so, so, step))
    A('''v_lshrrev_b32 v4, 3, v0
v_and_b32 v5, 7, v0
v_lshlrev_b32 v5, 4, v5
v_mul_u32_u24 v6, 1152, v4
v_add_u32 v6, v6, v5
v_mul_u32_u24 v7, 9216, v4
v_add_u32 v7, v7, v5''')
    srd(44, 12, 4096 * 1152)
    job_off('s75', 's2', 147456)
    A('''s_mul_i32 s76, s3, 73728
s_add_u32 s75, s75, s76
s_lshl_b32 s77, s3, 13
s_add_u32 s78, s77, {lw}
s_add_u32 s77, s77, {lwo}
s_mul_i32 s79, s3, 36864
s_add_u32 s79, s79, {lw}
s_cmp_ge_u32 s2, 184
s_cbranch_scc1 L_S_down
s_cmp_lt_u32 s2, 40
s_cbranch_scc1 L_S_light
s_cmp_lt_u32 s2, 112
s_cselect_b32 s40, s16, s18
s_cselect_b32 s41, s17, s19
s_cselect_b32 s74, 40, 112
s_mov_b32 s42, 5308416
s_mov_b32 s43, 0x20000
s_sub_u32 s74, s2, s74
s_lshl_b32 s74, s74, 7
s_mul_i32 s76, s3, 2654208
s_add_u32 s74, s74, s76
s_mov_b32 s76, 73728
s_branch L_S_big
L_S_down:
s_sub_u32 s74, s2, 184'''.format(lw=L_W, lwo=L_WO))
    job_off('s74', 's74', 663552)
    srd(40, 20, 4608 * 1152)
    A('''s_mul_i32 s76, s3, 331776
s_add_u32 s74, s74, s76
s_mov_b32 s76, 9216
v_mov_b32 v7, v6
L_S_big:''')
    if b0: A('s_barrier')
    if sm & 4: side_dma(36, 's[40:43]', 's74', 's76', 's79', 'v7')
    A('s_branch L_S_wo\nL_S_light:\ns_add_u32 s74, s2, 256')
    job_off('s74', 's74', 147456)
    A('s_add_u32 s74, s74, s76')
    if b0: A('s_barrier')
    A('s_cmp_ge_u32 s2, 32\ns_cbranch_scc1 L_S_wo')
    if sm & 2: side_dma(8, 's[44:47]', 's74', '9216', 's78', 'v6')
    A('L_S_wo:')
    if sm & 2: side_dma(8, 's[44:47]', 's75', '9216', 's77', 'v6')
    for t in range(n0):
        A('s_waitcnt vmcnt(%d)' % (max(w0, n0) - 1))
        issue(t)
    A("""v_and_b32 v{T}, 1, v0
v_lshlrev_b32 v{T}, 4, v{T}
v_mov_b32 v{T2}, 0xffff
v_lshlrev_b32 v{T2}, v{T}, v{T2}
v_bfe_u32 v{T}, v0, 1, 3""".format(T=vT, T2=vT2))
    for j in range(4):
        A('v_cmp_eq_u32 vcc, %d, v%d\ns_nop 1\nv_cndmask_b32 v%d, 0, v%d, vcc' % (j, vT, vMask + j, vT2))
    epoch(vTag)
    A("""v_mov_b32 v{M}, 0xff800000
v_mov_b32 v{Lr}, 0
v_mov_b32 v{a0}, 0
v_mov_b32 v{a1}, 0
v_mov_b32 v{a2}, 0
v_mov_b32 v{a3}, 0
s_mov_b32 s55, {csc}
s_mov_b32 s70, 0xaaaaaaaa
s_mov_b32 s71, 0xaaaaaaaa
s_mov_b32 s72, 0xcccccccc
s_mov_b32 s73, 0xcccccccc
v_and_b32 v{T}, 15, v0
v_lshlrev_b32 v{T}, 4, v{T}
v_and_b32 v{T2}, 16, v0
v_lshl_add_u32 v{Ad}, v{T}, 1, v{T2}
v_add_u32 v{Ad}, {lacc}, v{Ad}
s_lshl_b32 s57, s31, 3
s_add_u32 s57, s57, s30
s_lshl_b32 s57, s57, 9
s_add_u32 s57, s57, {orec}
s_mov_b32 s63, 0xffff0000
s_lshl_b32 s56, s3, 2
s_add_u32 s56, s56, {lmx}
v_add_u32 v{T}, {lq}, v{T}
s_lshl_b32 s58, s3, 14
s_add_u32 s58, s58, {lsc}
v_lshl_add_u32 v{SA}, v0, 2, s58""".format(M=vM, Lr=vL, a0=vAcc, a1=vAcc + 1, a2=vAcc + 2, a3=vAcc + 3, csc=hex(CSC), T=vT, T2=vT2,
                              Ad=vAddr, SA=vSA, lacc=L_ACC, lmx=L_MX, lq=L_Q, lsc=L_SC, orec=OREC - L_ACC))
    paced_issue(D - n0 - ((D - n0) & 1))
    A('s_barrier')
    A('ds_read_b128 v[%d:%d], v%d\ns_waitcnt lgkmcnt(0)' % (vQ, vQ + 3, vT))
    done = [0]
    extra = [0]
    def do_proc():
        u = done[0]
        wait_landed(2 * u + 1)
        proc(u)
        done[0] += 1
    if not na: na = n0
    assert na >= n0 and (na - n0) % 2 == 0 and na + 2 <= D and nend <= na
    target_ahead = 2 + na
    k1 = n0 // 2 if D > target_ahead else 0
    for _ in range(k1):
        do_proc(); paced_issue(2)
    while st['issued'] - 2 * done[0] > target_ahead - 2:
        if st['issued'] - 2 * done[0] >= target_ahead + 2:
            do_proc(); do_proc(); paced_issue(2)
        else:
            do_proc()
    def steady():
        paced_issue(2); do_proc()
    def loop(name, limit):
        while (2 * done[0]) % D != 0: steady()
        niter = (limit - st['issued']) // D
        assert niter >= 2
        st['landed'] = 2 * done[0] - 1
        A('s_mov_b32 s58, %d\n%s:' % (niter, name))
        for _ in range(D // 2): steady()
        A('''s_sub_u32 s58, s58, 1
s_cmp_eq_u32 s58, %d
s_cbranch_scc1 L_midC
L_midCback:
s_cmp_lg_u32 s58, 0
s_cbranch_scc1 %s''' % (niter * 3 // 5, name))
        st['issued'] += (niter - 1) * D
        st['landed'] += (niter - 1) * D
        done[0] += (niter - 1) * (D // 2)
    loop('L_loopK', HALF)
    while 2 * done[0] < HALF or (2 * done[0] - HALF) % D != 0: steady()
    assert HALF % D == 0 or True
    loop2_base = done[0]
    niter = (TOT - D - st['issued']) // D
    nit2 = kend // D if nend else 0
    niter -= nit2
    cps = [niter - niter * p // 100 for p in (pB, pC, pD) if p]
    info['cntA'], info['cps'] = niter, cps
    A('s_mov_b32 s58, %d\ns_mov_b32 s75, %d\ns_and_b32 s74, s75, 0xff' % (niter, sum(c << (8 * i) for i, c in enumerate(cps)) | (0xff << (8 * len(cps))) & 0xffffffff))
    variants = [('L_loopV', n)] + ([('L_loopVf', nf), ('L_loopVs', ns)] if ctl else [])
    assert not ctl or (D == 16 and nf <= na)
    snap = (dict(st), done[0])
    for vi, (name, w) in enumerate(variants):
        st.update(snap[0]); done[0] = snap[1]
        st['landed'] = 2 * done[0] - 1
        win[0] = w
        if vi: sec('stream2')
        A(name + ':')
        if ctl: A('ds_read_b32 v%d, v%d offset:16' % (vT2, vT0 + 1))
        for _ in range(D // 2): steady()
        if vi: A('s_branch L_Vdisp')
    win[0] = n
    sec('stream')
    A("""L_Vdisp:
s_sub_u32 s58, s58, 1
s_cmp_eq_u32 s58, s74
s_cbranch_scc1 L_midB
L_midBback:""")
    if ctl:
        A("""v_readfirstlane_b32 s60, v{c}
s_cmp_eq_u32 s58, 0
s_cbranch_scc1 L_Vexit
s_lshr_b32 s61, s60, 2
s_cmp_gt_u32 s58, s61
s_cselect_b32 s60, s60, 0
s_bitcmp1_b32 s60, 0
s_cbranch_scc1 L_loopVf
s_bitcmp1_b32 s60, 1
s_cbranch_scc1 L_loopVs
s_branch L_loopV
L_Vexit:""".format(c=vT2))
    else:
        A('s_cmp_lg_u32 s58, 0\ns_cbranch_scc1 L_loopV')
    st['issued'] += (niter - 1) * D
    st['landed'] += (niter - 1) * D
    done[0] += (niter - 1) * (D // 2)
    st['landed'] = 2 * done[0] - 1
    if nend: win[0] = nend
    if nit2:
        st['landed'] = 2 * done[0] - 1
        A('s_mov_b32 s58, %d\nL_loopV2:' % nit2)
        for _ in range(D // 2): steady()
        A('s_sub_u32 s58, s58, 1\ns_cmp_lg_u32 s58, 0\ns_cbranch_scc1 L_loopV2')
        st['issued'] += (nit2 - 1) * D
        st['landed'] += (nit2 - 1) * D
        done[0] += (nit2 - 1) * (D // 2)
    while st['issued'] < TOT: steady()
    ml_done = False
    while done[0] < TOT // 2:
        if not ml_done and done[0] + 1 >= TOT // 2 - 8 + 1:
            finish_l(); ml_done = True
        do_proc()
    A("""s_mov_b32 exec_hi, 0
s_cmp_eq_u32 s3, 0
s_cbranch_scc1 L_S0end
s_nop 4
ds_write_b128 v{Ad}, v[{a0}:{a3}]
s_waitcnt lgkmcnt(0)
s_barrier
s_endpgm
L_S0end:
s_waitcnt lgkmcnt(0)
s_barrier
ds_read_b64 v[2:3], v{Ad3} offset:8
ds_read_b128 v[4:7], v{Ad}
s_waitcnt lgkmcnt(1)
v_add_f32 v2, v2, v3
v_rcp_f32 v2, v2
s_waitcnt lgkmcnt(0)
v_add_f32 v4, v4, v{a0}
v_add_f32 v5, v5, v{a1}
v_add_f32 v6, v6, v{a2}
v_add_f32 v7, v7, v{a3}
v_mul_f32 v4, v4, v2
v_mul_f32 v5, v5, v2
v_mul_f32 v6, v6, v2
v_mul_f32 v7, v7, v2
v_cvt_pk_bf16_f32 v2, v4, v5
v_cvt_pk_bf16_f32 v3, v6, v7
v_lshl_or_b32 v4, v2, 16, v{tg}
v_and_or_b32 v5, v2, s63, v{tg}
v_lshl_or_b32 v6, v3, 16, v{tg}
v_and_or_b32 v7, v3, s63, v{tg}
buffer_store_dwordx4 v[4:7], v{Ad}, s[48:51], s57 offen sc1""".format(a0=vAcc, a1=vAcc + 1, a2=vAcc + 2, a3=vAcc + 3, Ad=vAddr, Ad3=vT0 + 1, tg=vTag))
    if diag:
        A('s_mov_b64 exec, -1\ns_cmp_lg_u32 s3, 0\ns_cbranch_scc1 L_end')
        stamp(3)
    A('s_endpgm')
    A('L_midB:\ns_barrier\ns_lshr_b32 s75, s75, 8\ns_and_b32 s74, s75, 0xff\ns_branch L_midBback')
    A('L_midC:\ns_barrier\ns_branch L_midCback')

    XF = 72
    AC = 16
    AC2 = 32
    FR = 144
    PUB = 64
    def ha_setup1():
        srd(36, 4, 9216)
        A("""v_and_b32 v5, 7, v0
v_mul_u32_u24 v9, 1152, v5
v_lshrrev_b32 v8, 4, v0
v_lshl_add_u32 v9, v8, 4, v9""")
    def ha_setup2():
        trbase(6, 128, 16, 10)
        A("""v_and_b32 v10, 8, v0
v_lshlrev_b32 v12, 1, v10
v_lshl_add_u32 v12, v8, 5, v12
v_cmp_ne_u32 s[66:67], 0, v10""")
        epoch()
    def wdma(ldsoff, step, sr='s[32:35]', so='s54'):
        A('s_mov_b32 m0, %d\ns_nop 0\nbuffer_load_dwordx4 v4, %s, %s offen nt lds\ns_add_u32 %s, %s, %s' % (ldsoff, sr, so, so, so, step))
    def w_reads(ks, base, koff, hfs=512):
        b = FR + (ks % 2) * 16
        for nt in range(4):
            for hf in range(2):
                off = koff * 4096 + hf * hfs + (nt >> 1) * 64 + (nt & 1) * 8
                r = b + nt * 4 + hf * 2
                A('ds_read_b64_tr_b16 v[%d:%d], v%d offset:%d' % (r, r + 1, base, off))
    def w_mfma(ks, acc, xreg, first):
        b = FR + (ks % 2) * 16
        for nt in range(4):
            A('v_mfma_f32_16x16x32_bf16 v[%d:%d], v[%d:%d], v[%d:%d], %s' % (acc + nt * 4, acc + nt * 4 + 3, b + nt * 4, b + 3 + nt * 4, xreg, xreg + 3,
              '0' if first else 'v[%d:%d]' % (acc + nt * 4, acc + nt * 4 + 3)))
    def select8(dst, acc):
        for i in range(2):
            for e in range(4):
                A('v_cndmask_b32 v%d, v%d, v%d, s[66:67]' % (dst + 4 * i + e, acc + 8 * i + e, acc + 8 * i + 4 + e))
    def publish(linestride):
        for i in range(2):
            A('buffer_store_dwordx4 v[%d:%d], v11, s[48:51], s57 offen offset:%d sc1' % (PUB + 4 * i, PUB + 3 + 4 * i, i * linestride))
    def publish_f32(linestride):
        A('s_nop 6')
        select8(PUB, AC)
        for i in range(8): A('v_bfi_b32 v%d, s59, v%d, v62' % (PUB + i, PUB + i))
        publish(linestride)

    sec('haq')
    A('L_HA:')
    if prio: A('s_setprio %d' % prio)
    A('s_cmp_ge_u32 s2, 192\ns_cbranch_scc1 L_HA_noq')
    srd(32, 10, 576 * 8192)
    ha_setup1()
    A("""s_and_b32 s52, s2, 63
s_lshr_b32 s53, s2, 6
s_mul_i32 s54, s53, 1572864
s_lshl_b32 s55, s52, 7
s_add_u32 s54, s54, s55
s_mul_i32 s56, s53, 384
v_lshrrev_b32 v4, 3, v0
v_lshlrev_b32 v4, 13, v4
v_lshl_add_u32 v4, v5, 4, v4""")
    for ks in range(6):
        A('buffer_load_dwordx4 v[%d:%d], v9, s[36:39], s56 offen offset:%d' % (XF + 4 * ks, XF + 4 * ks + 3, ks * 64))
    for i in range(24): wdma(L_QW + i * 1024, '65536')
    if b0: A('s_barrier')
    ha_setup2()
    A("""v_mul_u32_u24 v11, 49152, v5
v_add_u32 v11, v11, v12
s_mul_i32 s57, s52, 3
s_add_u32 s57, s57, s53
s_lshl_b32 s57, s57, 8
s_add_u32 s57, s57, %d
s_waitcnt vmcnt(20)""" % QP)
    w_reads(0, 6, 0)
    for ks in range(6):
        if ks + 1 < 6:
            A('s_waitcnt vmcnt(%d)' % (16 - 4 * ks))
            w_reads(ks + 1, 6, ks + 1)
            A('s_waitcnt lgkmcnt(8)')
        else:
            A('s_waitcnt lgkmcnt(0)')
        w_mfma(ks, AC, XF + 4 * ks, ks == 0)
    publish_f32(128)
    stamp(5)
    A('s_branch L_HA2')

    sec('ha2')
    A("""L_HA_noq:""")
    ha_setup1()
    if b0: A('s_barrier')
    ha_setup2()
    A("""L_HA2:
s_setprio 0
s_barrier""")
    if not sm & 8: A('s_endpgm')
    A("""s_cmp_ge_u32 s2, 184
s_cbranch_scc1 L_FFN2
s_cmp_ge_u32 s2, 40
s_cbranch_scc1 L_FFN1
s_cmp_ge_u32 s2, {lim2}
s_cbranch_scc1 L_end
s_add_u32 s64, s2, 256
s_mov_b32 s65, {lw}
s_branch L_wojob""".format(lw=L_W, lim2=32 if sm & 32 else 0))
    A('L_FFN1:')
    for ks in range(18):
        if ks >= wa: A('s_waitcnt vmcnt(%d)' % (wa - 1))
        A('buffer_load_dwordx4 v[%d:%d], v9, s[36:39], 0 offen offset:%d' % (XF + 4 * ks, XF + 4 * ks + 3, ks * 64))
    A("""v_add_u32 v6, {lw}, v6
v_add_u32 v7, 36864, v6
v_mul_u32_u24 v11, 18432, v5
v_add_u32 v11, v11, v12
s_cmp_lt_u32 s2, 112
s_cselect_b32 s52, 40, 112
s_sub_u32 s52, s2, s52
s_lshl_b32 s52, s52, 8
s_add_u32 s57, s52, {preg}
s_waitcnt vmcnt(0)""".format(lw=L_W, preg=PREG))
    w_reads(0, 6, 0)
    for ks in range(18):
        if ks + 1 < 18:
            w_reads(ks + 1, 6 if ks + 1 < 9 else 7, (ks + 1) % 9)
            A('s_waitcnt lgkmcnt(8)')
        else:
            A('s_waitcnt lgkmcnt(0)')
        w_mfma(ks, AC, XF + 4 * ks, ks == 0)
    A('s_cmp_ge_u32 s2, 112\ns_cbranch_scc1 L_UP')
    publish_f32(128)
    stamp(9)
    A('s_endpgm')
    A("""L_UP:
s_mov_b32 s58, {nl}
s_mov_b32 s63, 0xffff0000
s_nop 3""".format(nl=hex(NLOG2E)))
    select8(PUB, AC)
    for i in range(2): round4([PUB + 4 * i + e for e in range(4)], 56)
    A('s_barrier')
    poll_tag(['buffer_load_dwordx4 v[%d:%d], v11, s[48:51], s57 offen offset:%d %s' % (48 + 4 * i, 51 + 4 * i, i * 128, MF) for i in range(2)],
             range(48, 56), slp)
    for e in range(8): A('v_and_b32 v%d, s59, v%d' % (48 + e, 48 + e))
    for i in range(2): round4([48 + 4 * i + e for e in range(4)], 56)
    for e in range(8): A('v_mul_f32 v%d, s58, v%d' % (16 + e, 48 + e))
    for e in range(8): A('v_exp_f32 v%d, v%d' % (16 + e, 16 + e))
    for e in range(8): A('v_add_f32 v%d, 1.0, v%d' % (16 + e, 16 + e))
    for e in range(8): A('v_rcp_f32 v%d, v%d' % (16 + e, 16 + e))
    for e in range(8): A('v_mul_f32 v%d, v%d, v%d' % (48 + e, 48 + e, 16 + e))
    for i in range(2): round4([48 + 4 * i + e for e in range(4)], 56)
    for e in range(8): A('v_mul_f32 v%d, v%d, v%d' % (PUB + e, PUB + e, 48 + e))
    for i in range(2): round4([PUB + 4 * i + e for e in range(4)], 56)
    for e in range(8): A('v_or_b32 v%d, v%d, v62' % (PUB + e, PUB + e))
    A('s_add_u32 s57, s52, %d' % HM)
    publish(128)
    stamp(9)
    A('s_endpgm')

    A('L_FFN2:')
    trbase(6, 128, 16, 10, 4)
    A("""s_sub_u32 s53, s2, 184
s_mul_i32 s52, s53, 7282
s_lshr_b32 s52, s52, 16
s_mul_i32 s54, s52, 9
s_sub_u32 s53, s53, s54
v_add_u32 v6, {lw}, v6
v_add_u32 v7, 36864, v6
v_mul_u32_u24 v9, 18432, v5
v_lshl_add_u32 v9, v8, 4, v9
v_and_b32 v10, 8, v0
v_lshl_add_u32 v9, v10, 3, v9
s_mul_i32 s56, s52, 2304
s_add_u32 s56, s56, {hm}
s_mov_b32 s58, 0x07060302
v_mul_u32_u24 v11, 18432, v5
v_add_u32 v11, v11, v12
s_lshl_b32 s57, s53, 11
s_lshl_b32 s63, s52, 7
s_add_u32 s57, s57, s63
s_add_u32 s57, s57, {fin}
s_barrier
s_barrier""".format(lw=L_W, hm=HM, fin=FIN))
    def pack_frags(raw, cnt, sel):
        for k in range(cnt):
            r = raw + 4 * k
            A('v_perm_b32 v%d, v%d, v%d, %s\nv_perm_b32 v%d, v%d, v%d, %s' % (r, r + 1, r, sel, r + 1, r + 3, r + 2, sel))
        for k in range(cnt):
            r = raw + 4 * k
            for t in range(2):
                A('v_mov_b32_dpp v%d, v%d row_ror:8 row_mask:0xf bank_mask:0xf' % (r + 2 + t, r + t))
    def spread8(acc):
        for i in range(2):
            for e in range(4):
                A('v_mov_b32_dpp v%d, v%d row_ror:8 row_mask:0xf bank_mask:0xc' % (acc + 8 * i + e, acc + 8 * i + 4 + e))
    poll_tag(['buffer_load_dwordx4 v[%d:%d], v9, s[48:51], s56 offen offset:%d %s' % (XF + 4 * k, XF + 4 * k + 3, k * 128, MF) for k in range(18)],
             range(XF, XF + 72), slp)
    pack_frags(XF, 18, 's58')
    w_reads(0, 6, 0, 2048)
    for k in range(18):
        if k + 1 < 18:
            w_reads(k + 1, 6 if k + 1 < 9 else 7, (k + 1) % 9, 2048)
            A('s_waitcnt lgkmcnt(8)')
        else:
            A('s_waitcnt lgkmcnt(0)')
        w_mfma(k, AC, XF + 4 * k, k == 0)
    A('s_nop 7')
    spread8(AC)
    for i in range(2):
        for e in range(4): A('v_bfi_b32 v%d, s59, v%d, v62' % (PUB + 4 * i + e, AC + 8 * i + e))
    publish(1024)
    stamp(9)
    A('s_endpgm')

    sec('hbq')
    A('L_HB:')
    if prio: A('s_setprio %d' % prio)
    A("""v_bfe_u32 v6, v0, 3, 1
v_mul_u32_u24 v6, 768, v6
v_lshrrev_b32 v7, 4, v0
v_min_u32 v5, 2, v7
v_lshl_add_u32 v6, v5, 8, v6
v_and_b32 v5, 7, v0
v_lshl_add_u32 v6, v5, 5, v6
v_cmp_gt_u32 vcc, 3, v7
s_lshl_b32 s56, s30, 6
s_lshl_b32 s57, s31, 1
s_add_u32 s56, s56, s57
s_mul_i32 s56, s56, 768
s_add_u32 s56, s56, {qp}
v_mov_b32 v8, 0xffffff00
v_cndmask_b32 v8, 0, v8, vcc
v_and_b32 v5, 15, v0
v_lshlrev_b32 v5, 4, v5
v_add_u32 v4, {lq}, v5""".format(qp=QP, lq=L_Q))
    epoch()
    if b0: A('s_barrier')
    poll_tag(['buffer_load_dwordx4 v[%d:%d], v6, s[48:51], s56 offen offset:%d %s' % (16 + 4 * i, 19 + 4 * i, i * 16, QF) for i in range(2)],
             range(16, 24), qslp)
    stamp(12)
    for i in range(8): A('v_and_b32 v%d, v8, v%d' % (32 + i, 16 + i))
    for sw in ('v_permlane16_swap_b32', 'v_permlane32_swap_b32'):
        for i in range(8): A('v_mov_b32 v%d, v%d' % (40 + i, 32 + i))
        for i in range(8): A('%s v%d, v%d' % (sw, 32 + i, 40 + i))
        for i in range(8): A('v_add_f32 v%d, v%d, v%d' % (32 + i, 32 + i, 40 + i))
    for i in range(4): A('v_cvt_pk_bf16_f32 v%d, v%d, v%d' % (8 + i, 32 + 2 * i, 33 + 2 * i))
    if ctl: A('v_mov_b32 v2, %d\nv_mov_b32 v3, 0\nds_write_b32 v2, v3' % L_CTL)
    A("""ds_write_b128 v4, v[8:11]
s_waitcnt lgkmcnt(0)
s_barrier
s_branch L_HB2""")
    sec('hb2')
    A('L_HB2:\ns_setprio 0')
    stamp(2)
    A('s_mov_b32 s64, s2\ns_mov_b32 s65, %d' % L_WO)
    if not sm & 32:
        A('s_barrier\ns_barrier')
        stamp(14)
        A('s_barrier\ns_barrier')
        stamp(1)
        A('s_endpgm')
    A('L_wojob:')
    WF = 64
    OF = 128
    FB = 164
    YA = 44
    A('''s_mul_i32 s68, s64, 7282
s_lshr_b32 s68, s68, 16
s_mul_i32 s69, s68, 9
s_sub_u32 s69, s64, s69''')
    trbase(6, 128, 8, 8, 4)
    A('v_add_u32 v6, s65, v6')
    for nt in range(4):
        for ks in range(4):
            for hf in range(2):
                r = WF + (nt * 4 + ks) * 4 + hf * 2
                A('ds_read_b64_tr_b16 v[%d:%d], v6 offset:%d' % (r, r + 1, ks * 4096 + hf * 2048 + nt * 32))
        A('s_waitcnt lgkmcnt(0)')
    A("""v_lshrrev_b32 v8, 4, v0
v_and_b32 v11, 8, v0
v_lshlrev_b32 v11, 3, v11
v_lshl_add_u32 v11, v8, 4, v11
v_and_b32 v10, 7, v0
v_lshl_add_u32 v12, v10, 9, v11
v_mul_u32_u24 v14, {bs}, v10
v_add_u32 v14, v14, v11
v_lshlrev_b32 v15, 3, v0
s_lshl_b32 s72, s68, 12
s_add_u32 s72, s72, {orec}
s_lshl_b32 s74, s69, 13
s_lshl_b32 s75, s68, 7
s_add_u32 s74, s74, s75
s_add_u32 s74, s74, {yin}
s_add_u32 s75, s74, 4096
s_mov_b32 s63, 0xffff0000
s_mov_b32 s71, 0x07060302
s_cmp_ge_u32 s64, 144
s_cbranch_scc1 L_nofin0
s_mul_i32 s76, s64, 3641
s_lshr_b32 s76, s76, 16
s_mul_i32 s77, s76, 18
s_sub_u32 s77, s64, s77
s_mul_i32 s56, s76, 1152
s_add_u32 s57, s56, 1152""".format(orec=OREC, lacc=L_ACC, ll=L_L, bs=18 * 4096, yin=YIN))
    srd(32, 4, 's57')
    srd(36, 22, 1152)
    A("""v_lshlrev_b32 v5, 5, v0
buffer_load_dwordx4 v[16:19], v5, s[32:35], s56 offen
buffer_load_dwordx4 v[20:23], v5, s[32:35], s56 offen offset:16
buffer_load_dwordx4 v[24:27], v5, s[36:39], 0 offen
buffer_load_dwordx4 v[28:31], v5, s[36:39], 0 offen offset:16
s_mov_b32 s58, 0x3f803f80
v_mov_b32 v32, 0
s_waitcnt vmcnt(0)""")
    for r in range(8):
        A("""v_lshlrev_b32 v34, 16, v{x}
v_and_b32 v35, s63, v{x}
v_lshlrev_b32 v36, 16, v{w}
v_and_b32 v37, s63, v{w}
v_mul_f32 v34, v34, v36
v_mul_f32 v35, v35, v37
v_cvt_pk_bf16_f32 v34, v34, v35
v_dot2_f32_bf16 v32, v34, s58, v32""".format(x=16 + r, w=24 + r))
    A("""s_nop 2
v_add_f32_dpp v32, v32, v32 quad_perm:[1,0,3,2] row_mask:0xf bank_mask:0xf
s_nop 1
v_add_f32_dpp v32, v32, v32 quad_perm:[2,3,0,1] row_mask:0xf bank_mask:0xf
s_nop 1
v_add_f32_dpp v32, v32, v32 row_half_mirror row_mask:0xf bank_mask:0xf
s_nop 1""")
    xsum([32], 34)
    A("""v_cvt_pk_bf16_f32 v32, v32, v32
v_and_b32 v32, s63, v32
v_mul_f32 v32, {nl2e}, v32
v_exp_f32 v32, v32
s_nop 0
v_add_f32 v32, 1.0, v32
v_rcp_f32 v32, v32
s_nop 0
v_cvt_pk_bf16_f32 v32, v32, v32
v_and_b32 v{g}, s63, v32
v_sub_f32 v33, 1.0, v{g}
v_cvt_pk_bf16_f32 v33, v33, v33
v_and_b32 v33, s63, v33
s_lshl_b32 s56, s64, 10
s_add_u32 s56, s56, {fin}
L_nofin0:
s_barrier
s_barrier""".format(nl2e=hex(NLOG2E), fin=FIN, g=FB + 4))
    def checkpoint(k, cnt, gf, gs):
        if not ctl: return
        lab_ = newlab('L_nock')
        A("""s_cmp_ge_u32 s64, 256
s_cbranch_scc1 {lab}
s_bfe_u32 s40, s2, 0x30003
s_mul_i32 s40, s40, {rs}
s_add_u32 s40, s40, {rk}
s_and_b32 s41, s2, 7
s_lshr_b32 s42, s2, 6
s_lshl_b32 s42, s42, 3
s_add_u32 s41, s41, s42
v_lshlrev_b32 v2, 2, v0
v_mov_b32 v3, s89
s_lshl_b64 s[42:43], 1, s41
s_mov_b32 exec_hi, 0
buffer_load_dword v4, v2, s[48:51], s40 offen sc1
s_mov_b64 exec, s[42:43]
buffer_store_dword v3, v2, s[48:51], s40 offen sc1
s_mov_b32 exec_lo, -1
s_waitcnt vmcnt(1)
v_cmp_eq_u32 vcc, s89, v4
s_mov_b64 exec, -1
s_mov_b32 s41, {gf}
s_mov_b32 s42, {gs}
s_bcnt1_i32_b32 s40, vcc_lo
v_cvt_f32_u32 v2, s40
v_mul_f32 v2, {r16}, v2
v_add_f32 v2, {b0}, v2
v_mul_f32 v3, v2, v2
v_mul_f32 v4, v3, v3
v_mul_f32 v4, v4, v4
v_mul_f32 v4, {c9}, v4
v_fmac_f32 v4, 0.5, v3
v_add_f32 v4, {c1}, v4
v_mul_f32 v2, v2, v4
s_cmp_ge_u32 s40, 16
s_cselect_b32 s41, s41, s42
s_cselect_b32 s43, 1, 2
v_fma_f32 v2, abs(v2), s41, 0.5
v_cvt_u32_f32 v2, v2
s_nop 0
v_readfirstlane_b32 s44, v2
s_sub_u32 s45, {c0}, s44
s_max_i32 s45, s45, 0
s_lshl_b32 s45, s45, 2
s_or_b32 s45, s45, s43
s_cmp_eq_u32 s44, 0
s_cselect_b32 s45, 0, s45
v_mov_b32 v2, {lctl}
v_mov_b32 v3, s45
ds_write_b32 v2, v3
{lab}:""".format(lab=lab_, rk=RK + k * 8 * rks, rs=rks, gf=hex(f2u(gf / 10)), gs=hex(f2u(gs / 10)), r16=hex(f2u(1 / 16)), b0=hex(f2u(-15.5 / 16)),
           c9=hex(f2u(0.6)), c1=hex(f2u(1.2)), c0=cnt - 2, lctl=L_CTL))
    checkpoint(0, info['cntA'], gA, gAs)
    if diag == 1:
        A('s_cmp_ge_u32 s64, 256\ns_cbranch_scc1 L_nost14')
        stamp(14)
        A('L_nost14:')
    A('s_barrier')
    checkpoint(1, info['cps'][0], gB, gBs)
    A('s_cmp_ge_u32 s64, 144\ns_cbranch_scc1 L_nofin1')
    poll_tag(['buffer_load_dwordx4 v[%d:%d], v1, s[48:51], s56 offen %s' % (FB, FB + 3, MF)], range(FB, FB + 4), slp)
    stamp(13)
    for r in range(FB, FB + 4): A('v_and_b32 v%d, s59, v%d' % (r, r))
    xsum(list(range(FB, FB + 4)), 40)
    round4(range(FB, FB + 4), 40)
    for r in range(FB, FB + 4): A('v_mul_f32 v%d, v33, v%d' % (r, r))
    round4(range(FB, FB + 4), 40)
    A("""s_lshl_b32 s78, s64, 12
s_add_u32 s78, s78, {yin}
s_mul_i32 s79, s76, 1152
s_lshl_b32 s56, s77, 6
s_add_u32 s79, s79, s56""".format(yin=YIN))
    srd(32, 24, 8 * 1152)
    A('L_nofin1:')
    for k, (g1, g2) in enumerate(((gC, gCs), (gD, gDs))[:len(info['cps']) - 1]):
        A('s_barrier')
        checkpoint(2 + k, info['cps'][1 + k], g1, g2)
    if prio: A('s_setprio %d' % prio)
    A('s_barrier')
    if not sm & 64:
        if diag: A('s_cmp_ge_u32 s64, 256\ns_cbranch_scc1 L_end')
        stamp(1)
        A('s_endpgm')
    poll_tag(['buffer_load_dwordx4 v[%d:%d], v12, s[48:51], s72 offen offset:%d %s' % (OF + 4 * ks, OF + 4 * ks + 3, ks * 128, TF) for ks in range(4)],
             range(OF, OF + 16), tslp)
    pack_frags(OF, 4, 's71')
    for ks in range(4):
        for nt in range(4):
            r = WF + (nt * 4 + ks) * 4
            A('v_mfma_f32_16x16x32_bf16 v[%d:%d], v[%d:%d], v[%d:%d], %s' % (YA + nt * 4, YA + nt * 4 + 3, r, r + 3, OF + ks * 4, OF + 3 + ks * 4, '0' if ks == 0 else 'v[%d:%d]' % (YA + nt * 4, YA + nt * 4 + 3)))
    A('s_nop 5')
    for i in range(2):
        for e in range(4):
            A('v_mov_b32_dpp v%d, v%d row_ror:8 row_mask:0xf bank_mask:0xc' % (YA + 8 * i + e, YA + 8 * i + 4 + e))
        for e in range(4):
            A('v_bfi_b32 v%d, s59, v%d, v62' % (YA + 8 * i + e, YA + 8 * i + e))
        A('buffer_store_dwordx4 v[%d:%d], v14, s[48:51], %s offen sc1' % (YA + 8 * i, YA + 8 * i + 3, 's74' if i == 0 else 's75'))
    if diag:
        A('s_cmp_ge_u32 s64, 256\ns_cbranch_scc1 L_end')
        stamp(4)
    A('s_cmp_ge_u32 s64, 144\ns_cbranch_scc1 L_fin_end')
    poll_tag(['buffer_load_dwordx4 v[%d:%d], v1, s[48:51], s78 offen offset:%d %s' % (16 + 4 * i, 19 + 4 * i, i * 1024, TF) for i in range(4)],
             range(16, 32), tslp)
    for r in range(16, 32): A('v_and_b32 v%d, s59, v%d' % (r, r))
    for c in range(4):
        A('v_add_f32 v%d, v%d, v%d' % (16 + c, 16 + c, 20 + c))
        A('v_add_f32 v%d, v%d, v%d' % (24 + c, 24 + c, 28 + c))
    for c in range(4): A('v_add_f32 v%d, v%d, v%d' % (16 + c, 16 + c, 24 + c))
    xsum([16, 17, 18, 19], 20)
    round4([16, 17, 18, 19], 20)
    for c in range(4): A('v_mul_f32 v%d, v%d, v%d' % (16 + c, FB + 4, 16 + c))
    round4([16, 17, 18, 19], 20)
    for c in range(4): A('v_add_f32 v%d, v%d, v%d' % (16 + c, 16 + c, FB + c))
    A("""v_cvt_pk_bf16_f32 v20, v16, v17
v_cvt_pk_bf16_f32 v21, v18, v19
s_mov_b64 exec, 0xff
buffer_store_dwordx2 v[20:21], v15, s[32:35], s79 offen
s_cmp_lg_u32 s64, 0
s_cbranch_scc1 L_noepoch
s_mov_b64 exec, 1
v_mov_b32 v2, s88
v_mov_b32 v3, %d
buffer_store_dword v2, v3, s[48:51], 0 offen sc1
L_noepoch:
s_mov_b64 exec, -1
L_fin_end:""" % EPOCH)
    if diag:
        A('s_waitcnt vmcnt(0)')
        stamp(1)
    A('L_end:\ns_endpgm')

    nacc = 0
    nv = max(RING + D * 4, 176)
    if diag: nv = 256
    assert nv <= 256
    out = HEADER + '; @launch grid=(256,1,1) block=(256,1,1) lds=%d\n' % lds
    out += '.amdgcn_target "amdgcn-amd-amdhsa--gfx950"\n.text\n.globl %s\n.p2align 8\n.type %s,@function\n' % (KN, KN)
    L = []
    for nm in ('entry', 'haq', 'hbq', 'stream', 'stream2', 'ha2', 'hb2'): L += secs.get(nm, [])
    out += '\n'.join(('' if x.endswith(':') else '    ') + x for x in L) + '\n'
    out += '''.section .rodata,"a"
.p2align 6
.amdhsa_kernel %s
  .amdhsa_next_free_vgpr %d
  .amdhsa_next_free_sgpr 102
  .amdhsa_accum_offset %d
  .amdhsa_group_segment_fixed_size 0
  .amdhsa_kernarg_size 104
  .amdhsa_user_sgpr_count 2
  .amdhsa_user_sgpr_kernarg_segment_ptr 1
  .amdhsa_system_sgpr_workgroup_id_x 1
.end_amdhsa_kernel
''' % (KN, nv + nacc, nv)
    return out


if __name__ == '__main__':
    names = []
    for spec in sys.argv[1:]:
        kw = {}
        for p in spec.split(','):
            if not p: continue
            k, v = p.split('=')
            kw[k] = int(v)
        nm = 'k_' + spec.replace(',', '_').replace('=', '') + '.s'
        open(nm, 'w').write(gen(**kw))
        names.append(nm)
    print(' '.join(names))
```

```python
import sys, math, struct

KN = 'gated_mix__mha_block_cached__swiglu_ffn__decode_kernel'

HEADER = '''; Kernarg layout for this problem (104 bytes, ptrs only, base s[0:1]):
'''

EPOCH = 0x0
RK = 0x1000
QP = 0x10000
HM = 0x70000
FIN = 0xA0000
PREG = 0xD0000
OREC = 0x100000
YIN = 0x140000
WS_SIZE = 0x200000
L_QW = 0
L_W = 36864
L_SC = 110592
L_Q = 143360
L_CTL = 143616
LDS_BYTES = 143680

def f2u(x):
    return struct.unpack('<I', struct.pack('<f', x))[0]

CSC = f2u(math.log2(math.e) / math.sqrt(128.0))
NLOG2E = f2u(-math.log2(math.e))


def gen(n=20, q=2, D=32, w0=24, na=28, nend=28, kend=32, ctl=1, nf=24, ns=18, gA=125, gAs=100, gB=72, gBs=60, pB=50, pC=80, gC=55, gCs=45, pD=0, gD=15, gDs=16, rks=1280, pt=0, ck=1, b0q=35, fslp2=1, b3=1, qgate=1, rm=1, Z=64, zg=4, wa=4, diag=0, spin=1 << 17, prio=3, vacc=0, slp=64, qslp=2, b0=1, fb=0,
        sm=127, noproc=0, tslp=1, mnt=0, qnt=0, tnt=0, lds=LDS_BYTES, ww=2, wa2=0, n1=0, n1it=0):
    secs = {}
    cur = [None]
    def sec(name):
        cur[0] = secs.setdefault(name, [])
    def A(s):
        for x in s.split('\n'):
            x = x.strip()
            if x: cur[0].append(x)
    lab = [0]
    def newlab(p):
        lab[0] += 1
        return '%s_%d' % (p, lab[0])
    MF = 'sc1 nt' if mnt else 'sc1'
    QF = 'sc1 nt' if qnt else 'sc1'
    TF = 'sc1 nt' if tnt else 'sc1'
    TAG = 62

    sec('entry')
    A(KN + ':')
    A('s_cmp_ge_u32 s2, 256\ns_cbranch_scc1 L_end')
    if diag: A('s_memrealtime s[90:91]')
    A("""s_load_dwordx16 s[4:19], s[0:1], 0
s_load_dwordx8 s[20:27], s[0:1], 64
s_load_dwordx2 s[28:29], s[0:1], 96
v_lshrrev_b32 v1, 6, v0
v_and_b32 v0, 63, v0
v_readfirstlane_b32 s3, v1
v_lshlrev_b32 v1, 4, v0
s_lshr_b32 s30, s2, 5
s_and_b32 s31, s2, 31
s_waitcnt lgkmcnt(0)
s_load_dword s88, s[28:29], %d
s_mov_b32 s48, s28
s_mov_b32 s49, s29
s_mov_b32 s50, %d
s_mov_b32 s51, 0x20000
s_cmp_eq_u32 s3, 0
s_cbranch_scc1 L_S
s_cmp_eq_u32 s3, 2
s_cbranch_scc1 L_HB""" % (EPOCH, WS_SIZE))

    def stamp(slot):
        if not diag: return
        if diag in (4, 5) and slot not in (1, 3): return
        if diag == 3:
            if slot == 1:
                lp = newlab('L_hold')
                A('%s:\ns_memrealtime s[92:93]\ns_waitcnt lgkmcnt(0)\ns_sub_u32 s92, s92, s90\ns_cmp_lt_u32 s92, 25000\ns_cbranch_scc1 %s' % (lp, lp))
            return
        A("""s_memrealtime s[92:93]
s_add_u32 s80, s28, 0x40000000
s_addc_u32 s81, s29, 0
s_mov_b32 s82, 0x20000
s_mov_b32 s83, 0x20000
s_lshl_b32 s84, s2, 7
s_mov_b64 s[86:87], exec
s_mov_b64 exec, 1
s_waitcnt lgkmcnt(0)
v_mov_b32 v250, s92
v_mov_b32 v251, s93
v_mov_b32 v252, s84
buffer_store_dwordx2 v[250:251], v252, s[80:83], 0 offen offset:%d""" % (slot * 8))
        if slot == 3:
            A("""s_sub_u32 s85, s2, 40
s_cmp_lt_u32 s85, 144
s_cbranch_scc1 L_st3
buffer_store_dwordx2 v[250:251], v252, s[80:83], 0 offen offset:8
L_st3:
s_getreg_b32 s85, hwreg(HW_REG_XCC_ID)
v_mov_b32 v250, s90
v_mov_b32 v251, s91
buffer_store_dwordx2 v[250:251], v252, s[80:83], 0 offen
s_nop 1
v_mov_b32 v250, s85
v_mov_b32 v251, 0
buffer_store_dwordx2 v[250:251], v252, s[80:83], 0 offen offset:48""")
        A('s_mov_b64 exec, s[86:87]')

    def epoch(tagreg=TAG):
        A("""s_waitcnt lgkmcnt(0)
s_mul_i32 s89, s88, 0x9E3779B1
s_add_u32 s89, s89, 0x7F4A7C15
s_add_u32 s88, s88, 1
s_and_b32 s63, s88, 0xff
v_mov_b32 v%d, s63
s_mov_b32 s59, 0xffffff00""" % tagreg)
    def poll_tag(loads, regs, sleep, full=()):
        lp, ld = newlab('L_poll'), newlab('L_pdone')
        A('s_mov_b32 s62, %d\n%s:' % (spin, lp))
        for x in loads: A(x)
        A('s_waitcnt vmcnt(0)')
        rs = list(regs)
        A('v_xor_b32 v2, v%d, v62\nv_xor_b32 v3, v%d, v62' % (rs[0], rs[1]))
        for i, r in enumerate(rs[2:]):
            A('v_bitop3_b32 v%d, v%d, v%d, v62 bitop3:0xf6' % (2 + (i & 1), 2 + (i & 1), r))
        A('v_or_b32 v2, v2, v3\nv_and_b32 v2, 0xff, v2')
        for r in full:
            A('v_bitop3_b32 v2, v2, v%d, s89 bitop3:0xf6' % r)
        A("""v_cmp_ne_u32 vcc, 0, v2
s_cbranch_vccz {ld}
s_mov_b64 exec, vcc
s_sleep {sl}
s_sub_u32 s62, s62, 1
s_cbranch_scc0 {lp}
{ld}:
s_mov_b64 exec, -1""".format(lp=lp, ld=ld, sl=sleep))
    def srd(sn, ptr, size):
        A('s_mov_b32 s%d, s%d\ns_mov_b32 s%d, s%d\ns_mov_b32 s%d, %s\ns_mov_b32 s%d, 0x20000' % (sn, ptr, sn + 1, ptr + 1, sn + 2, size, sn + 3))
    def trbase(dst, rowstride, colmul, tmp, gm=8):
        A("""v_lshrrev_b32 v{d}, 4, v0
v_mul_u32_u24 v{d}, {gm}, v{d}
v_bfe_u32 v{t}, v0, 2, 2
v_add_u32 v{d}, v{d}, v{t}
v_mul_u32_u24 v{d}, {rs}, v{d}
v_and_b32 v{t}, 3, v0
v_mul_u32_u24 v{t}, {cm}, v{t}
v_add_u32 v{d}, v{d}, v{t}""".format(d=dst, t=tmp, rs=rowstride, cm=colmul, gm=gm))
    def xsum(regs, tmp):
        for r in regs: A('v_add_f32_dpp v%d, v%d, v%d row_ror:8 row_mask:0xf bank_mask:0xf' % (r, r, r))
        for sw in ('v_permlane16_swap_b32', 'v_permlane32_swap_b32'):
            for i, r in enumerate(regs): A('v_mov_b32 v%d, v%d' % (tmp + i, r))
            if len(regs) < 3: A('s_nop 1')
            for i, r in enumerate(regs): A('%s v%d, v%d' % (sw, r, tmp + i))
            for i, r in enumerate(regs): A('v_add_f32 v%d, v%d, v%d' % (r, r, tmp + i))
    def round4(regs, tmp):
        a, b, c, d = regs
        A("""v_cvt_pk_bf16_f32 v{t0}, v{a}, v{b}
v_cvt_pk_bf16_f32 v{t1}, v{c}, v{d}
v_lshlrev_b32 v{a}, 16, v{t0}
v_and_b32 v{b}, s63, v{t0}
v_lshlrev_b32 v{c}, 16, v{t1}
v_and_b32 v{d}, s63, v{t1}""".format(a=a, b=b, c=c, d=d, t0=tmp, t1=tmp + 1))

    vQ = 4
    vMask = 8
    vT0, vU0, vX0 = 12, 14, 2
    vA = 16
    vAcc = 24
    vS0, vS1, vR, vT, vT2, vPK, vM, vMC, vL = 28, 29, 30, 31, 32, 33, 34, 35, 36
    vAddr, vSA, vTag = 37, 38, 39
    vKA, vKB, vVA, vVB = 40, 41, 42, 43
    vQM = 44
    RING = 60
    assert zg == 4
    assert D % 16 == 0 and n + q <= D and D % q == 0
    def rr(t):
        b = RING + (t % D) * 4
        return 'v[%d:%d]' % (b, b + 3)
    HALF = 2048
    TOT = 2 * HALF
    sec('stream')
    A("""L_S:
s_lshl_b32 s52, s2, 21
s_lshr_b32 s53, s2, 11
s_add_u32 s32, s6, s52
s_addc_u32 s33, s7, s53
s_mov_b32 s34, 0x200000
s_mov_b32 s35, 0x20000
s_add_u32 s36, s8, s52
s_addc_u32 s37, s9, s53
s_mov_b32 s38, 0x200000
s_mov_b32 s39, 0x20000
s_mov_b32 s54, 0
s_mov_b32 s53, 0
v_lshrrev_b32 v2, 4, v0
v_and_b32 v3, 3, v0
v_lshlrev_b32 v3, 4, v3
v_lshl_add_u32 v{QA}, v2, 6, v3
v_bfe_u32 v3, v0, 2, 2
v_lshl_add_u32 v{KA}, v3, 8, v{QA}
v_add_u32 v{KB}, {z}, v{KA}
v_and_b32 v3, 15, v0
v_lshlrev_b32 v3, 4, v3
v_lshl_add_u32 v{VA}, v2, 10, v3
v_add_u32 v{VB}, {z}, v{VA}
v_add_u32 v{QA}, {lq}, v{QA}""".format(QA=vS0, KA=vKA, KB=vKB, VA=vVA, VB=vVB, z=Z * 1024, lq=L_Q))
    st = {'issued': 0, 'landed': -1}
    info = {}
    def issue(t):
        sr, so = ('s[32:35]', 's54') if t < HALF else ('s[36:39]', 's53')
        r = t % (2 * zg)
        if t < HALF: A('buffer_load_dwordx4 %s, v%d, %s, %s offen offset:%d nt' % (rr(t), vKA if r < zg else vKB, sr, so, (r % zg) * 1024))
        else: A('buffer_load_dwordx4 %s, v%d, %s, %s offen offset:%d nt' % (rr(t), vVA if r < zg else vVB, sr, so, (r % zg) * 256))
        if r == 2 * zg - 1:
            A('s_add_u32 s68, %s, %d\ns_xor_b32 s69, s68, %s\ns_and_b32 s69, s69, %d\ns_add_u32 %s, s68, s69' % (so, zg * 1024, so, Z * 1024, so))
        st['issued'] = t + 1
    def wait_landed(t):
        c = st['issued'] - 1 - t
        assert 0 <= c < 63
        if t > st['landed']:
            A('s_waitcnt vmcnt(%d)' % c)
            st['landed'] = t
    def dpp(op, d, a, ctl, bank=0xf):
        A('%s_dpp v%d, v%d, v%d %s row_mask:0xf bank_mask:%s' % (op, d, a, a, ctl, hex(bank)))
    lane_of = lambda j: 4 * (j & 3) + (j >> 2)
    GPB = D // 16
    def sc_off(grp):
        return (grp % GPB) * 256
    def prepA(u):
        a = u % 8
        grp = u // 8
        if a == 0:
            A("""s_waitcnt lgkmcnt(0)
v_fma_f32 v{T}, v{R}, s55, -v{MC}
v_exp_f32 v{T}, v{T}""".format(T=vT, R=vR, MC=vMC))
            if grp + 1 < HALF // 16:
                if (grp + 1) % GPB == 0: A('v_add_u32 v%d, %d, v%d' % (vSA, GPB * 256, vSA))
                A('ds_read_b32 v%d, v%d offset:%d' % (vR, vSA, sc_off(grp + 1)))
            else:
                A('s_nop 0')
            A("""v_cvt_pk_bf16_f32 v{PK}, v{T}, v{T}
v_add_f32 v{Lr}, v{Lr}, v{T}
s_nop 0""".format(T=vT, PK=vPK, Lr=vL))
        for i in range(2):
            for k in range(4):
                A('v_and_b32_dpp v%d, v%d, v%d row_newbcast:%d row_mask:0xf bank_mask:0xf' % (vA + 4 * i + k, vPK, vMask + k, lane_of(2 * a + i)))
    def finish_l():
        for ctl in ('row_ror:8', 'row_ror:4', 'row_ror:2', 'row_ror:1'):
            dpp('v_add_f32', vL, vL, ctl); A('s_nop 1')
        A("""v_mov_b32 v{T}, v{Lr}
s_nop 1
v_permlane16_swap_b32 v{Lr}, v{T}
v_add_f32 v{Lr}, v{Lr}, v{T}
v_mov_b32 v{T}, v{Lr}
s_nop 1
v_permlane32_swap_b32 v{Lr}, v{T}
v_add_f32 v{Lr}, v{Lr}, v{T}
v_rcp_f32 v{Lr}, v{Lr}""".format(T=vT, Lr=vL))
    def pad_after_mfma(acc, need=8):
        have = 0
        for x in reversed(cur[0]):
            if x.startswith('v_mfma') and x.split()[1].startswith('v[%d:' % acc): break
            if x.endswith(':'):
                have += 1; break
            have += int(x.split()[1]) + 1 if x.startswith('s_nop') else 1
        if have < need: A('s_nop %d' % (need - have - 1))
    def post(c):
        acc = vA + 4 * (c & 1); a = c % 4
        x = vU0 + (a & 1)
        pad_after_mfma(acc)
        A('v_cndmask_b32 v%d, v%d, v%d, s[70:71]' % (vT0, acc, acc + 1))
        A('v_cndmask_b32 v%d, v%d, v%d, s[70:71]' % (vT0 + 1, acc + 2, acc + 3))
        A('v_cndmask_b32 v%d, v%d, v%d, s[72:73]' % (x, vT0, vT0 + 1))
        if a & 1:
            cc = a >> 1
            dpp('v_add_f32', vU0, vU0, 'quad_perm:[1,0,3,2]')
            A('s_nop 0')
            dpp('v_add_f32', vU0 + 1, vU0 + 1, 'quad_perm:[1,0,3,2]')
            A('v_cndmask_b32 v%d, v%d, v%d, s[70:71]' % (vX0 + cc, vU0, vU0 + 1))
            if cc:
                dpp('v_add_f32', vX0, vX0, 'quad_perm:[2,3,0,1]')
                A('s_nop 0')
                dpp('v_add_f32', vX0 + 1, vX0 + 1, 'quad_perm:[2,3,0,1]')
                grp = c // 4
                A('v_cndmask_b32 v%d, v%d, v%d, s[72:73]' % (vR, vX0, vX0 + 1))
                A('v_max_f32 v%d, v%d, v%d' % (vM, vM, vR))
                A('ds_write_b32 v%d, v%d offset:%d' % (vSA, vR, sc_off(grp)))
                if (grp + 1) % GPB == 0 and grp + 1 < HALF // 16: A('v_add_u32 v%d, %d, v%d' % (vSA, GPB * 256, vSA))
    def proc(u):
        t = 2 * u
        if t < HALF:
            if noproc & 1: return
            c = t // 4
            acc = vA + 4 * (c & 1)
            for i in range(2):
                j = (t + i) % 4
                A('v_mfma_f32_16x16x32_bf16 v[%d:%d], v[%d:%d], %s, %s' % (acc, acc + 3, vQM + 4 * j, vQM + 4 * j + 3, rr(t + i), '0' if j == 0 else 'v[%d:%d]' % (acc, acc + 3)))
            if t % 4 == 0 and c > 0: post(c - 1)
            if t + 2 == HALF: post(c)
            if t + 2 == HALF:
                A('v_subrev_u32 v%d, %d, v%d' % (vSA, ((HALF // 16 - 1) // GPB) * GPB * 256, vSA))
                A('ds_read_b32 v%d, v%d' % (vR, vSA))
                A('v_mov_b32 v%d, %d' % (vT0 + 1, L_CTL))
                for ctl in ('row_ror:8', 'row_ror:4', 'row_ror:2', 'row_ror:1'):
                    dpp('v_max_f32', vM, vM, ctl); A('s_nop 1')
                for sw in ('v_permlane16_swap_b32', 'v_permlane32_swap_b32'):
                    A('v_mov_b32 v{T}, v{M}\ns_nop 1\n{sw} v{M}, v{T}\nv_max_f32 v{M}, v{M}, v{T}'.format(T=vT, M=vM, sw=sw))
                A('v_mul_f32 v%d, s55, v%d\ns_barrier' % (vMC, vM))
                prepA(0)
        else:
            if noproc & 2: return
            if cur[0][-1].startswith('v_and'): A('s_nop 0')
            A('v_mfma_f32_16x16x32_bf16 v[%d:%d], v[%d:%d], %s, v[%d:%d]' % (vAcc, vAcc + 3, vA, vA + 3, rr(t), vAcc, vAcc + 3))
            A('v_mfma_f32_16x16x32_bf16 v[%d:%d], v[%d:%d], %s, v[%d:%d]' % (vAcc, vAcc + 3, vA + 4, vA + 7, rr(t + 1), vAcc, vAcc + 3))
            uu = u - HALF // 2
            if uu + 1 < HALF // 2: prepA(uu + 1)
            if uu + 1 == HALF // 2 - 8:
                pass
    win = [n]
    def paced_issue(cnt):
        for _ in range(cnt // q):
            t = st['issued']
            if t + q - 1 - win[0] >= 0:
                wait_landed(t + q - 1 - win[0])
            for i in range(q): issue(t + i)
    n0 = (n // q) * q
    def job_off(dst, jreg, rowbytes, bits=0):
        if bits:
            A('''s_and_b32 s68, {j}, {m}
s_lshr_b32 s69, {j}, {b}
s_mul_i32 {d}, s68, {rb}
s_lshl_b32 s69, s69, 7
s_add_u32 {d}, {d}, s69'''.format(j=jreg, d=dst, rb=rowbytes, m=(1 << bits) - 1, b=bits))
            return
        A('''s_mul_i32 s68, {j}, 7282
s_lshr_b32 s68, s68, 16
s_mul_i32 s69, s68, 9
s_sub_u32 s69, {j}, s69
s_mul_i32 {d}, s68, {rb}
s_lshl_b32 s69, s69, 7
s_add_u32 {d}, {d}, s69'''.format(j=jreg, d=dst, rb=rowbytes))
    def side_dma(cnt, sr, so, step, ldsreg, vreg):
        for i in range(cnt):
            A('s_mov_b32 m0, %d\ns_waitcnt vmcnt(%d)\nbuffer_load_dwordx4 %s, %s, %s offen nt lds\ns_add_u32 %s, %s, %s' % (ldsreg + i * 1024, w0 - 1, vreg, sr, so, so, so, step))
    A('''v_lshrrev_b32 v4, 3, v0
v_and_b32 v5, 7, v0
v_lshlrev_b32 v5, 4, v5
v_mul_u32_u24 v6, 1152, v4
v_add_u32 v6, v6, v5
v_mul_u32_u24 v7, 9216, v4
v_add_u32 v7, v7, v5''')
    srd(44, 12, 4096 * 1152)
    A('''s_and_b32 s68, s2, 7
s_bfe_u32 s69, s2, 0x10003
s_lshl_b32 s69, s69, 4
s_add_u32 s68, s68, s69
s_mul_i32 s75, s68, 147456
s_lshr_b32 s69, s2, 4
s_lshl_b32 s69, s69, 7
s_add_u32 s75, s75, s69
s_add_u32 s77, s75, 1179648
s_mov_b32 s78, %d''' % L_QW)
    A('''s_cmp_ge_u32 s2, 184
s_cbranch_scc1 L_S_down
s_cmp_lt_u32 s2, 40
s_cbranch_scc1 L_S_light
s_cmp_lt_u32 s2, 112
s_cselect_b32 s40, s16, s18
s_cselect_b32 s41, s17, s19
s_cselect_b32 s74, 40, 112
s_mov_b32 s42, 5308416
s_mov_b32 s43, 0x20000
s_sub_u32 s74, s2, s74
s_lshl_b32 s74, s74, 7
s_mov_b32 s76, 73728
s_branch L_S_big
L_S_down:
s_sub_u32 s74, s2, 184''')
    job_off('s74', 's74', 663552, 3 if rm & 2 else 0)
    srd(40, 20, 4608 * 1152)
    A('''s_mov_b32 s76, 9216
v_mov_b32 v7, v6
L_S_big:''')
    if b0: A('s_barrier')
    if sm & 4: side_dma(72, 's[40:43]', 's74', 's76', L_W, 'v7')
    A('s_cmp_ge_u32 s2, 144\ns_cbranch_scc1 L_S_k\ns_branch L_S_wo\nL_S_light:\ns_mov_b32 s78, %d' % L_W)
    if b0: A('s_barrier')
    A('L_S_wo:')
    if sm & 2:
        for i in range(32):
            so = 's75' if i < 16 else 's77'
            A('s_add_u32 m0, s78, %d\ns_waitcnt vmcnt(%d)\nbuffer_load_dwordx4 v6, s[44:47], %s offen nt lds\ns_add_u32 %s, %s, 9216' % (i * 1024, w0 - 1, so, so, so))
    A('L_S_k:')
    for t in range(n0):
        A('s_waitcnt vmcnt(%d)' % (max(w0, n0) - 1))
        issue(t)
    A("""v_and_b32 v{T}, 1, v0
v_lshlrev_b32 v{T}, 4, v{T}
v_mov_b32 v{T2}, 0xffff
v_lshlrev_b32 v{T2}, v{T}, v{T2}
v_bfe_u32 v{T}, v0, 1, 3""".format(T=vT, T2=vT2))
    for j in range(4):
        A('v_cmp_eq_u32 vcc, %d, v%d\ns_nop 1\nv_cndmask_b32 v%d, 0, v%d, vcc' % (j, vT, vMask + j, vT2))
    epoch(vTag)
    A("""v_mov_b32 v{M}, 0xff800000
v_mov_b32 v{Lr}, 0
v_mov_b32 v{a0}, 0
v_mov_b32 v{a1}, 0
v_mov_b32 v{a2}, 0
v_mov_b32 v{a3}, 0
s_mov_b32 s55, {csc}
s_mov_b32 s70, 0xaaaaaaaa
s_mov_b32 s71, 0xaaaaaaaa
s_mov_b32 s72, 0xcccccccc
s_mov_b32 s73, 0xcccccccc
v_and_b32 v{T}, 15, v0
v_lshlrev_b32 v{T}, 4, v{T}
v_and_b32 v{T2}, 16, v0
v_lshl_add_u32 v{Ad}, v{T}, 1, v{T2}
s_lshl_b32 s57, s31, 3
s_add_u32 s57, s57, s30
s_lshl_b32 s57, s57, 9
s_add_u32 s57, s57, {orec}
s_mov_b32 s63, 0xffff0000
s_mov_b32 s58, {lsc}
v_lshl_add_u32 v{SA}, v0, 2, s58""".format(M=vM, Lr=vL, a0=vAcc, a1=vAcc + 1, a2=vAcc + 2, a3=vAcc + 3, csc=hex(CSC), T=vT, T2=vT2,
                              Ad=vAddr, SA=vSA, lsc=L_SC, orec=OREC))
    paced_issue(D - n0 - ((D - n0) & 1))
    A('s_barrier')
    A('ds_read_b128 v[%d:%d], v%d\nv_bfe_u32 v%d, v0, 2, 2' % (vQ, vQ + 3, vS0, vT))
    for j in range(4): A('v_cmp_eq_u32 s[%d:%d], %d, v%d' % (76 + 2 * j, 77 + 2 * j, j, vT))
    A('s_waitcnt lgkmcnt(0)')
    for j in range(4):
        for i in range(4): A('v_cndmask_b32 v%d, 0, v%d, s[%d:%d]' % (vQM + 4 * j + i, vQ + i, 76 + 2 * j, 77 + 2 * j))
    A('s_nop 0')
    done = [0]
    extra = [0]
    def do_proc():
        u = done[0]
        wait_landed(2 * u + 1)
        proc(u)
        done[0] += 1
    if not na: na = n0
    assert na >= n0 and (na - n0) % 2 == 0 and na + 2 <= D and nend <= na
    target_ahead = 2 + na
    k1 = n0 // 2 if D > target_ahead else 0
    for _ in range(k1):
        do_proc(); paced_issue(2)
    while st['issued'] - 2 * done[0] > target_ahead - 2:
        if st['issued'] - 2 * done[0] >= target_ahead + 2:
            do_proc(); do_proc(); paced_issue(2)
        else:
            do_proc()
    def steady():
        paced_issue(2); do_proc()
    def loop(name, limit):
        while (2 * done[0]) % D != 0: steady()
        niter = (limit - st['issued']) // D
        assert niter >= 2
        st['landed'] = 2 * done[0] - 1
        A('s_mov_b32 s58, %d\n%s:' % (niter, name))
        for _ in range(D // 2): steady()
        A('''s_sub_u32 s58, s58, 1
s_cmp_eq_u32 s58, %d
s_cbranch_scc1 L_midC
L_midCback:
s_cmp_lg_u32 s58, 0
s_cbranch_scc1 %s''' % (niter * 3 // 5, name))
        st['issued'] += (niter - 1) * D
        st['landed'] += (niter - 1) * D
        done[0] += (niter - 1) * (D // 2)
    loop('L_loopK', HALF)
    while 2 * done[0] < HALF or (2 * done[0] - HALF) % D != 0: steady()
    assert HALF % D == 0 or True
    loop2_base = done[0]
    niter = (TOT - D - st['issued']) // D
    nit2 = kend // D if nend else 0
    niter -= nit2
    cps = [niter - niter * p // 100 for p in (pB, pC, pD) if p]
    info['cntA'], info['cps'] = niter, cps
    A('s_mov_b32 s58, %d\ns_mov_b32 s75, %d\ns_and_b32 s74, s75, 0xff' % (niter, sum(c << (8 * i) for i, c in enumerate(cps)) | (0xff << (8 * len(cps))) & 0xffffffff))
    variants = [('L_loopV', n)] + ([('L_loopVf', nf), ('L_loopVs', ns)] if ctl else [])
    assert not ctl or nf <= na
    snap = (dict(st), done[0])
    for vi, (name, w) in enumerate(variants):
        st.update(snap[0]); done[0] = snap[1]
        st['landed'] = 2 * done[0] - 1
        win[0] = w
        if vi: sec('stream2')
        A(name + ':')
        if ctl: A('ds_read_b32 v%d, v%d' % (vT2, vT0 + 1))
        for _ in range(D // 2): steady()
        if vi: A('s_branch L_Vdisp')
    win[0] = n
    sec('stream')
    A("""L_Vdisp:
s_sub_u32 s58, s58, 1
s_cmp_eq_u32 s58, s74
s_cbranch_scc1 L_midB
L_midBback:""")
    if ctl:
        A("""v_readfirstlane_b32 s60, v{c}
s_cmp_eq_u32 s58, 0
s_cbranch_scc1 L_Vexit
s_lshr_b32 s61, s60, 2
s_cmp_gt_u32 s58, s61
s_cselect_b32 s60, s60, 0
s_bitcmp1_b32 s60, 0
s_cbranch_scc1 L_loopVf
s_bitcmp1_b32 s60, 1
s_cbranch_scc1 L_loopVs
s_branch L_loopV
L_Vexit:""".format(c=vT2))
    else:
        A('s_cmp_lg_u32 s58, 0\ns_cbranch_scc1 L_loopV')
    st['issued'] += (niter - 1) * D
    st['landed'] += (niter - 1) * D
    done[0] += (niter - 1) * (D // 2)
    st['landed'] = 2 * done[0] - 1
    if nend: win[0] = nend
    if nit2:
        st['landed'] = 2 * done[0] - 1
        A('s_mov_b32 s58, %d\nL_loopV2:' % nit2)
        for _ in range(D // 2): steady()
        A('s_sub_u32 s58, s58, 1\ns_cmp_lg_u32 s58, 0\ns_cbranch_scc1 L_loopV2')
        st['issued'] += (nit2 - 1) * D
        st['landed'] += (nit2 - 1) * D
        done[0] += (nit2 - 1) * (D // 2)
    while st['issued'] < TOT: steady()
    ml_done = False
    while done[0] < TOT // 2:
        if not ml_done and done[0] + 1 >= TOT // 2 - 8 + 1:
            finish_l(); ml_done = True
        do_proc()
    A("""s_mov_b32 exec_hi, 0
s_nop 6
v_mul_f32 v4, v{a0}, v{Lr}
v_mul_f32 v5, v{a1}, v{Lr}
v_mul_f32 v6, v{a2}, v{Lr}
v_mul_f32 v7, v{a3}, v{Lr}
v_cvt_pk_bf16_f32 v2, v4, v5
v_cvt_pk_bf16_f32 v3, v6, v7
v_lshl_or_b32 v4, v2, 16, v{tg}
v_and_or_b32 v5, v2, s63, v{tg}
v_lshl_or_b32 v6, v3, 16, v{tg}
v_and_or_b32 v7, v3, s63, v{tg}
buffer_store_dwordx4 v[4:7], v{Ad}, s[48:51], s57 offen sc1
s_barrier""".format(a0=vAcc, a1=vAcc + 1, a2=vAcc + 2, a3=vAcc + 3, Ad=vAddr, Lr=vL, tg=vTag))
    if diag:
        A('s_mov_b64 exec, -1')
        stamp(3)
    A('s_endpgm')
    A('L_midB:' + ('\ns_memrealtime s[94:95]' if diag == 5 else '') + '\ns_barrier\ns_lshr_b32 s75, s75, 8\ns_and_b32 s74, s75, 0xff\ns_branch L_midBback')
    A('L_midC:' + ('\ns_memrealtime s[96:97]' if diag == 5 else '') + '\ns_barrier\ns_branch L_midCback')

    XF = 72
    AC = 16
    AC2 = 32
    FR = 144
    PUB = 64
    def ha_setup1():
        srd(36, 4, 9216)
        A("""v_and_b32 v5, 7, v0
v_mul_u32_u24 v9, 1152, v5
v_lshrrev_b32 v8, 4, v0
v_lshl_add_u32 v9, v8, 4, v9""")
    def ha_setup2():
        trbase(6, 128, 16, 10)
        A("""v_and_b32 v10, 8, v0
v_lshlrev_b32 v12, 1, v10
v_lshl_add_u32 v12, v8, 5, v12
v_cmp_ne_u32 s[66:67], 0, v10""")
        epoch()
    def wdma(ldsoff, step, sr='s[32:35]', so='s54'):
        A('s_mov_b32 m0, %d\ns_nop 0\nbuffer_load_dwordx4 v4, %s, %s offen nt lds\ns_add_u32 %s, %s, %s' % (ldsoff, sr, so, so, so, step))
    def w_reads(ks, base, koff, hfs=512):
        b = FR + (ks % 2) * 16
        for nt in range(4):
            for hf in range(2):
                off = koff * 4096 + hf * hfs + (nt >> 1) * 64 + (nt & 1) * 8
                r = b + nt * 4 + hf * 2
                A('ds_read_b64_tr_b16 v[%d:%d], v%d offset:%d' % (r, r + 1, base, off))
    def w_mfma(ks, acc, xreg, first):
        b = FR + (ks % 2) * 16
        for nt in range(4):
            A('v_mfma_f32_16x16x32_bf16 v[%d:%d], v[%d:%d], v[%d:%d], %s' % (acc + nt * 4, acc + nt * 4 + 3, b + nt * 4, b + 3 + nt * 4, xreg, xreg + 3,
              '0' if first else 'v[%d:%d]' % (acc + nt * 4, acc + nt * 4 + 3)))
    def select8(dst, acc):
        for i in range(2):
            for e in range(4):
                A('v_cndmask_b32 v%d, v%d, v%d, s[66:67]' % (dst + 4 * i + e, acc + 8 * i + e, acc + 8 * i + 4 + e))
    def publish(linestride):
        for i in range(2):
            A('buffer_store_dwordx4 v[%d:%d], v11, s[48:51], s57 offen offset:%d sc1' % (PUB + 4 * i, PUB + 3 + 4 * i, i * linestride))
    def publish_f32(linestride):
        A('s_nop 6')
        select8(PUB, AC)
        for i in range(8): A('v_bfi_b32 v%d, s59, v%d, v62' % (PUB + i, PUB + i))
        publish(linestride)

    sec('haq')
    A('L_HA:')
    if prio: A('s_setprio %d' % prio)
    A('s_sub_u32 s52, s2, 16\ns_cmp_lt_u32 s52, 128\ns_cbranch_scc1 L_HA_noq')
    srd(32, 10, 576 * 8192)
    ha_setup1()
    A("""s_add_u32 s52, s2, 112
s_and_b32 s52, s52, 0xff
s_lshr_b32 s53, s52, 6
s_and_b32 s52, s52, 63
s_mul_i32 s54, s53, 2359296
s_lshl_b32 s55, s52, 7
s_add_u32 s54, s54, s55
s_mul_i32 s56, s53, 576
v_lshrrev_b32 v4, 3, v0
v_lshlrev_b32 v4, 13, v4
v_lshl_add_u32 v4, v5, 4, v4""")
    for ks in range(9):
        A('buffer_load_dwordx4 v[%d:%d], v9, s[36:39], s56 offen offset:%d' % (XF + 4 * ks, XF + 4 * ks + 3, ks * 64))
    for i in range(36):
        wdma(L_QW + i * 1024, '65536')
        if b0 and i == b0q: A('s_barrier')
    ha_setup2()
    A("""v_lshlrev_b32 v11, 15, v5
v_add_u32 v11, v11, v12
s_lshl_b32 s57, s52, 1
s_add_u32 s57, s57, s53
s_lshl_b32 s57, s57, 8
s_add_u32 s57, s57, %d
s_waitcnt vmcnt(32)""" % QP)
    w_reads(0, 6, 0)
    for ks in range(9):
        if ks + 1 < 9:
            A('s_waitcnt vmcnt(%d)' % (28 - 4 * ks))
            w_reads(ks + 1, 6, ks + 1)
            A('s_waitcnt lgkmcnt(8)')
        else:
            A('s_waitcnt lgkmcnt(0)')
        w_mfma(ks, AC, XF + 4 * ks, ks == 0)
    publish_f32(128)
    if qgate: A('v_mov_b32 v2, %d\nv_mov_b32 v3, 1\nds_write_b32 v2, v3' % (L_CTL + 4))
    stamp(5)
    A('s_branch L_HA2')

    sec('ha2')
    def xloads():
        for ks in range(18):
            if ks >= wa: A('s_waitcnt vmcnt(%d)' % (wa - 1))
            A('buffer_load_dwordx4 v[%d:%d], v9, s[36:39], 0 offen offset:%d' % (XF + 4 * ks, XF + 4 * ks + 3, ks * 64))
    A("""L_HA_noq:
s_setprio 0""")
    ha_setup1()
    if b0: A('s_barrier')
    ha_setup2()
    A('s_cmp_lt_u32 s2, 40\ns_cbranch_scc1 L_HA_idle')
    xloads()
    A('s_waitcnt vmcnt(0)')
    if qgate: A('v_mov_b32 v2, %d\nv_mov_b32 v3, 1\nds_write_b32 v2, v3' % (L_CTL + 4))
    A('s_barrier')
    if not sm & 8: A('s_endpgm')
    A("""s_branch L_FFN1x
L_HA_idle:
s_barrier
s_endpgm
L_HA2:
s_setprio 0
s_barrier""")
    if not sm & 8: A('s_endpgm')
    A("""s_cmp_ge_u32 s2, 184
s_cbranch_scc1 L_FFN2
s_cmp_lt_u32 s2, 40
s_cbranch_scc1 L_end""")
    xloads()
    A('L_FFN1x:')
    A("""v_add_u32 v6, {lw}, v6
v_add_u32 v7, 36864, v6
v_mul_u32_u24 v11, 18432, v5
v_add_u32 v11, v11, v12
s_cmp_lt_u32 s2, 112
s_cselect_b32 s52, 40, 112
s_sub_u32 s52, s2, s52
s_lshl_b32 s52, s52, 8
s_add_u32 s57, s52, {preg}
s_waitcnt vmcnt(0)""".format(lw=L_W, preg=PREG))
    w_reads(0, 6, 0)
    for ks in range(18):
        if ks + 1 < 18:
            w_reads(ks + 1, 6 if ks + 1 < 9 else 7, (ks + 1) % 9)
            A('s_waitcnt lgkmcnt(8)')
        else:
            A('s_waitcnt lgkmcnt(0)')
        w_mfma(ks, AC, XF + 4 * ks, ks == 0)
    A('s_cmp_ge_u32 s2, 112\ns_cbranch_scc1 L_UP')
    publish_f32(128)
    stamp(9)
    A('s_barrier\ns_branch L_FIN')
    A("""L_UP:
s_mov_b32 s58, {nl}
s_mov_b32 s63, 0xffff0000
s_nop 3""".format(nl=hex(NLOG2E)))
    select8(PUB, AC)
    for i in range(2): round4([PUB + 4 * i + e for e in range(4)], 56)
    A('s_barrier')
    poll_tag(['buffer_load_dwordx4 v[%d:%d], v11, s[48:51], s57 offen offset:%d %s' % (48 + 4 * i, 51 + 4 * i, i * 128, MF) for i in range(2)],
             range(48, 56), slp)
    for e in range(8): A('v_and_b32 v%d, s59, v%d' % (48 + e, 48 + e))
    for i in range(2): round4([48 + 4 * i + e for e in range(4)], 56)
    for e in range(8): A('v_mul_f32 v%d, s58, v%d' % (16 + e, 48 + e))
    for e in range(8): A('v_exp_f32 v%d, v%d' % (16 + e, 16 + e))
    for e in range(8): A('v_add_f32 v%d, 1.0, v%d' % (16 + e, 16 + e))
    for e in range(8): A('v_rcp_f32 v%d, v%d' % (16 + e, 16 + e))
    for e in range(8): A('v_mul_f32 v%d, v%d, v%d' % (48 + e, 48 + e, 16 + e))
    for i in range(2): round4([48 + 4 * i + e for e in range(4)], 56)
    for e in range(8): A('v_mul_f32 v%d, v%d, v%d' % (PUB + e, PUB + e, 48 + e))
    for i in range(2): round4([PUB + 4 * i + e for e in range(4)], 56)
    for e in range(8): A('v_or_b32 v%d, v%d, v62' % (PUB + e, PUB + e))
    A('s_add_u32 s57, s52, %d' % HM)
    publish(128)
    stamp(9)
    A('s_branch L_FIN')

    A('L_FFN2:')
    trbase(6, 128, 16, 10, 4)
    if rm & 2: A('s_sub_u32 s53, s2, 184\ns_and_b32 s52, s53, 7\ns_lshr_b32 s53, s53, 3')
    else: A('s_sub_u32 s53, s2, 184\ns_mul_i32 s52, s53, 7282\ns_lshr_b32 s52, s52, 16\ns_mul_i32 s54, s52, 9\ns_sub_u32 s53, s53, s54')
    A("""v_add_u32 v6, {lw}, v6
v_add_u32 v7, 36864, v6
v_mul_u32_u24 v9, 18432, v5
v_lshl_add_u32 v9, v8, 4, v9
v_and_b32 v10, 8, v0
v_lshl_add_u32 v9, v10, 3, v9
s_mul_i32 s56, s52, 2304
s_add_u32 s56, s56, {hm}
s_mov_b32 s58, 0x07060302
v_mul_u32_u24 v11, 18432, v5
v_add_u32 v11, v11, v12
s_lshl_b32 s57, s53, 11
s_lshl_b32 s63, s52, 7
s_add_u32 s57, s57, s63
s_add_u32 s57, s57, {fin}
s_barrier
s_barrier""".format(lw=L_W, hm=HM, fin=FIN))
    def pack_frags(raw, cnt, sel):
        for k in range(cnt):
            r = raw + 4 * k
            A('v_perm_b32 v%d, v%d, v%d, %s\nv_perm_b32 v%d, v%d, v%d, %s' % (r, r + 1, r, sel, r + 1, r + 3, r + 2, sel))
        for k in range(cnt):
            r = raw + 4 * k
            for t in range(2):
                A('v_mov_b32_dpp v%d, v%d row_ror:8 row_mask:0xf bank_mask:0xf' % (r + 2 + t, r + t))
    def spread8(acc):
        for i in range(2):
            for e in range(4):
                A('v_mov_b32_dpp v%d, v%d row_ror:8 row_mask:0xf bank_mask:0xc' % (acc + 8 * i + e, acc + 8 * i + 4 + e))
    poll_tag(['buffer_load_dwordx4 v[%d:%d], v9, s[48:51], s56 offen offset:%d %s' % (XF + 4 * k, XF + 4 * k + 3, k * 128, MF) for k in range(18)],
             range(XF, XF + 72), slp)
    pack_frags(XF, 18, 's58')
    w_reads(0, 6, 0, 2048)
    for k in range(18):
        if k + 1 < 18:
            w_reads(k + 1, 6 if k + 1 < 9 else 7, (k + 1) % 9, 2048)
            A('s_waitcnt lgkmcnt(8)')
        else:
            A('s_waitcnt lgkmcnt(0)')
        w_mfma(k, AC, XF + 4 * k, k == 0)
    A('s_nop 7')
    spread8(AC)
    for i in range(2):
        for e in range(4): A('v_bfi_b32 v%d, s59, v%d, v62' % (PUB + 4 * i + e, AC + 8 * i + e))
    publish(1024)
    stamp(9)
    A('s_endpgm')

    sec('hbq')
    A('L_HB:')
    if prio: A('s_setprio %d' % prio)
    A("""v_bfe_u32 v6, v0, 3, 1
v_lshlrev_b32 v6, 9, v6
v_bfe_u32 v7, v0, 4, 1
v_lshl_add_u32 v6, v7, 8, v6
v_and_b32 v5, 7, v0
v_lshl_add_u32 v6, v5, 5, v6
v_lshrrev_b32 v7, 5, v0
v_lshl_add_u32 v6, v7, 4, v6
s_lshl_b32 s56, s30, 6
s_lshl_b32 s57, s31, 1
s_add_u32 s56, s56, s57
s_lshl_b32 s56, s56, 9
s_add_u32 s56, s56, {qp}
v_and_b32 v5, 15, v0
v_lshlrev_b32 v5, 4, v5
v_lshl_add_u32 v5, v7, 3, v5
v_add_u32 v4, {lq}, v5""".format(qp=QP, lq=L_Q))
    if qgate: A('v_mov_b32 v2, %d\nv_mov_b32 v3, 0\nds_write_b32 v2, v3' % (L_CTL + 4))
    epoch()
    if b0: A('s_barrier')
    if qgate:
        A("""s_sub_u32 s62, s2, 16
s_cmp_lt_u32 s62, 24
s_cbranch_scc1 L_qg3
L_qg:
s_sleep 1
ds_read_b32 v3, v2
s_waitcnt lgkmcnt(0)
v_readfirstlane_b32 s62, v3
s_cmp_eq_u32 s62, 0
s_cbranch_scc1 L_qg
L_qg3:""")
    poll_tag(['buffer_load_dwordx4 v[16:19], v6, s[48:51], s56 offen %s' % QF], range(16, 20), qslp)
    stamp(12)
    for i in range(4): A('v_and_b32 v%d, s59, v%d' % (32 + i, 16 + i))
    for i in range(4): A('v_mov_b32 v%d, v%d' % (40 + i, 32 + i))
    for i in range(4): A('v_permlane16_swap_b32 v%d, v%d' % (32 + i, 40 + i))
    for i in range(4): A('v_add_f32 v%d, v%d, v%d' % (32 + i, 32 + i, 40 + i))
    for i in range(2): A('v_cvt_pk_bf16_f32 v%d, v%d, v%d' % (8 + i, 32 + 2 * i, 33 + 2 * i))
    if ctl: A('v_mov_b32 v2, %d\nv_mov_b32 v3, 0\nds_write_b32 v2, v3' % L_CTL)
    A("""ds_write_b64 v4, v[8:9]
s_waitcnt lgkmcnt(0)
s_barrier
s_branch L_HB2""")
    sec('hb2')
    A('L_HB2:\ns_setprio 0')
    stamp(2)
    if ck == 1:
        A('''s_cmp_ge_u32 s2, 32
s_cbranch_scc1 L_nozero
s_mul_i32 s40, s2, %d
s_add_u32 s40, s40, %d
v_mov_b32 v2, 0
s_mov_b64 exec, 1
buffer_store_dword v2, v2, s[48:51], s40 offen sc1
s_mov_b64 exec, -1
L_nozero:''' % (rks, RK))
    WF = 64
    OF = 192
    FB = 164
    YA = 44
    A("""v_lshrrev_b32 v8, 4, v0
v_and_b32 v11, 8, v0
v_lshlrev_b32 v11, 3, v11
v_lshl_add_u32 v11, v8, 4, v11
v_and_b32 v10, 7, v0
v_lshl_add_u32 v12, v10, 9, v11
v_mul_u32_u24 v14, {bs}, v10
v_add_u32 v14, v14, v11
s_and_b32 s68, s2, 7
s_bfe_u32 s69, s2, 0x10003
s_lshl_b32 s69, s69, 4
s_add_u32 s68, s68, s69
s_lshl_b32 s72, s68, 12
s_add_u32 s72, s72, {orec}
s_add_u32 s73, s72, 32768
s_lshr_b32 s74, s2, 4
s_lshl_b32 s74, s74, 12
s_and_b32 s75, s2, 15
s_lshl_b32 s75, s75, 7
s_add_u32 s74, s74, s75
s_add_u32 s74, s74, {yin}
s_mov_b32 s71, 0x07060302
""".format(orec=OREC, bs=18 * 2048, yin=YIN))
    A("""s_cmp_ge_u32 s2, 144
s_cbranch_scc1 L_HB3
s_cmp_lt_u32 s2, 40
s_cselect_b32 s65, {lw}, {lqw}""".format(lw=L_W, lqw=L_QW).replace(', 0', ', 0'))
    trbase(6, 128, 8, 7, 4)
    A('v_add_u32 v6, s65, v6')
    for nt in range(4):
        for ks in range(8):
            for hf in range(2):
                r = WF + (nt * 8 + ks) * 4 + hf * 2
                A('ds_read_b64_tr_b16 v[%d:%d], v6 offset:%d' % (r, r + 1, ks * 4096 + hf * 2048 + nt * 32))
            if ks % 4 == 3: A('s_waitcnt lgkmcnt(0)')
    A('L_HB3:\ns_barrier\ns_barrier')
    def checkpoint(k, cnt, gf, gs):
        if not ctl or gf < 0: return
        lab_ = newlab('L_nock')
        core = '''s_and_b32 s41, s2, 7
s_lshr_b32 s42, s2, 6
s_lshl_b32 s42, s42, 3
s_add_u32 s41, s41, s42
v_lshlrev_b32 v2, 2, v0
v_mov_b32 v3, s89
s_lshl_b64 s[42:43], 1, s41
s_mov_b32 exec_hi, 0
buffer_load_dword v4, v2, s[48:51], s40 offen sc1
s_mov_b64 exec, s[42:43]
buffer_store_dword v3, v2, s[48:51], s40 offen sc1
s_mov_b32 exec_lo, -1
s_waitcnt vmcnt(1)
v_cmp_eq_u32 vcc, s89, v4
s_mov_b64 exec, -1
s_mov_b32 s41, {gf}
s_mov_b32 s42, {gs}
s_bcnt1_i32_b32 s40, vcc_lo
''' if ck == 0 else '''s_add_u32 s42, s28, s40
s_addc_u32 s43, s29, 0
s_mov_b32 s40, 1
s_atomic_add s40, s[42:43], 0 glc
s_waitcnt lgkmcnt(0)
s_min_u32 s40, s40, 31
s_mov_b32 s41, {gf}
s_mov_b32 s42, {gs}
''' if ck == 1 else '''s_mov_b32 s40, 16
s_mov_b32 s41, {gf}
s_mov_b32 s42, {gs}
'''
        A("""s_bfe_u32 s40, s2, 0x30003
s_mul_i32 s40, s40, {rs}
s_add_u32 s40, s40, {rk}
{core}v_cvt_f32_u32 v2, s40
v_mul_f32 v2, {r16}, v2
v_add_f32 v2, {b0}, v2
v_mul_f32 v3, v2, v2
v_mul_f32 v4, v3, v3
v_mul_f32 v4, v4, v4
v_mul_f32 v4, {c9}, v4
v_fmac_f32 v4, 0.5, v3
v_add_f32 v4, {c1}, v4
v_mul_f32 v2, v2, v4
s_cmp_ge_u32 s40, 16
s_cselect_b32 s41, s41, s42
s_cselect_b32 s43, 1, 2
v_fma_f32 v2, abs(v2), s41, 0.5
v_cvt_u32_f32 v2, v2
s_nop 0
v_readfirstlane_b32 s44, v2
s_sub_u32 s45, {c0}, s44
s_max_i32 s45, s45, 0
s_lshl_b32 s45, s45, 2
s_or_b32 s45, s45, s43
s_cmp_eq_u32 s44, 0
s_cselect_b32 s45, 0, s45
v_mov_b32 v2, {lctl}
v_mov_b32 v3, s45
ds_write_b32 v2, v3
{lab}:""".format(core=core.format(gf=hex(f2u(gf / 10)), gs=hex(f2u(gs / 10))), lab=lab_, rk=RK + k * 8 * rks, rs=rks, gf=hex(f2u(gf / 10)), gs=hex(f2u(gs / 10)), r16=hex(f2u(1 / 16)), b0=hex(f2u(-15.5 / 16)),
           c9=hex(f2u(0.6)), c1=hex(f2u(1.2)), c0=cnt - 2, lctl=L_CTL))
    checkpoint(0, info['cntA'], gA, gAs)
    stamp(14)
    for k, (g1, g2) in enumerate(((gB, gBs), (gC, gCs), (gD, gDs))[:len(info['cps'])]):
        A('s_barrier')
        checkpoint(1 + k, info['cps'][k], g1, g2)
    A('s_cmp_ge_u32 s2, 144\ns_cbranch_scc1 L_end')
    if prio: A('s_setprio %d' % prio)
    A('s_barrier')
    if not sm & 64: A('s_endpgm')
    poll_tag(['buffer_load_dwordx4 v[%d:%d], v12, s[48:51], %s offen offset:%d %s' % (OF + 4 * ks, OF + 4 * ks + 3, 's72' if ks < 4 else 's73', (ks % 4) * 128, TF) for ks in range(8)],
             range(OF, OF + 32), tslp)
    if b3 == 2: A('s_barrier')
    for half in range(2):
        pack_frags(OF + 16 * half, 4, 's71')
        for ks in range(4 * half, 4 * half + 4):
            for nt in range(4):
                r = WF + (nt * 8 + ks) * 4
                A('v_mfma_f32_16x16x32_bf16 v[%d:%d], v[%d:%d], v[%d:%d], %s' % (YA + nt * 4, YA + nt * 4 + 3, r, r + 3, OF + ks * 4, OF + 3 + ks * 4, '0' if ks == 0 else 'v[%d:%d]' % (YA + nt * 4, YA + nt * 4 + 3)))
    A('s_nop 5')
    for i in range(2):
        for e in range(4):
            A('v_mov_b32_dpp v%d, v%d row_ror:8 row_mask:0xf bank_mask:0xc' % (YA + 8 * i + e, YA + 8 * i + 4 + e))
        for e in range(4):
            A('v_bfi_b32 v%d, s59, v%d, v62' % (YA + 8 * i + e, YA + 8 * i + e))
        A('buffer_store_dwordx4 v[%d:%d], v14, s[48:51], s74 offen offset:%d sc1' % (YA + 8 * i, YA + 8 * i + 3, i * 2048))
    if b3 == 1: A('s_barrier')
    stamp(4)
    A('s_endpgm')

    A("""L_FIN:
s_sub_u32 s64, s2, 40
s_mul_i32 s76, s64, 3641
s_lshr_b32 s76, s76, 16
s_mul_i32 s77, s76, 18
s_sub_u32 s77, s64, s77
s_mul_i32 s56, s76, 1152
s_add_u32 s57, s56, 1152
s_mov_b32 s63, 0xffff0000""")
    if not sm & 32: A('s_endpgm')
    srd(32, 4, 's57')
    srd(36, 22, 1152)
    A("""v_lshlrev_b32 v5, 5, v0
v_lshlrev_b32 v15, 3, v0
buffer_load_dwordx4 v[16:19], v5, s[32:35], s56 offen
buffer_load_dwordx4 v[20:23], v5, s[32:35], s56 offen offset:16
buffer_load_dwordx4 v[24:27], v5, s[36:39], 0 offen
buffer_load_dwordx4 v[28:31], v5, s[36:39], 0 offen offset:16
s_mov_b32 s58, 0x3f803f80
v_mov_b32 v32, 0
s_waitcnt vmcnt(0)""")
    for r in range(8):
        A("""v_lshlrev_b32 v34, 16, v{x}
v_and_b32 v35, s63, v{x}
v_lshlrev_b32 v36, 16, v{w}
v_and_b32 v37, s63, v{w}
v_mul_f32 v34, v34, v36
v_mul_f32 v35, v35, v37
v_cvt_pk_bf16_f32 v34, v34, v35
v_dot2_f32_bf16 v32, v34, s58, v32""".format(x=16 + r, w=24 + r))
    A("""s_nop 2
v_add_f32_dpp v32, v32, v32 quad_perm:[1,0,3,2] row_mask:0xf bank_mask:0xf
s_nop 1
v_add_f32_dpp v32, v32, v32 quad_perm:[2,3,0,1] row_mask:0xf bank_mask:0xf
s_nop 1
v_add_f32_dpp v32, v32, v32 row_half_mirror row_mask:0xf bank_mask:0xf
s_nop 1""")
    xsum([32], 34)
    A("""v_cvt_pk_bf16_f32 v32, v32, v32
v_and_b32 v32, s63, v32
v_mul_f32 v32, {nl2e}, v32
v_exp_f32 v32, v32
s_nop 0
v_add_f32 v32, 1.0, v32
v_rcp_f32 v32, v32
s_nop 0
v_cvt_pk_bf16_f32 v32, v32, v32
v_and_b32 v{g}, s63, v32
v_sub_f32 v33, 1.0, v{g}
v_cvt_pk_bf16_f32 v33, v33, v33
v_and_b32 v33, s63, v33
s_lshl_b32 s56, s64, 10
s_add_u32 s56, s56, {fin}
s_barrier
s_barrier""".format(nl2e=hex(NLOG2E), fin=FIN, g=FB + 4))
    poll_tag(['buffer_load_dwordx4 v[%d:%d], v1, s[48:51], s56 offen %s' % (FB, FB + 3, MF)], range(FB, FB + 4), slp)
    stamp(13)
    for r in range(FB, FB + 4): A('v_and_b32 v%d, s59, v%d' % (r, r))
    xsum(list(range(FB, FB + 4)), 40)
    round4(range(FB, FB + 4), 40)
    for r in range(FB, FB + 4): A('v_mul_f32 v%d, v33, v%d' % (r, r))
    round4(range(FB, FB + 4), 40)
    A("""s_lshl_b32 s78, s64, 11
s_add_u32 s78, s78, {yin}
s_mul_i32 s79, s76, 1152
s_lshl_b32 s56, s77, 6
s_add_u32 s79, s79, s56""".format(yin=YIN))
    srd(32, 24, 8 * 1152)
    for _ in range(len(info['cps']) - 1): A('s_barrier')
    if prio: A('s_setprio %d' % prio)
    A('s_barrier')
    if not sm & 64:
        stamp(1)
        A('s_endpgm')
    if b3: A('s_barrier')
    poll_tag(['buffer_load_dwordx4 v[%d:%d], v1, s[48:51], s78 offen offset:%d %s' % (16 + 4 * i, 19 + 4 * i, i * 1024, TF) for i in range(2)],
             range(16, 24), fslp2)
    for r in range(16, 24): A('v_and_b32 v%d, s59, v%d' % (r, r))
    for c in range(4): A('v_add_f32 v%d, v%d, v%d' % (16 + c, 16 + c, 20 + c))
    xsum([16, 17, 18, 19], 20)
    round4([16, 17, 18, 19], 20)
    for c in range(4): A('v_mul_f32 v%d, v%d, v%d' % (16 + c, FB + 4, 16 + c))
    round4([16, 17, 18, 19], 20)
    for c in range(4): A('v_add_f32 v%d, v%d, v%d' % (16 + c, 16 + c, FB + c))
    A("""v_cvt_pk_bf16_f32 v20, v16, v17
v_cvt_pk_bf16_f32 v21, v18, v19
s_mov_b64 exec, 0xff
buffer_store_dwordx2 v[20:21], v15, s[32:35], s79 offen
s_cmp_lg_u32 s64, 0
s_cbranch_scc1 L_noepoch
s_mov_b64 exec, 1
v_mov_b32 v2, s88
v_mov_b32 v3, %d
buffer_store_dword v2, v3, s[48:51], 0 offen sc1
L_noepoch:
s_mov_b64 exec, -1""" % EPOCH)
    if diag:
        A('s_waitcnt vmcnt(0)')
        stamp(1)
    A('L_end:\ns_endpgm')

    nacc = 0
    nv = max(RING + D * 4, 224)
    if diag: nv = 256
    assert nv <= 256
    out = HEADER + '; @launch grid=(256,1,1) block=(192,1,1) lds=%d\n' % lds
    out += '.amdgcn_target "amdgcn-amd-amdhsa--gfx950"\n.text\n.globl %s\n.p2align 8\n.type %s,@function\n' % (KN, KN)
    L = []
    for nm in ('entry', 'haq', 'hbq', 'stream', 'stream2', 'ha2', 'hb2'): L += secs.get(nm, [])
    out += '\n'.join(('' if x.endswith(':') else '    ') + x for x in L) + '\n'
    out += '''.section .rodata,"a"
.p2align 6
.amdhsa_kernel %s
  .amdhsa_next_free_vgpr %d
  .amdhsa_next_free_sgpr 102
  .amdhsa_accum_offset %d
  .amdhsa_group_segment_fixed_size 0
  .amdhsa_kernarg_size 104
  .amdhsa_user_sgpr_count 2
  .amdhsa_user_sgpr_kernarg_segment_ptr 1
  .amdhsa_system_sgpr_workgroup_id_x 1
.end_amdhsa_kernel
''' % (KN, nv + nacc, nv)
    return out


if __name__ == '__main__':
    names = []
    for spec in sys.argv[1:]:
        kw = {}
        for p in spec.split(','):
            if not p: continue
            k, v = p.split('=')
            kw[k] = int(v)
        nm = 'k_' + (spec.replace(',', '_').replace('=', '') or 'def') + '.s'
        open(nm, 'w').write(gen(**kw))
        names.append(nm)
    print(' '.join(names))
```

```python
import sys, math, struct

KN = 'gated_mix__mha_block_cached__swiglu_ffn__decode_kernel'

HEADER = '''; Kernarg layout for this problem (104 bytes, ptrs only, base s[0:1]):
'''

EPOCH = 0x0
RK = 0x1000
QP = 0x10000
HM = 0x70000
FIN = 0xA0000
PREG = 0xD0000
OREC = 0x100000
YIN = 0x140000
WS_SIZE = 0x200000
L_QW = 0
L_W = 24576
L_WO = 98304
L_Q = 114688
L_SC = 114944
L_CTL = 147712
LDS_BYTES = 147776

def f2u(x):
    return struct.unpack('<I', struct.pack('<f', x))[0]

CSC = f2u(math.log2(math.e) / math.sqrt(128.0))
NLOG2E = f2u(-math.log2(math.e))


def gen(hs=0, n=20, q=2, D=32, w0=24, na=28, nend=28, kend=32, ctl=1, nf=24, ns=18, gA=125, gAs=100, gB=72, gBs=60, pB=50, pC=80, gC=55, gCs=45, pD=0, gD=15, gDs=16, rks=1280, pt=0, ck=1, qgate=1, rm=1, Z=64, zg=4, wa=4, diag=0, spin=1 << 17, prio=3, vacc=0, slp=64, qslp=2, b0=1, fb=0,
        sm=127, noproc=0, tslp=1, mnt=0, qnt=0, tnt=0, lds=LDS_BYTES, ww=2, wa2=0, n1=0, n1it=0):
    secs = {}
    cur = [None]
    def sec(name):
        cur[0] = secs.setdefault(name, [])
    def A(s):
        for x in s.split('\n'):
            x = x.strip()
            if x: cur[0].append(x)
    lab = [0]
    def newlab(p):
        lab[0] += 1
        return '%s_%d' % (p, lab[0])
    MF = 'sc1 nt' if mnt else 'sc1'
    QF = 'sc1 nt' if qnt else 'sc1'
    TF = 'sc1 nt' if tnt else 'sc1'
    TAG = 62

    sec('entry')
    A(KN + ':')
    A('s_cmp_ge_u32 s2, 256\ns_cbranch_scc1 L_end')
    if diag: A('s_memrealtime s[90:91]')
    A("""s_load_dwordx16 s[4:19], s[0:1], 0
s_load_dwordx8 s[20:27], s[0:1], 64
s_load_dwordx2 s[28:29], s[0:1], 96
v_lshrrev_b32 v1, 6, v0
v_and_b32 v0, 63, v0
v_readfirstlane_b32 s3, v1
v_lshlrev_b32 v1, 4, v0
s_lshr_b32 s30, s2, 5
s_and_b32 s31, s2, 31
s_waitcnt lgkmcnt(0)
s_load_dword s88, s[28:29], %d
s_mov_b32 s48, s28
s_mov_b32 s49, s29
s_mov_b32 s50, %d
s_mov_b32 s51, 0x20000
s_cmp_eq_u32 s3, 0
s_cbranch_scc1 L_S
s_cmp_eq_u32 s3, 2
s_cbranch_scc1 L_HB""" % (EPOCH, WS_SIZE))

    def stamp(slot):
        if not diag: return
        if diag in (4, 5) and slot not in (1, 3): return
        if diag == 1 and slot == 99: return
        if diag == 3:
            if hs and slot == hs: A('s_memrealtime s[90:91]\ns_waitcnt lgkmcnt(0)')
            if (slot == 1 and hs in (0, 1)) or (slot == 3 and hs == 3) or (slot == 99 and hs in (2, 12, 14, 4)):
                lp = newlab('L_hold')
                A('%s:\ns_memrealtime s[92:93]\ns_waitcnt lgkmcnt(0)\ns_sub_u32 s92, s92, s90\ns_cmp_lt_u32 s92, 25000\ns_cbranch_scc1 %s' % (lp, lp))
            return
        A("""s_memrealtime s[92:93]
s_add_u32 s80, s28, 0x40000000
s_addc_u32 s81, s29, 0
s_mov_b32 s82, 0x20000
s_mov_b32 s83, 0x20000
s_lshl_b32 s84, s2, 7
s_mov_b64 s[86:87], exec
s_mov_b64 exec, 1
s_waitcnt lgkmcnt(0)
v_mov_b32 v250, s92
v_mov_b32 v251, s93
v_mov_b32 v252, s84
buffer_store_dwordx2 v[250:251], v252, s[80:83], 0 offen offset:%d""" % (slot * 8))
        if slot == 1:
            A("""s_getreg_b32 s85, hwreg(HW_REG_XCC_ID)
v_mov_b32 v250, s90
v_mov_b32 v251, s91
buffer_store_dwordx2 v[250:251], v252, s[80:83], 0 offen
s_nop 1
v_mov_b32 v250, s85
v_mov_b32 v251, 0
buffer_store_dwordx2 v[250:251], v252, s[80:83], 0 offen offset:48""")
        A('s_mov_b64 exec, s[86:87]')

    def epoch(tagreg=TAG):
        A("""s_waitcnt lgkmcnt(0)
s_mul_i32 s89, s88, 0x9E3779B1
s_add_u32 s89, s89, 0x7F4A7C15
s_add_u32 s88, s88, 1
s_and_b32 s63, s88, 0xff
v_mov_b32 v%d, s63
s_mov_b32 s59, 0xffffff00""" % tagreg)
    def poll_tag(loads, regs, sleep, full=()):
        lp, ld = newlab('L_poll'), newlab('L_pdone')
        A('s_mov_b32 s62, %d\n%s:' % (spin, lp))
        for x in loads: A(x)
        A('s_waitcnt vmcnt(0)')
        rs = list(regs)
        A('v_xor_b32 v2, v%d, v62\nv_xor_b32 v3, v%d, v62' % (rs[0], rs[1]))
        for i, r in enumerate(rs[2:]):
            A('v_bitop3_b32 v%d, v%d, v%d, v62 bitop3:0xf6' % (2 + (i & 1), 2 + (i & 1), r))
        A('v_or_b32 v2, v2, v3\nv_and_b32 v2, 0xff, v2')
        for r in full:
            A('v_bitop3_b32 v2, v2, v%d, s89 bitop3:0xf6' % r)
        A("""v_cmp_ne_u32 vcc, 0, v2
s_cbranch_vccz {ld}
s_mov_b64 exec, vcc
s_sleep {sl}
s_sub_u32 s62, s62, 1
s_cbranch_scc0 {lp}
{ld}:
s_mov_b64 exec, -1""".format(lp=lp, ld=ld, sl=sleep))
    def srd(sn, ptr, size):
        A('s_mov_b32 s%d, s%d\ns_mov_b32 s%d, s%d\ns_mov_b32 s%d, %s\ns_mov_b32 s%d, 0x20000' % (sn, ptr, sn + 1, ptr + 1, sn + 2, size, sn + 3))
    def trbase(dst, rowstride, colmul, tmp, gm=8):
        A("""v_lshrrev_b32 v{d}, 4, v0
v_mul_u32_u24 v{d}, {gm}, v{d}
v_bfe_u32 v{t}, v0, 2, 2
v_add_u32 v{d}, v{d}, v{t}
v_mul_u32_u24 v{d}, {rs}, v{d}
v_and_b32 v{t}, 3, v0
v_mul_u32_u24 v{t}, {cm}, v{t}
v_add_u32 v{d}, v{d}, v{t}""".format(d=dst, t=tmp, rs=rowstride, cm=colmul, gm=gm))
    def xsum(regs, tmp):
        for r in regs: A('v_add_f32_dpp v%d, v%d, v%d row_ror:8 row_mask:0xf bank_mask:0xf' % (r, r, r))
        for sw in ('v_permlane16_swap_b32', 'v_permlane32_swap_b32'):
            for i, r in enumerate(regs): A('v_mov_b32 v%d, v%d' % (tmp + i, r))
            if len(regs) < 3: A('s_nop 1')
            for i, r in enumerate(regs): A('%s v%d, v%d' % (sw, r, tmp + i))
            for i, r in enumerate(regs): A('v_add_f32 v%d, v%d, v%d' % (r, r, tmp + i))
    def round4(regs, tmp):
        a, b, c, d = regs
        A("""v_cvt_pk_bf16_f32 v{t0}, v{a}, v{b}
v_cvt_pk_bf16_f32 v{t1}, v{c}, v{d}
v_lshlrev_b32 v{a}, 16, v{t0}
v_and_b32 v{b}, s63, v{t0}
v_lshlrev_b32 v{c}, 16, v{t1}
v_and_b32 v{d}, s63, v{t1}""".format(a=a, b=b, c=c, d=d, t0=tmp, t1=tmp + 1))

    vQ = 4
    vMask = 8
    vT0, vU0, vX0 = 12, 14, 2
    vA = 16
    vAcc = 24
    vS0, vS1, vR, vT, vT2, vPK, vM, vMC, vL = 28, 29, 30, 31, 32, 33, 34, 35, 36
    vAddr, vSA, vTag = 37, 38, 39
    vKA, vKB, vVA, vVB = 40, 41, 42, 43
    vQM = 44
    RING = 60
    assert zg == 4
    assert D % 16 == 0 and n + q <= D and D % q == 0
    def rr(t):
        b = RING + (t % D) * 4
        return 'v[%d:%d]' % (b, b + 3)
    HALF = 2048
    TOT = 2 * HALF
    sec('stream')
    A("""L_S:
s_lshl_b32 s52, s2, 21
s_lshr_b32 s53, s2, 11
s_add_u32 s32, s6, s52
s_addc_u32 s33, s7, s53
s_mov_b32 s34, 0x200000
s_mov_b32 s35, 0x20000
s_add_u32 s36, s8, s52
s_addc_u32 s37, s9, s53
s_mov_b32 s38, 0x200000
s_mov_b32 s39, 0x20000
s_mov_b32 s54, 0
s_mov_b32 s53, 0
v_lshrrev_b32 v2, 4, v0
v_and_b32 v3, 3, v0
v_lshlrev_b32 v3, 4, v3
v_lshl_add_u32 v{QA}, v2, 6, v3
v_bfe_u32 v3, v0, 2, 2
v_lshl_add_u32 v{KA}, v3, 8, v{QA}
v_add_u32 v{KB}, {z}, v{KA}
v_and_b32 v3, 15, v0
v_lshlrev_b32 v3, 4, v3
v_lshl_add_u32 v{VA}, v2, 10, v3
v_add_u32 v{VB}, {z}, v{VA}
v_add_u32 v{QA}, {lq}, v{QA}""".format(QA=vS0, KA=vKA, KB=vKB, VA=vVA, VB=vVB, z=Z * 1024, lq=L_Q))
    st = {'issued': 0, 'landed': -1}
    info = {}
    def issue(t):
        sr, so = ('s[32:35]', 's54') if t < HALF else ('s[36:39]', 's53')
        r = t % (2 * zg)
        if t < HALF: A('buffer_load_dwordx4 %s, v%d, %s, %s offen offset:%d nt' % (rr(t), vKA if r < zg else vKB, sr, so, (r % zg) * 1024))
        else: A('buffer_load_dwordx4 %s, v%d, %s, %s offen offset:%d nt' % (rr(t), vVA if r < zg else vVB, sr, so, (r % zg) * 256))
        if r == 2 * zg - 1:
            A('s_add_u32 s68, %s, %d\ns_xor_b32 s69, s68, %s\ns_and_b32 s69, s69, %d\ns_add_u32 %s, s68, s69' % (so, zg * 1024, so, Z * 1024, so))
        st['issued'] = t + 1
    def wait_landed(t):
        c = st['issued'] - 1 - t
        assert 0 <= c < 63
        if t > st['landed']:
            A('s_waitcnt vmcnt(%d)' % c)
            st['landed'] = t
    def dpp(op, d, a, ctl, bank=0xf):
        A('%s_dpp v%d, v%d, v%d %s row_mask:0xf bank_mask:%s' % (op, d, a, a, ctl, hex(bank)))
    lane_of = lambda j: 4 * (j & 3) + (j >> 2)
    GPB = D // 16
    def sc_off(grp):
        return (grp % GPB) * 256
    def prepA(u):
        a = u % 8
        grp = u // 8
        if a == 0:
            A("""s_waitcnt lgkmcnt(0)
v_fma_f32 v{T}, v{R}, s55, -v{MC}
v_exp_f32 v{T}, v{T}""".format(T=vT, R=vR, MC=vMC))
            if grp + 1 < HALF // 16:
                if (grp + 1) % GPB == 0: A('v_add_u32 v%d, %d, v%d' % (vSA, GPB * 256, vSA))
                A('ds_read_b32 v%d, v%d offset:%d' % (vR, vSA, sc_off(grp + 1)))
            else:
                A('s_nop 0')
            A("""v_cvt_pk_bf16_f32 v{PK}, v{T}, v{T}
v_add_f32 v{Lr}, v{Lr}, v{T}
s_nop 0""".format(T=vT, PK=vPK, Lr=vL))
        for i in range(2):
            for k in range(4):
                A('v_and_b32_dpp v%d, v%d, v%d row_newbcast:%d row_mask:0xf bank_mask:0xf' % (vA + 4 * i + k, vPK, vMask + k, lane_of(2 * a + i)))
    def finish_l():
        for ctl in ('row_ror:8', 'row_ror:4', 'row_ror:2', 'row_ror:1'):
            dpp('v_add_f32', vL, vL, ctl); A('s_nop 1')
        A("""v_mov_b32 v{T}, v{Lr}
s_nop 1
v_permlane16_swap_b32 v{Lr}, v{T}
v_add_f32 v{Lr}, v{Lr}, v{T}
v_mov_b32 v{T}, v{Lr}
s_nop 1
v_permlane32_swap_b32 v{Lr}, v{T}
v_add_f32 v{Lr}, v{Lr}, v{T}
v_rcp_f32 v{Lr}, v{Lr}""".format(T=vT, Lr=vL))
    def pad_after_mfma(acc, need=8):
        have = 0
        for x in reversed(cur[0]):
            if x.startswith('v_mfma') and x.split()[1].startswith('v[%d:' % acc): break
            if x.endswith(':'):
                have += 1; break
            have += int(x.split()[1]) + 1 if x.startswith('s_nop') else 1
        if have < need: A('s_nop %d' % (need - have - 1))
    def post(c):
        acc = vA + 4 * (c & 1); a = c % 4
        x = vU0 + (a & 1)
        pad_after_mfma(acc)
        A('v_cndmask_b32 v%d, v%d, v%d, s[70:71]' % (vT0, acc, acc + 1))
        A('v_cndmask_b32 v%d, v%d, v%d, s[70:71]' % (vT0 + 1, acc + 2, acc + 3))
        A('v_cndmask_b32 v%d, v%d, v%d, s[72:73]' % (x, vT0, vT0 + 1))
        if a & 1:
            cc = a >> 1
            dpp('v_add_f32', vU0, vU0, 'quad_perm:[1,0,3,2]')
            A('s_nop 0')
            dpp('v_add_f32', vU0 + 1, vU0 + 1, 'quad_perm:[1,0,3,2]')
            A('v_cndmask_b32 v%d, v%d, v%d, s[70:71]' % (vX0 + cc, vU0, vU0 + 1))
            if cc:
                dpp('v_add_f32', vX0, vX0, 'quad_perm:[2,3,0,1]')
                A('s_nop 0')
                dpp('v_add_f32', vX0 + 1, vX0 + 1, 'quad_perm:[2,3,0,1]')
                grp = c // 4
                A('v_cndmask_b32 v%d, v%d, v%d, s[72:73]' % (vR, vX0, vX0 + 1))
                A('v_max_f32 v%d, v%d, v%d' % (vM, vM, vR))
                A('ds_write_b32 v%d, v%d offset:%d' % (vSA, vR, sc_off(grp)))
                if (grp + 1) % GPB == 0 and grp + 1 < HALF // 16: A('v_add_u32 v%d, %d, v%d' % (vSA, GPB * 256, vSA))
    def proc(u):
        t = 2 * u
        if t < HALF:
            if noproc & 1: return
            c = t // 4
            acc = vA + 4 * (c & 1)
            for i in range(2):
                j = (t + i) % 4
                A('v_mfma_f32_16x16x32_bf16 v[%d:%d], v[%d:%d], %s, %s' % (acc, acc + 3, vQM + 4 * j, vQM + 4 * j + 3, rr(t + i), '0' if j == 0 else 'v[%d:%d]' % (acc, acc + 3)))
            if t % 4 == 0 and c > 0: post(c - 1)
            if t + 2 == HALF: post(c)
            if t + 2 == HALF:
                A('v_subrev_u32 v%d, %d, v%d' % (vSA, ((HALF // 16 - 1) // GPB) * GPB * 256, vSA))
                A('ds_read_b32 v%d, v%d' % (vR, vSA))
                A('v_mov_b32 v%d, %d' % (vT0 + 1, L_CTL))
                for ctl in ('row_ror:8', 'row_ror:4', 'row_ror:2', 'row_ror:1'):
                    dpp('v_max_f32', vM, vM, ctl); A('s_nop 1')
                for sw in ('v_permlane16_swap_b32', 'v_permlane32_swap_b32'):
                    A('v_mov_b32 v{T}, v{M}\ns_nop 1\n{sw} v{M}, v{T}\nv_max_f32 v{M}, v{M}, v{T}'.format(T=vT, M=vM, sw=sw))
                A('v_mul_f32 v%d, s55, v%d\ns_barrier' % (vMC, vM))
                prepA(0)
        else:
            if noproc & 2: return
            if cur[0][-1].startswith('v_and'): A('s_nop 0')
            A('v_mfma_f32_16x16x32_bf16 v[%d:%d], v[%d:%d], %s, v[%d:%d]' % (vAcc, vAcc + 3, vA, vA + 3, rr(t), vAcc, vAcc + 3))
            A('v_mfma_f32_16x16x32_bf16 v[%d:%d], v[%d:%d], %s, v[%d:%d]' % (vAcc, vAcc + 3, vA + 4, vA + 7, rr(t + 1), vAcc, vAcc + 3))
            uu = u - HALF // 2
            if uu + 1 < HALF // 2: prepA(uu + 1)
            if uu + 1 == HALF // 2 - 8:
                pass
    win = [n]
    def paced_issue(cnt):
        for _ in range(cnt // q):
            t = st['issued']
            if t + q - 1 - win[0] >= 0:
                wait_landed(t + q - 1 - win[0])
            for i in range(q): issue(t + i)
    n0 = (n // q) * q
    def job_off(dst, jreg, rowbytes, bits=0):
        if bits:
            A('''s_and_b32 s68, {j}, {m}
s_lshr_b32 s69, {j}, {b}
s_mul_i32 {d}, s68, {rb}
s_lshl_b32 s69, s69, 7
s_add_u32 {d}, {d}, s69'''.format(j=jreg, d=dst, rb=rowbytes, m=(1 << bits) - 1, b=bits))
            return
        A('''s_mul_i32 s68, {j}, 7282
s_lshr_b32 s68, s68, 16
s_mul_i32 s69, s68, 9
s_sub_u32 s69, {j}, s69
s_mul_i32 {d}, s68, {rb}
s_lshl_b32 s69, s69, 7
s_add_u32 {d}, {d}, s69'''.format(j=jreg, d=dst, rb=rowbytes))
    def side_dma(cnt, sr, so, step, ldsreg, vreg):
        for i in range(cnt):
            A('s_mov_b32 m0, %d\ns_waitcnt vmcnt(%d)\nbuffer_load_dwordx4 %s, %s, %s offen nt lds\ns_add_u32 %s, %s, %s' % (ldsreg + i * 1024, w0 - 1, vreg, sr, so, so, so, step))
    A('''v_lshrrev_b32 v4, 3, v0
v_and_b32 v5, 7, v0
v_lshlrev_b32 v5, 4, v5
v_mul_u32_u24 v6, 1152, v4
v_add_u32 v6, v6, v5
v_mul_u32_u24 v7, 9216, v4
v_add_u32 v7, v7, v5''')
    srd(44, 12, 4096 * 1152)
    job_off('s75', 's2', 147456, 5 if rm & 1 else 0)
    A('''s_cmp_ge_u32 s2, 184
s_cbranch_scc1 L_S_down
s_cmp_lt_u32 s2, 40
s_cbranch_scc1 L_S_light
s_cmp_lt_u32 s2, 112
s_cselect_b32 s40, s16, s18
s_cselect_b32 s41, s17, s19
s_cselect_b32 s74, 40, 112
s_mov_b32 s42, 5308416
s_mov_b32 s43, 0x20000
s_sub_u32 s74, s2, s74
s_lshl_b32 s74, s74, 7
s_mov_b32 s76, 73728
s_branch L_S_big
L_S_down:
s_sub_u32 s74, s2, 184''')
    job_off('s74', 's74', 663552, 3 if rm & 2 else 0)
    srd(40, 20, 4608 * 1152)
    A('''s_mov_b32 s76, 9216
v_mov_b32 v7, v6
L_S_big:''')
    if b0: A('s_barrier')
    if sm & 4: side_dma(72, 's[40:43]', 's74', 's76', L_W, 'v7')
    A('s_branch L_S_wo\nL_S_light:\ns_add_u32 s74, s2, 256')
    job_off('s74', 's74', 147456, 5 if rm & 1 else 0)
    if b0: A('s_barrier')
    A('s_cmp_ge_u32 s2, 32\ns_cbranch_scc1 L_S_wo')
    if sm & 2: side_dma(16, 's[44:47]', 's74', '9216', L_W, 'v6')
    A('L_S_wo:')
    if sm & 2: side_dma(16, 's[44:47]', 's75', '9216', L_WO, 'v6')
    for t in range(n0):
        A('s_waitcnt vmcnt(%d)' % (max(w0, n0) - 1))
        issue(t)
    A("""v_and_b32 v{T}, 1, v0
v_lshlrev_b32 v{T}, 4, v{T}
v_mov_b32 v{T2}, 0xffff
v_lshlrev_b32 v{T2}, v{T}, v{T2}
v_bfe_u32 v{T}, v0, 1, 3""".format(T=vT, T2=vT2))
    for j in range(4):
        A('v_cmp_eq_u32 vcc, %d, v%d\ns_nop 1\nv_cndmask_b32 v%d, 0, v%d, vcc' % (j, vT, vMask + j, vT2))
    epoch(vTag)
    A("""v_mov_b32 v{M}, 0xff800000
v_mov_b32 v{Lr}, 0
v_mov_b32 v{a0}, 0
v_mov_b32 v{a1}, 0
v_mov_b32 v{a2}, 0
v_mov_b32 v{a3}, 0
s_mov_b32 s55, {csc}
s_mov_b32 s70, 0xaaaaaaaa
s_mov_b32 s71, 0xaaaaaaaa
s_mov_b32 s72, 0xcccccccc
s_mov_b32 s73, 0xcccccccc
v_and_b32 v{T}, 15, v0
v_lshlrev_b32 v{T}, 4, v{T}
v_and_b32 v{T2}, 16, v0
v_lshl_add_u32 v{Ad}, v{T}, 1, v{T2}
s_lshl_b32 s57, s31, 3
s_add_u32 s57, s57, s30
s_lshl_b32 s57, s57, 9
s_add_u32 s57, s57, {orec}
s_mov_b32 s63, 0xffff0000
s_mov_b32 s58, {lsc}
v_lshl_add_u32 v{SA}, v0, 2, s58""".format(M=vM, Lr=vL, a0=vAcc, a1=vAcc + 1, a2=vAcc + 2, a3=vAcc + 3, csc=hex(CSC), T=vT, T2=vT2,
                              Ad=vAddr, SA=vSA, lsc=L_SC, orec=OREC))
    paced_issue(D - n0 - ((D - n0) & 1))
    A('s_barrier')
    A('ds_read_b128 v[%d:%d], v%d\nv_bfe_u32 v%d, v0, 2, 2' % (vQ, vQ + 3, vS0, vT))
    for j in range(4): A('v_cmp_eq_u32 s[%d:%d], %d, v%d' % (76 + 2 * j, 77 + 2 * j, j, vT))
    A('s_waitcnt lgkmcnt(0)')
    for j in range(4):
        for i in range(4): A('v_cndmask_b32 v%d, 0, v%d, s[%d:%d]' % (vQM + 4 * j + i, vQ + i, 76 + 2 * j, 77 + 2 * j))
    A('s_nop 0')
    done = [0]
    extra = [0]
    def do_proc():
        u = done[0]
        wait_landed(2 * u + 1)
        proc(u)
        done[0] += 1
    if not na: na = n0
    assert na >= n0 and (na - n0) % 2 == 0 and na + 2 <= D and nend <= na
    target_ahead = 2 + na
    k1 = n0 // 2 if D > target_ahead else 0
    for _ in range(k1):
        do_proc(); paced_issue(2)
    while st['issued'] - 2 * done[0] > target_ahead - 2:
        if st['issued'] - 2 * done[0] >= target_ahead + 2:
            do_proc(); do_proc(); paced_issue(2)
        else:
            do_proc()
    def steady():
        paced_issue(2); do_proc()
    def loop(name, limit):
        while (2 * done[0]) % D != 0: steady()
        niter = (limit - st['issued']) // D
        assert niter >= 2
        st['landed'] = 2 * done[0] - 1
        A('s_mov_b32 s58, %d\n%s:' % (niter, name))
        for _ in range(D // 2): steady()
        A('''s_sub_u32 s58, s58, 1
s_cmp_eq_u32 s58, %d
s_cbranch_scc1 L_midC
L_midCback:
s_cmp_lg_u32 s58, 0
s_cbranch_scc1 %s''' % (niter * 3 // 5, name))
        st['issued'] += (niter - 1) * D
        st['landed'] += (niter - 1) * D
        done[0] += (niter - 1) * (D // 2)
    loop('L_loopK', HALF)
    while 2 * done[0] < HALF or (2 * done[0] - HALF) % D != 0: steady()
    assert HALF % D == 0 or True
    loop2_base = done[0]
    niter = (TOT - D - st['issued']) // D
    nit2 = kend // D if nend else 0
    niter -= nit2
    cps = [niter - niter * p // 100 for p in (pB, pC, pD) if p]
    info['cntA'], info['cps'] = niter, cps
    A('s_mov_b32 s58, %d\ns_mov_b32 s75, %d\ns_and_b32 s74, s75, 0xff' % (niter, sum(c << (8 * i) for i, c in enumerate(cps)) | (0xff << (8 * len(cps))) & 0xffffffff))
    variants = [('L_loopV', n)] + ([('L_loopVf', nf), ('L_loopVs', ns)] if ctl else [])
    assert not ctl or nf <= na
    snap = (dict(st), done[0])
    for vi, (name, w) in enumerate(variants):
        st.update(snap[0]); done[0] = snap[1]
        st['landed'] = 2 * done[0] - 1
        win[0] = w
        if vi: sec('stream2')
        A(name + ':')
        if ctl: A('ds_read_b32 v%d, v%d' % (vT2, vT0 + 1))
        for _ in range(D // 2): steady()
        if vi: A('s_branch L_Vdisp')
    win[0] = n
    sec('stream')
    A("""L_Vdisp:
s_sub_u32 s58, s58, 1
s_cmp_eq_u32 s58, s74
s_cbranch_scc1 L_midB
L_midBback:""")
    if ctl:
        A("""v_readfirstlane_b32 s60, v{c}
s_cmp_eq_u32 s58, 0
s_cbranch_scc1 L_Vexit
s_lshr_b32 s61, s60, 2
s_cmp_gt_u32 s58, s61
s_cselect_b32 s60, s60, 0
s_bitcmp1_b32 s60, 0
s_cbranch_scc1 L_loopVf
s_bitcmp1_b32 s60, 1
s_cbranch_scc1 L_loopVs
s_branch L_loopV
L_Vexit:""".format(c=vT2))
    else:
        A('s_cmp_lg_u32 s58, 0\ns_cbranch_scc1 L_loopV')
    st['issued'] += (niter - 1) * D
    st['landed'] += (niter - 1) * D
    done[0] += (niter - 1) * (D // 2)
    st['landed'] = 2 * done[0] - 1
    if nend: win[0] = nend
    if nit2:
        st['landed'] = 2 * done[0] - 1
        A('s_mov_b32 s58, %d\nL_loopV2:' % nit2)
        for _ in range(D // 2): steady()
        A('s_sub_u32 s58, s58, 1\ns_cmp_lg_u32 s58, 0\ns_cbranch_scc1 L_loopV2')
        st['issued'] += (nit2 - 1) * D
        st['landed'] += (nit2 - 1) * D
        done[0] += (nit2 - 1) * (D // 2)
    while st['issued'] < TOT: steady()
    ml_done = False
    while done[0] < TOT // 2:
        if not ml_done and done[0] + 1 >= TOT // 2 - 8 + 1:
            finish_l(); ml_done = True
        do_proc()
    A("""s_mov_b32 exec_hi, 0
s_nop 6
v_mul_f32 v4, v{a0}, v{Lr}
v_mul_f32 v5, v{a1}, v{Lr}
v_mul_f32 v6, v{a2}, v{Lr}
v_mul_f32 v7, v{a3}, v{Lr}
v_cvt_pk_bf16_f32 v2, v4, v5
v_cvt_pk_bf16_f32 v3, v6, v7
v_lshl_or_b32 v4, v2, 16, v{tg}
v_and_or_b32 v5, v2, s63, v{tg}
v_lshl_or_b32 v6, v3, 16, v{tg}
v_and_or_b32 v7, v3, s63, v{tg}
buffer_store_dwordx4 v[4:7], v{Ad}, s[48:51], s57 offen sc1
s_barrier""".format(a0=vAcc, a1=vAcc + 1, a2=vAcc + 2, a3=vAcc + 3, Ad=vAddr, Lr=vL, tg=vTag))
    if diag:
        A('s_mov_b64 exec, -1')
        stamp(3)
    A('s_endpgm')
    A('L_midB:' + ('\ns_memrealtime s[94:95]' if diag == 5 else '') + '\ns_barrier\ns_lshr_b32 s75, s75, 8\ns_and_b32 s74, s75, 0xff\ns_branch L_midBback')
    A('L_midC:' + ('\ns_memrealtime s[96:97]' if diag == 5 else '') + '\ns_barrier\ns_branch L_midCback')

    XF = 72
    AC = 16
    AC2 = 32
    FR = 144
    PUB = 64
    def ha_setup1():
        srd(36, 4, 9216)
        A("""v_and_b32 v5, 7, v0
v_mul_u32_u24 v9, 1152, v5
v_lshrrev_b32 v8, 4, v0
v_lshl_add_u32 v9, v8, 4, v9""")
    def ha_setup2():
        trbase(6, 128, 16, 10)
        A("""v_and_b32 v10, 8, v0
v_lshlrev_b32 v12, 1, v10
v_lshl_add_u32 v12, v8, 5, v12
v_cmp_ne_u32 s[66:67], 0, v10""")
        epoch()
    def wdma(ldsoff, step, sr='s[32:35]', so='s54'):
        A('s_mov_b32 m0, %d\ns_nop 0\nbuffer_load_dwordx4 v4, %s, %s offen nt lds\ns_add_u32 %s, %s, %s' % (ldsoff, sr, so, so, so, step))
    def w_reads(ks, base, koff, hfs=512):
        b = FR + (ks % 2) * 16
        for nt in range(4):
            for hf in range(2):
                off = koff * 4096 + hf * hfs + (nt >> 1) * 64 + (nt & 1) * 8
                r = b + nt * 4 + hf * 2
                A('ds_read_b64_tr_b16 v[%d:%d], v%d offset:%d' % (r, r + 1, base, off))
    def w_mfma(ks, acc, xreg, first):
        b = FR + (ks % 2) * 16
        for nt in range(4):
            A('v_mfma_f32_16x16x32_bf16 v[%d:%d], v[%d:%d], v[%d:%d], %s' % (acc + nt * 4, acc + nt * 4 + 3, b + nt * 4, b + 3 + nt * 4, xreg, xreg + 3,
              '0' if first else 'v[%d:%d]' % (acc + nt * 4, acc + nt * 4 + 3)))
    def select8(dst, acc):
        for i in range(2):
            for e in range(4):
                A('v_cndmask_b32 v%d, v%d, v%d, s[66:67]' % (dst + 4 * i + e, acc + 8 * i + e, acc + 8 * i + 4 + e))
    def publish(linestride):
        for i in range(2):
            A('buffer_store_dwordx4 v[%d:%d], v11, s[48:51], s57 offen offset:%d sc1' % (PUB + 4 * i, PUB + 3 + 4 * i, i * linestride))
    def publish_f32(linestride):
        A('s_nop 6')
        select8(PUB, AC)
        for i in range(8): A('v_bfi_b32 v%d, s59, v%d, v62' % (PUB + i, PUB + i))
        publish(linestride)

    sec('haq')
    A('L_HA:')
    if prio: A('s_setprio %d' % prio)
    A('s_cmp_ge_u32 s2, 192\ns_cbranch_scc1 L_HA_noq')
    srd(32, 10, 576 * 8192)
    ha_setup1()
    A("""s_and_b32 s52, s2, 63
s_lshr_b32 s53, s2, 6
s_mul_i32 s54, s53, 1572864
s_lshl_b32 s55, s52, 7
s_add_u32 s54, s54, s55
s_mul_i32 s56, s53, 384
v_lshrrev_b32 v4, 3, v0
v_lshlrev_b32 v4, 13, v4
v_lshl_add_u32 v4, v5, 4, v4""")
    for ks in range(6):
        A('buffer_load_dwordx4 v[%d:%d], v9, s[36:39], s56 offen offset:%d' % (XF + 4 * ks, XF + 4 * ks + 3, ks * 64))
    for i in range(24): wdma(L_QW + i * 1024, '65536')
    if b0: A('s_barrier')
    ha_setup2()
    A("""v_mul_u32_u24 v11, 49152, v5
v_add_u32 v11, v11, v12
s_mul_i32 s57, s52, 3
s_add_u32 s57, s57, s53
s_lshl_b32 s57, s57, 8
s_add_u32 s57, s57, %d
s_waitcnt vmcnt(20)""" % QP)
    w_reads(0, 6, 0)
    for ks in range(6):
        if ks + 1 < 6:
            A('s_waitcnt vmcnt(%d)' % (16 - 4 * ks))
            w_reads(ks + 1, 6, ks + 1)
            A('s_waitcnt lgkmcnt(8)')
        else:
            A('s_waitcnt lgkmcnt(0)')
        w_mfma(ks, AC, XF + 4 * ks, ks == 0)
    publish_f32(128)
    if qgate: A('v_mov_b32 v2, %d\nv_mov_b32 v3, 1\nds_write_b32 v2, v3' % (L_CTL + 4))
    stamp(5)
    A('s_branch L_HA2')

    sec('ha2')
    A("""L_HA_noq:""")
    ha_setup1()
    if b0: A('s_barrier')
    ha_setup2()
    A("""L_HA2:
s_setprio 0
s_barrier""")
    if not sm & 8: A('s_endpgm')
    A("""s_cmp_ge_u32 s2, 184
s_cbranch_scc1 L_FFN2
s_cmp_ge_u32 s2, 40
s_cbranch_scc1 L_FFN1
s_cmp_ge_u32 s2, {lim2}
s_cbranch_scc1 L_end
s_add_u32 s64, s2, 256
s_mov_b32 s65, {lw}
s_branch L_wojob""".format(lw=L_W, lim2=32 if sm & 32 else 0))
    A('L_FFN1:')
    for ks in range(18):
        if ks >= wa: A('s_waitcnt vmcnt(%d)' % (wa - 1))
        A('buffer_load_dwordx4 v[%d:%d], v9, s[36:39], 0 offen offset:%d' % (XF + 4 * ks, XF + 4 * ks + 3, ks * 64))
    A("""v_add_u32 v6, {lw}, v6
v_add_u32 v7, 36864, v6
v_mul_u32_u24 v11, 18432, v5
v_add_u32 v11, v11, v12
s_cmp_lt_u32 s2, 112
s_cselect_b32 s52, 40, 112
s_sub_u32 s52, s2, s52
s_lshl_b32 s52, s52, 8
s_add_u32 s57, s52, {preg}
s_waitcnt vmcnt(0)""".format(lw=L_W, preg=PREG))
    w_reads(0, 6, 0)
    for ks in range(18):
        if ks + 1 < 18:
            w_reads(ks + 1, 6 if ks + 1 < 9 else 7, (ks + 1) % 9)
            A('s_waitcnt lgkmcnt(8)')
        else:
            A('s_waitcnt lgkmcnt(0)')
        w_mfma(ks, AC, XF + 4 * ks, ks == 0)
    A('s_cmp_ge_u32 s2, 112\ns_cbranch_scc1 L_UP')
    publish_f32(128)
    stamp(9)
    A('s_endpgm')
    A("""L_UP:
s_mov_b32 s58, {nl}
s_mov_b32 s63, 0xffff0000
s_nop 3""".format(nl=hex(NLOG2E)))
    select8(PUB, AC)
    for i in range(2): round4([PUB + 4 * i + e for e in range(4)], 56)
    A('s_barrier')
    poll_tag(['buffer_load_dwordx4 v[%d:%d], v11, s[48:51], s57 offen offset:%d %s' % (48 + 4 * i, 51 + 4 * i, i * 128, MF) for i in range(2)],
             range(48, 56), slp)
    for e in range(8): A('v_and_b32 v%d, s59, v%d' % (48 + e, 48 + e))
    for i in range(2): round4([48 + 4 * i + e for e in range(4)], 56)
    for e in range(8): A('v_mul_f32 v%d, s58, v%d' % (16 + e, 48 + e))
    for e in range(8): A('v_exp_f32 v%d, v%d' % (16 + e, 16 + e))
    for e in range(8): A('v_add_f32 v%d, 1.0, v%d' % (16 + e, 16 + e))
    for e in range(8): A('v_rcp_f32 v%d, v%d' % (16 + e, 16 + e))
    for e in range(8): A('v_mul_f32 v%d, v%d, v%d' % (48 + e, 48 + e, 16 + e))
    for i in range(2): round4([48 + 4 * i + e for e in range(4)], 56)
    for e in range(8): A('v_mul_f32 v%d, v%d, v%d' % (PUB + e, PUB + e, 48 + e))
    for i in range(2): round4([PUB + 4 * i + e for e in range(4)], 56)
    for e in range(8): A('v_or_b32 v%d, v%d, v62' % (PUB + e, PUB + e))
    A('s_add_u32 s57, s52, %d' % HM)
    publish(128)
    stamp(9)
    A('s_endpgm')

    A('L_FFN2:')
    trbase(6, 128, 16, 10, 4)
    if rm & 2: A('s_sub_u32 s53, s2, 184\ns_and_b32 s52, s53, 7\ns_lshr_b32 s53, s53, 3')
    else: A('s_sub_u32 s53, s2, 184\ns_mul_i32 s52, s53, 7282\ns_lshr_b32 s52, s52, 16\ns_mul_i32 s54, s52, 9\ns_sub_u32 s53, s53, s54')
    A("""v_add_u32 v6, {lw}, v6
v_add_u32 v7, 36864, v6
v_mul_u32_u24 v9, 18432, v5
v_lshl_add_u32 v9, v8, 4, v9
v_and_b32 v10, 8, v0
v_lshl_add_u32 v9, v10, 3, v9
s_mul_i32 s56, s52, 2304
s_add_u32 s56, s56, {hm}
s_mov_b32 s58, 0x07060302
v_mul_u32_u24 v11, 18432, v5
v_add_u32 v11, v11, v12
s_lshl_b32 s57, s53, 11
s_lshl_b32 s63, s52, 7
s_add_u32 s57, s57, s63
s_add_u32 s57, s57, {fin}
s_barrier
s_barrier""".format(lw=L_W, hm=HM, fin=FIN))
    def pack_frags(raw, cnt, sel):
        for k in range(cnt):
            r = raw + 4 * k
            A('v_perm_b32 v%d, v%d, v%d, %s\nv_perm_b32 v%d, v%d, v%d, %s' % (r, r + 1, r, sel, r + 1, r + 3, r + 2, sel))
        for k in range(cnt):
            r = raw + 4 * k
            for t in range(2):
                A('v_mov_b32_dpp v%d, v%d row_ror:8 row_mask:0xf bank_mask:0xf' % (r + 2 + t, r + t))
    def spread8(acc):
        for i in range(2):
            for e in range(4):
                A('v_mov_b32_dpp v%d, v%d row_ror:8 row_mask:0xf bank_mask:0xc' % (acc + 8 * i + e, acc + 8 * i + 4 + e))
    poll_tag(['buffer_load_dwordx4 v[%d:%d], v9, s[48:51], s56 offen offset:%d %s' % (XF + 4 * k, XF + 4 * k + 3, k * 128, MF) for k in range(18)],
             range(XF, XF + 72), slp)
    pack_frags(XF, 18, 's58')
    w_reads(0, 6, 0, 2048)
    for k in range(18):
        if k + 1 < 18:
            w_reads(k + 1, 6 if k + 1 < 9 else 7, (k + 1) % 9, 2048)
            A('s_waitcnt lgkmcnt(8)')
        else:
            A('s_waitcnt lgkmcnt(0)')
        w_mfma(k, AC, XF + 4 * k, k == 0)
    A('s_nop 7')
    spread8(AC)
    for i in range(2):
        for e in range(4): A('v_bfi_b32 v%d, s59, v%d, v62' % (PUB + 4 * i + e, AC + 8 * i + e))
    publish(1024)
    stamp(9)
    A('s_endpgm')

    sec('hbq')
    A('L_HB:')
    if prio: A('s_setprio %d' % prio)
    A("""v_bfe_u32 v6, v0, 3, 1
v_mul_u32_u24 v6, 768, v6
v_lshrrev_b32 v7, 4, v0
v_min_u32 v5, 2, v7
v_lshl_add_u32 v6, v5, 8, v6
v_and_b32 v5, 7, v0
v_lshl_add_u32 v6, v5, 5, v6
v_cmp_gt_u32 vcc, 3, v7
s_lshl_b32 s56, s30, 6
s_lshl_b32 s57, s31, 1
s_add_u32 s56, s56, s57
s_mul_i32 s56, s56, 768
s_add_u32 s56, s56, {qp}
v_mov_b32 v8, 0xffffff00
v_cndmask_b32 v8, 0, v8, vcc
v_and_b32 v5, 15, v0
v_lshlrev_b32 v5, 4, v5
v_add_u32 v4, {lq}, v5""".format(qp=QP, lq=L_Q))
    if qgate: A('v_mov_b32 v2, %d\nv_mov_b32 v3, 0\nds_write_b32 v2, v3' % (L_CTL + 4))
    epoch()
    if b0: A('s_barrier')
    if qgate:
        A('''s_cmp_ge_u32 s2, 192
s_cbranch_scc1 L_qg3
L_qg:
s_sleep 1
ds_read_b32 v3, v2
s_waitcnt lgkmcnt(0)
v_readfirstlane_b32 s62, v3
s_cmp_eq_u32 s62, 0
s_cbranch_scc1 L_qg
L_qg3:''')
    poll_tag(['buffer_load_dwordx4 v[%d:%d], v6, s[48:51], s56 offen offset:%d %s' % (16 + 4 * i, 19 + 4 * i, i * 16, QF) for i in range(2)],
             range(16, 24), qslp)
    stamp(12)
    for i in range(8): A('v_and_b32 v%d, v8, v%d' % (32 + i, 16 + i))
    for sw in ('v_permlane16_swap_b32', 'v_permlane32_swap_b32'):
        for i in range(8): A('v_mov_b32 v%d, v%d' % (40 + i, 32 + i))
        for i in range(8): A('%s v%d, v%d' % (sw, 32 + i, 40 + i))
        for i in range(8): A('v_add_f32 v%d, v%d, v%d' % (32 + i, 32 + i, 40 + i))
    for i in range(4): A('v_cvt_pk_bf16_f32 v%d, v%d, v%d' % (8 + i, 32 + 2 * i, 33 + 2 * i))
    if ctl: A('v_mov_b32 v2, %d\nv_mov_b32 v3, 0\nds_write_b32 v2, v3' % L_CTL)
    A("""ds_write_b128 v4, v[8:11]
s_waitcnt lgkmcnt(0)
s_barrier
s_branch L_HB2""")
    sec('hb2')
    A('L_HB2:\ns_setprio 0')
    stamp(2)
    if ck == 1:
        A('''s_cmp_ge_u32 s2, 32
s_cbranch_scc1 L_nozero
s_mul_i32 s40, s2, %d
s_add_u32 s40, s40, %d
v_mov_b32 v2, 0
s_mov_b64 exec, 1
buffer_store_dword v2, v2, s[48:51], s40 offen sc1
s_mov_b64 exec, -1
L_nozero:''' % (rks, RK))
    A('s_mov_b32 s64, s2\ns_mov_b32 s65, %d' % L_WO)
    if not sm & 32:
        A('s_barrier\ns_barrier')
        stamp(14)
        A('s_barrier\ns_barrier')
        stamp(1)
        A('s_endpgm')
    A('L_wojob:')
    WF = 64
    OF = 128
    FB = 164
    YA = 44
    if rm & 1: A('s_and_b32 s68, s64, 31\ns_lshr_b32 s69, s64, 5')
    else: A('s_mul_i32 s68, s64, 7282\ns_lshr_b32 s68, s68, 16\ns_mul_i32 s69, s68, 9\ns_sub_u32 s69, s64, s69')
    trbase(6, 128, 8, 8, 4)
    A('v_add_u32 v6, s65, v6')
    for nt in range(4):
        for ks in range(4):
            for hf in range(2):
                r = WF + (nt * 4 + ks) * 4 + hf * 2
                A('ds_read_b64_tr_b16 v[%d:%d], v6 offset:%d' % (r, r + 1, ks * 4096 + hf * 2048 + nt * 32))
        A('s_waitcnt lgkmcnt(0)')
    A("""v_lshrrev_b32 v8, 4, v0
v_and_b32 v11, 8, v0
v_lshlrev_b32 v11, 3, v11
v_lshl_add_u32 v11, v8, 4, v11
v_and_b32 v10, 7, v0
v_lshl_add_u32 v12, v10, 9, v11
v_mul_u32_u24 v14, {bs}, v10
v_add_u32 v14, v14, v11
v_lshlrev_b32 v15, 3, v0
s_lshl_b32 s72, s68, 12
s_add_u32 s72, s72, {orec}
s_lshl_b32 s74, s69, 13
s_lshl_b32 s75, s68, 7
s_add_u32 s74, s74, s75
s_add_u32 s74, s74, {yin}
s_add_u32 s75, s74, 4096
s_mov_b32 s63, 0xffff0000
s_mov_b32 s71, 0x07060302
s_cmp_ge_u32 s64, 144
s_cbranch_scc1 L_nofin0
s_mul_i32 s76, s64, 3641
s_lshr_b32 s76, s76, 16
s_mul_i32 s77, s76, 18
s_sub_u32 s77, s64, s77
s_mul_i32 s56, s76, 1152
s_add_u32 s57, s56, 1152""".format(orec=OREC, bs=18 * 4096, yin=YIN))
    srd(32, 4, 's57')
    srd(36, 22, 1152)
    A("""v_lshlrev_b32 v5, 5, v0
buffer_load_dwordx4 v[16:19], v5, s[32:35], s56 offen
buffer_load_dwordx4 v[20:23], v5, s[32:35], s56 offen offset:16
buffer_load_dwordx4 v[24:27], v5, s[36:39], 0 offen
buffer_load_dwordx4 v[28:31], v5, s[36:39], 0 offen offset:16
s_mov_b32 s58, 0x3f803f80
v_mov_b32 v32, 0
s_waitcnt vmcnt(0)""")
    for r in range(8):
        A("""v_lshlrev_b32 v34, 16, v{x}
v_and_b32 v35, s63, v{x}
v_lshlrev_b32 v36, 16, v{w}
v_and_b32 v37, s63, v{w}
v_mul_f32 v34, v34, v36
v_mul_f32 v35, v35, v37
v_cvt_pk_bf16_f32 v34, v34, v35
v_dot2_f32_bf16 v32, v34, s58, v32""".format(x=16 + r, w=24 + r))
    A("""s_nop 2
v_add_f32_dpp v32, v32, v32 quad_perm:[1,0,3,2] row_mask:0xf bank_mask:0xf
s_nop 1
v_add_f32_dpp v32, v32, v32 quad_perm:[2,3,0,1] row_mask:0xf bank_mask:0xf
s_nop 1
v_add_f32_dpp v32, v32, v32 row_half_mirror row_mask:0xf bank_mask:0xf
s_nop 1""")
    xsum([32], 34)
    A("""v_cvt_pk_bf16_f32 v32, v32, v32
v_and_b32 v32, s63, v32
v_mul_f32 v32, {nl2e}, v32
v_exp_f32 v32, v32
s_nop 0
v_add_f32 v32, 1.0, v32
v_rcp_f32 v32, v32
s_nop 0
v_cvt_pk_bf16_f32 v32, v32, v32
v_and_b32 v{g}, s63, v32
v_sub_f32 v33, 1.0, v{g}
v_cvt_pk_bf16_f32 v33, v33, v33
v_and_b32 v33, s63, v33
s_lshl_b32 s56, s64, 10
s_add_u32 s56, s56, {fin}
L_nofin0:
s_barrier
s_barrier""".format(nl2e=hex(NLOG2E), fin=FIN, g=FB + 4))
    def checkpoint(k, cnt, gf, gs):
        if not ctl or gf < 0: return
        lab_ = newlab('L_nock')
        core = '''s_and_b32 s41, s2, 7
s_lshr_b32 s42, s2, 6
s_lshl_b32 s42, s42, 3
s_add_u32 s41, s41, s42
v_lshlrev_b32 v2, 2, v0
v_mov_b32 v3, s89
s_lshl_b64 s[42:43], 1, s41
s_mov_b32 exec_hi, 0
buffer_load_dword v4, v2, s[48:51], s40 offen sc1
s_mov_b64 exec, s[42:43]
buffer_store_dword v3, v2, s[48:51], s40 offen sc1
s_mov_b32 exec_lo, -1
s_waitcnt vmcnt(1)
v_cmp_eq_u32 vcc, s89, v4
s_mov_b64 exec, -1
s_mov_b32 s41, {gf}
s_mov_b32 s42, {gs}
s_bcnt1_i32_b32 s40, vcc_lo
''' if ck == 0 else '''s_add_u32 s42, s28, s40
s_addc_u32 s43, s29, 0
s_mov_b32 s40, 1
s_atomic_add s40, s[42:43], 0 glc
s_waitcnt lgkmcnt(0)
s_min_u32 s40, s40, 31
s_mov_b32 s41, {gf}
s_mov_b32 s42, {gs}
''' if ck == 1 else '''s_mov_b32 s40, 16
s_mov_b32 s41, {gf}
s_mov_b32 s42, {gs}
'''
        A("""s_cmp_ge_u32 s64, 256
s_cbranch_scc1 {lab}
s_bfe_u32 s40, s2, 0x30003
s_mul_i32 s40, s40, {rs}
s_add_u32 s40, s40, {rk}
{core}v_cvt_f32_u32 v2, s40
v_mul_f32 v2, {r16}, v2
v_add_f32 v2, {b0}, v2
v_mul_f32 v3, v2, v2
v_mul_f32 v4, v3, v3
v_mul_f32 v4, v4, v4
v_mul_f32 v4, {c9}, v4
v_fmac_f32 v4, 0.5, v3
v_add_f32 v4, {c1}, v4
v_mul_f32 v2, v2, v4
s_cmp_ge_u32 s40, 16
s_cselect_b32 s41, s41, s42
s_cselect_b32 s43, 1, 2
v_fma_f32 v2, abs(v2), s41, 0.5
v_cvt_u32_f32 v2, v2
s_nop 0
v_readfirstlane_b32 s44, v2
s_sub_u32 s45, {c0}, s44
s_max_i32 s45, s45, 0
s_lshl_b32 s45, s45, 2
s_or_b32 s45, s45, s43
s_cmp_eq_u32 s44, 0
s_cselect_b32 s45, 0, s45
v_mov_b32 v2, {lctl}
v_mov_b32 v3, s45
ds_write_b32 v2, v3
{lab}:""".format(core=core.format(gf=hex(f2u(gf / 10)), gs=hex(f2u(gs / 10))), lab=lab_, rk=RK + k * 8 * rks, rs=rks, gf=hex(f2u(gf / 10)), gs=hex(f2u(gs / 10)), r16=hex(f2u(1 / 16)), b0=hex(f2u(-15.5 / 16)),
           c9=hex(f2u(0.6)), c1=hex(f2u(1.2)), c0=cnt - 2, lctl=L_CTL))
    checkpoint(0, info['cntA'], gA, gAs)
    if diag == 1:
        A('s_cmp_ge_u32 s64, 256\ns_cbranch_scc1 L_nost14')
        stamp(14)
        A('L_nost14:')
    A('s_barrier')
    checkpoint(1, info['cps'][0], gB, gBs)
    A('s_cmp_ge_u32 s64, 144\ns_cbranch_scc1 L_nofin1')
    poll_tag(['buffer_load_dwordx4 v[%d:%d], v1, s[48:51], s56 offen %s' % (FB, FB + 3, MF)], range(FB, FB + 4), slp)
    stamp(13)
    for r in range(FB, FB + 4): A('v_and_b32 v%d, s59, v%d' % (r, r))
    xsum(list(range(FB, FB + 4)), 40)
    round4(range(FB, FB + 4), 40)
    for r in range(FB, FB + 4): A('v_mul_f32 v%d, v33, v%d' % (r, r))
    round4(range(FB, FB + 4), 40)
    A("""s_lshl_b32 s78, s64, 12
s_add_u32 s78, s78, {yin}
s_mul_i32 s79, s76, 1152
s_lshl_b32 s56, s77, 6
s_add_u32 s79, s79, s56""".format(yin=YIN))
    srd(32, 24, 8 * 1152)
    if pt & 1:
        for i in range(4): A('buffer_load_dwordx4 v[%d:%d], v1, s[48:51], s78 offen offset:%d sc1' % (16 + 4 * i, 19 + 4 * i, i * 1024))
        A('s_waitcnt vmcnt(0)')
    A('L_nofin1:')
    if pt & 2:
        A('s_cmp_lg_u32 s69, 0\ns_cbranch_scc1 L_nopt')
        for ks in range(4): A('buffer_load_dwordx4 v[%d:%d], v12, s[48:51], s72 offen offset:%d sc1' % (OF + 4 * ks, OF + 4 * ks + 3, ks * 128))
        A('s_waitcnt vmcnt(0)\nL_nopt:')
    for k, (g1, g2) in enumerate(((gC, gCs), (gD, gDs))[:len(info['cps']) - 1]):
        A('s_barrier')
        checkpoint(2 + k, info['cps'][1 + k], g1, g2)
    if prio: A('s_setprio %d' % prio)
    A('s_barrier')
    if not sm & 64:
        if diag: A('s_cmp_ge_u32 s64, 256\ns_cbranch_scc1 L_end')
        stamp(1)
        A('s_endpgm')
    poll_tag(['buffer_load_dwordx4 v[%d:%d], v12, s[48:51], s72 offen offset:%d %s' % (OF + 4 * ks, OF + 4 * ks + 3, ks * 128, TF) for ks in range(4)],
             range(OF, OF + 16), tslp)
    pack_frags(OF, 4, 's71')
    for ks in range(4):
        for nt in range(4):
            r = WF + (nt * 4 + ks) * 4
            A('v_mfma_f32_16x16x32_bf16 v[%d:%d], v[%d:%d], v[%d:%d], %s' % (YA + nt * 4, YA + nt * 4 + 3, r, r + 3, OF + ks * 4, OF + 3 + ks * 4, '0' if ks == 0 else 'v[%d:%d]' % (YA + nt * 4, YA + nt * 4 + 3)))
    A('s_nop 5')
    for i in range(2):
        for e in range(4):
            A('v_mov_b32_dpp v%d, v%d row_ror:8 row_mask:0xf bank_mask:0xc' % (YA + 8 * i + e, YA + 8 * i + 4 + e))
        for e in range(4):
            A('v_bfi_b32 v%d, s59, v%d, v62' % (YA + 8 * i + e, YA + 8 * i + e))
        A('buffer_store_dwordx4 v[%d:%d], v14, s[48:51], %s offen sc1' % (YA + 8 * i, YA + 8 * i + 3, 's74' if i == 0 else 's75'))
    if diag:
        A('s_cmp_ge_u32 s64, 256\ns_cbranch_scc1 L_end')
        stamp(4)
    A('s_cmp_ge_u32 s64, 144\ns_cbranch_scc1 L_fin_end')
    poll_tag(['buffer_load_dwordx4 v[%d:%d], v1, s[48:51], s78 offen offset:%d %s' % (16 + 4 * i, 19 + 4 * i, i * 1024, TF) for i in range(4)],
             range(16, 32), tslp)
    for r in range(16, 32): A('v_and_b32 v%d, s59, v%d' % (r, r))
    for c in range(4):
        A('v_add_f32 v%d, v%d, v%d' % (16 + c, 16 + c, 20 + c))
        A('v_add_f32 v%d, v%d, v%d' % (24 + c, 24 + c, 28 + c))
    for c in range(4): A('v_add_f32 v%d, v%d, v%d' % (16 + c, 16 + c, 24 + c))
    xsum([16, 17, 18, 19], 20)
    round4([16, 17, 18, 19], 20)
    for c in range(4): A('v_mul_f32 v%d, v%d, v%d' % (16 + c, FB + 4, 16 + c))
    round4([16, 17, 18, 19], 20)
    for c in range(4): A('v_add_f32 v%d, v%d, v%d' % (16 + c, 16 + c, FB + c))
    A("""v_cvt_pk_bf16_f32 v20, v16, v17
v_cvt_pk_bf16_f32 v21, v18, v19
s_mov_b64 exec, 0xff
buffer_store_dwordx2 v[20:21], v15, s[32:35], s79 offen
s_cmp_lg_u32 s64, 0
s_cbranch_scc1 L_noepoch
s_mov_b64 exec, 1
v_mov_b32 v2, s88
v_mov_b32 v3, %d
buffer_store_dword v2, v3, s[48:51], 0 offen sc1
L_noepoch:
s_mov_b64 exec, -1
L_fin_end:""" % EPOCH)
    if diag:
        A('s_waitcnt vmcnt(0)')
        stamp(1)
        stamp(99)
    A('L_end:\ns_endpgm')

    nacc = 0
    nv = max(RING + D * 4, 176)
    if diag: nv = 256
    assert nv <= 256
    out = HEADER + '; @launch grid=(256,1,1) block=(192,1,1) lds=%d\n' % lds
    out += '.amdgcn_target "amdgcn-amd-amdhsa--gfx950"\n.text\n.globl %s\n.p2align 8\n.type %s,@function\n' % (KN, KN)
    L = []
    for nm in ('entry', 'haq', 'hbq', 'stream', 'stream2', 'ha2', 'hb2'): L += secs.get(nm, [])
    out += '\n'.join(('' if x.endswith(':') else '    ') + x for x in L) + '\n'
    out += '''.section .rodata,"a"
.p2align 6
.amdhsa_kernel %s
  .amdhsa_next_free_vgpr %d
  .amdhsa_next_free_sgpr 102
  .amdhsa_accum_offset %d
  .amdhsa_group_segment_fixed_size 0
  .amdhsa_kernarg_size 104
  .amdhsa_user_sgpr_count 2
  .amdhsa_user_sgpr_kernarg_segment_ptr 1
  .amdhsa_system_sgpr_workgroup_id_x 1
.end_amdhsa_kernel
''' % (KN, nv + nacc, nv)
    return out


if __name__ == '__main__':
    names = []
    for spec in sys.argv[1:]:
        kw = {}
        for p in spec.split(','):
            if not p: continue
            k, v = p.split('=')
            kw[k] = int(v)
        nm = 'k_' + (spec.replace(',', '_').replace('=', '') or 'def') + '.s'
        open(nm, 'w').write(gen(**kw))
        names.append(nm)
    print(' '.join(names))
```

```python
import sys, math, struct

KN = 'gated_mix__mha_block_cached__swiglu_ffn__decode_kernel'

HEADER = '''; Kernarg layout for this problem (104 bytes, ptrs only, base s[0:1]):
'''

EPOCH = 0x0
RK = 0x1000
XL = 0xB000
QP = 0x10000
HM = 0x70000
FIN = 0xA0000
PREG = 0xD0000
OREC = 0x100000
YIN = 0x140000
WS_SIZE = 0x200000
L_QW = 0
L_W = 36864
L_SC = 110592
L_Q = 143360
L_CTL = 143616
LDS_BYTES = 143680

def f2u(x):
    return struct.unpack('<I', struct.pack('<f', x))[0]

CSC = f2u(math.log2(math.e) / math.sqrt(128.0))
NLOG2E = f2u(-math.log2(math.e))


def gen(hs=0, n=20, q=2, D=32, w0=24, na=28, nend=28, kend=32, ctl=1, nf=24, ns=18, gA=125, gAs=100, gB=72, gBs=60, pB=50, pC=80, gC=55, gCs=45, pD=0, gD=15, gDs=16, rks=1280, pt=0, ck=1, b0q=35, fslp2=1, b3=2, loc=15, xp=1, dbl=-1, gK=-1, gKs=0, pK=40, qgate=1, dum=0, h1nt=1, xnt=0, cnt_=0, snt=0, rm=3, Z=64, zg=4, wa=4, diag=0, spin=1 << 17, prio=3, vacc=0, slp=64, qslp=2, b0=1, fb=0,
        sm=127, noproc=0, tslp=1, mnt=1, qnt=1, tnt=0, lds=LDS_BYTES, ww=2, wa2=0, n1=0, n1it=0):
    secs = {}
    cur = [None]
    def sec(name):
        cur[0] = secs.setdefault(name, [])
    def A(s):
        for x in s.split('\n'):
            x = x.strip()
            if x: cur[0].append(x)
    lab = [0]
    def newlab(p):
        lab[0] += 1
        return '%s_%d' % (p, lab[0])
    MF = 'sc1 nt' if mnt else 'sc1'
    QF = 'sc1 nt' if qnt else 'sc1'
    TF = 'sc1 nt' if tnt else 'sc1'
    TAG = 62

    sec('entry')
    A(KN + ':')
    A('s_cmp_ge_u32 s2, 256\ns_cbranch_scc1 L_end')
    if diag: A('s_memrealtime s[90:91]')
    A("""s_load_dwordx16 s[4:19], s[0:1], 0
s_load_dwordx8 s[20:27], s[0:1], 64
s_load_dwordx2 s[28:29], s[0:1], 96
v_lshrrev_b32 v1, 6, v0
v_and_b32 v0, 63, v0
v_readfirstlane_b32 s3, v1
v_lshlrev_b32 v1, 4, v0
s_lshr_b32 s30, s2, 5
s_and_b32 s31, s2, 31
s_waitcnt lgkmcnt(0)
s_load_dword s88, s[28:29], %d
s_mov_b32 s48, s28
s_mov_b32 s49, s29
s_mov_b32 s50, %d
s_mov_b32 s51, 0x20000
s_cmp_eq_u32 s3, 0
s_cbranch_scc1 L_S
s_cmp_eq_u32 s3, 2
s_cbranch_scc1 L_HB""" % (EPOCH, WS_SIZE))

    def stamp(slot):
        if not diag: return
        if diag in (4, 5) and slot not in (1, 3): return
        if diag == 1 and slot == 99: return
        if diag == 3:
            if hs and slot == hs: A('s_memrealtime s[90:91]\ns_waitcnt lgkmcnt(0)')
            if (slot == 1 and hs in (0, 1)) or (slot == 3 and hs == 3) or (slot == 99 and hs in (2, 12, 14, 4)):
                lp = newlab('L_hold')
                A('%s:\ns_memrealtime s[92:93]\ns_waitcnt lgkmcnt(0)\ns_sub_u32 s92, s92, s90\ns_cmp_lt_u32 s92, 25000\ns_cbranch_scc1 %s' % (lp, lp))
            return
        A("""s_memrealtime s[92:93]
s_add_u32 s80, s28, 0x40000000
s_addc_u32 s81, s29, 0
s_mov_b32 s82, 0x20000
s_mov_b32 s83, 0x20000
s_lshl_b32 s84, s2, 7
s_mov_b64 s[86:87], exec
s_mov_b64 exec, 1
s_waitcnt lgkmcnt(0)
v_mov_b32 v250, s92
v_mov_b32 v251, s93
v_mov_b32 v252, s84
buffer_store_dwordx2 v[250:251], v252, s[80:83], 0 offen offset:%d""" % (slot * 8))
        if slot == 3:
            A("""s_sub_u32 s85, s2, 40
s_cmp_lt_u32 s85, 144
s_cbranch_scc1 L_st3
buffer_store_dwordx2 v[250:251], v252, s[80:83], 0 offen offset:8
L_st3:
s_getreg_b32 s85, hwreg(HW_REG_XCC_ID)
v_mov_b32 v250, s90
v_mov_b32 v251, s91
buffer_store_dwordx2 v[250:251], v252, s[80:83], 0 offen
s_nop 1
v_mov_b32 v250, s85
v_mov_b32 v251, 0
buffer_store_dwordx2 v[250:251], v252, s[80:83], 0 offen offset:48""")
        A('s_mov_b64 exec, s[86:87]')

    def epoch(tagreg=TAG):
        A("""s_waitcnt lgkmcnt(0)
s_mul_i32 s89, s88, 0x9E3779B1
s_add_u32 s89, s89, 0x7F4A7C15
s_add_u32 s88, s88, 1
s_and_b32 s63, s88, 0xff
v_mov_b32 v%d, s63
s_mov_b32 s59, 0xffffff00""" % tagreg)
    def poll_tag(loads, regs, sleep, full=()):
        lp, ld = newlab('L_poll'), newlab('L_pdone')
        A('s_mov_b32 s62, %d\n%s:' % (spin, lp))
        for x in loads: A(x)
        A('s_waitcnt vmcnt(0)')
        rs = list(regs)
        A('v_xor_b32 v2, v%d, v62\nv_xor_b32 v3, v%d, v62' % (rs[0], rs[1]))
        for i, r in enumerate(rs[2:]):
            A('v_bitop3_b32 v%d, v%d, v%d, v62 bitop3:0xf6' % (2 + (i & 1), 2 + (i & 1), r))
        A('v_or_b32 v2, v2, v3\nv_and_b32 v2, 0xff, v2')
        for r in full:
            A('v_bitop3_b32 v2, v2, v%d, s89 bitop3:0xf6' % r)
        A("""v_cmp_ne_u32 vcc, 0, v2
s_cbranch_vccz {ld}
s_mov_b64 exec, vcc
s_sleep {sl}
s_sub_u32 s62, s62, 1
s_cbranch_scc0 {lp}
{ld}:
s_mov_b64 exec, -1""".format(lp=lp, ld=ld, sl=sleep))
    def class_load(vd, va):
        A('''s_getreg_b32 s65, hwreg(HW_REG_XCC_ID)
s_and_b32 s65, s65, 15
s_add_u32 s65, s65, s89
s_and_b32 s64, s2, 7
s_mul_i32 s64, s64, 1280
s_add_u32 s64, s64, {xl}
v_and_b32 v{a}, 31, v0
v_lshlrev_b32 v{a}, 2, v{a}
buffer_load_dword v{d}, v{a}, s[48:51], s64 offen sc1{f}'''.format(xl=XL, a=va, d=vd, f=' nt' if cnt_ else ''))
    def class_test(vd, sd):
        A('v_cmp_ne_u32 vcc, s65, v%d\ns_nop 0\ns_cmp_eq_u64 vcc, 0\ns_cselect_b32 %s, 1, 0' % (vd, sd))
    def srd(sn, ptr, size):
        A('s_mov_b32 s%d, s%d\ns_mov_b32 s%d, s%d\ns_mov_b32 s%d, %s\ns_mov_b32 s%d, 0x20000' % (sn, ptr, sn + 1, ptr + 1, sn + 2, size, sn + 3))
    def trbase(dst, rowstride, colmul, tmp, gm=8):
        A("""v_lshrrev_b32 v{d}, 4, v0
v_mul_u32_u24 v{d}, {gm}, v{d}
v_bfe_u32 v{t}, v0, 2, 2
v_add_u32 v{d}, v{d}, v{t}
v_mul_u32_u24 v{d}, {rs}, v{d}
v_and_b32 v{t}, 3, v0
v_mul_u32_u24 v{t}, {cm}, v{t}
v_add_u32 v{d}, v{d}, v{t}""".format(d=dst, t=tmp, rs=rowstride, cm=colmul, gm=gm))
    def xsum(regs, tmp):
        for r in regs: A('v_add_f32_dpp v%d, v%d, v%d row_ror:8 row_mask:0xf bank_mask:0xf' % (r, r, r))
        for sw in ('v_permlane16_swap_b32', 'v_permlane32_swap_b32'):
            for i, r in enumerate(regs): A('v_mov_b32 v%d, v%d' % (tmp + i, r))
            if len(regs) < 3: A('s_nop 1')
            for i, r in enumerate(regs): A('%s v%d, v%d' % (sw, r, tmp + i))
            for i, r in enumerate(regs): A('v_add_f32 v%d, v%d, v%d' % (r, r, tmp + i))
    def round4(regs, tmp):
        a, b, c, d = regs
        A("""v_cvt_pk_bf16_f32 v{t0}, v{a}, v{b}
v_cvt_pk_bf16_f32 v{t1}, v{c}, v{d}
v_lshlrev_b32 v{a}, 16, v{t0}
v_and_b32 v{b}, s63, v{t0}
v_lshlrev_b32 v{c}, 16, v{t1}
v_and_b32 v{d}, s63, v{t1}""".format(a=a, b=b, c=c, d=d, t0=tmp, t1=tmp + 1))

    vQ = 4
    vMask = 8
    vT0, vU0, vX0 = 12, 14, 2
    vA = 16
    vAcc = 24
    vS0, vS1, vR, vT, vT2, vPK, vM, vMC, vL = 28, 29, 30, 31, 32, 33, 34, 35, 36
    vAddr, vSA, vTag = 37, 38, 39
    vKA, vKB, vVA, vVB = 40, 41, 42, 43
    vQM = 44
    RING = 60
    assert zg == 4
    assert D % 16 == 0 and n + q <= D and D % q == 0
    def rr(t):
        b = RING + (t % D) * 4
        return 'v[%d:%d]' % (b, b + 3)
    HALF = 2048
    TOT = 2 * HALF
    sec('stream')
    A("""L_S:
s_lshl_b32 s52, s2, 21
s_lshr_b32 s53, s2, 11
s_add_u32 s32, s6, s52
s_addc_u32 s33, s7, s53
s_mov_b32 s34, 0x200000
s_mov_b32 s35, 0x20000
s_add_u32 s36, s8, s52
s_addc_u32 s37, s9, s53
s_mov_b32 s38, 0x200000
s_mov_b32 s39, 0x20000
s_mov_b32 s54, 0
s_mov_b32 s53, 0
v_lshrrev_b32 v2, 4, v0
v_and_b32 v3, 3, v0
v_lshlrev_b32 v3, 4, v3
v_lshl_add_u32 v{QA}, v2, 6, v3
v_bfe_u32 v3, v0, 2, 2
v_lshl_add_u32 v{KA}, v3, 8, v{QA}
v_add_u32 v{KB}, {z}, v{KA}
v_and_b32 v3, 15, v0
v_lshlrev_b32 v3, 4, v3
v_lshl_add_u32 v{VA}, v2, 10, v3
v_add_u32 v{VB}, {z}, v{VA}
v_add_u32 v{QA}, {lq}, v{QA}""".format(QA=vS0, KA=vKA, KB=vKB, VA=vVA, VB=vVB, z=Z * 1024, lq=L_Q))
    st = {'issued': 0, 'landed': -1}
    info = {}
    def issue(t):
        sr, so = ('s[32:35]', 's54') if t < HALF else ('s[36:39]', 's53')
        r = t % (2 * zg)
        if t < HALF: A('buffer_load_dwordx4 %s, v%d, %s, %s offen offset:%d nt' % (rr(t), vKA if r < zg else vKB, sr, so, (r % zg) * 1024))
        else: A('buffer_load_dwordx4 %s, v%d, %s, %s offen offset:%d nt' % (rr(t), vVA if r < zg else vVB, sr, so, (r % zg) * 256))
        if r == 2 * zg - 1:
            A('s_add_u32 s68, %s, %d\ns_xor_b32 s69, s68, %s\ns_and_b32 s69, s69, %d\ns_add_u32 %s, s68, s69' % (so, zg * 1024, so, Z * 1024, so))
        st['issued'] = t + 1
    def wait_landed(t):
        c = st['issued'] - 1 - t
        assert 0 <= c < 63
        if t > st['landed']:
            A('s_waitcnt vmcnt(%d)' % c)
            st['landed'] = t
    def dpp(op, d, a, ctl, bank=0xf):
        A('%s_dpp v%d, v%d, v%d %s row_mask:0xf bank_mask:%s' % (op, d, a, a, ctl, hex(bank)))
    lane_of = lambda j: 4 * (j & 3) + (j >> 2)
    GPB = D // 16
    def sc_off(grp):
        return (grp % GPB) * 256
    def prepA(u):
        a = u % 8
        grp = u // 8
        if a == 0:
            A("""s_waitcnt lgkmcnt(0)
v_fma_f32 v{T}, v{R}, s55, -v{MC}
v_exp_f32 v{T}, v{T}""".format(T=vT, R=vR, MC=vMC))
            if grp + 1 < HALF // 16:
                if (grp + 1) % GPB == 0: A('v_add_u32 v%d, %d, v%d' % (vSA, GPB * 256, vSA))
                A('ds_read_b32 v%d, v%d offset:%d' % (vR, vSA, sc_off(grp + 1)))
            else:
                A('s_nop 0')
            A("""v_cvt_pk_bf16_f32 v{PK}, v{T}, v{T}
v_add_f32 v{Lr}, v{Lr}, v{T}
s_nop 0""".format(T=vT, PK=vPK, Lr=vL))
        for i in range(2):
            for k in range(4):
                A('v_and_b32_dpp v%d, v%d, v%d row_newbcast:%d row_mask:0xf bank_mask:0xf' % (vA + 4 * i + k, vPK, vMask + k, lane_of(2 * a + i)))
    def finish_l():
        for ctl in ('row_ror:8', 'row_ror:4', 'row_ror:2', 'row_ror:1'):
            dpp('v_add_f32', vL, vL, ctl); A('s_nop 1')
        A("""v_mov_b32 v{T}, v{Lr}
s_nop 1
v_permlane16_swap_b32 v{Lr}, v{T}
v_add_f32 v{Lr}, v{Lr}, v{T}
v_mov_b32 v{T}, v{Lr}
s_nop 1
v_permlane32_swap_b32 v{Lr}, v{T}
v_add_f32 v{Lr}, v{Lr}, v{T}
v_rcp_f32 v{Lr}, v{Lr}""".format(T=vT, Lr=vL))
        if loc & 1: A('ds_read_b32 v%d, v%d offset:8\ns_waitcnt lgkmcnt(0)\nv_readfirstlane_b32 s60, v%d' % (vT2, vT0 + 1, vT2))
    def pad_after_mfma(acc, need=8):
        have = 0
        for x in reversed(cur[0]):
            if x.startswith('v_mfma') and x.split()[1].startswith('v[%d:' % acc): break
            if x.endswith(':'):
                have += 1; break
            have += int(x.split()[1]) + 1 if x.startswith('s_nop') else 1
        if have < need: A('s_nop %d' % (need - have - 1))
    def post(c):
        acc = vA + 4 * (c & 1); a = c % 4
        x = vU0 + (a & 1)
        pad_after_mfma(acc)
        A('v_cndmask_b32 v%d, v%d, v%d, s[70:71]' % (vT0, acc, acc + 1))
        A('v_cndmask_b32 v%d, v%d, v%d, s[70:71]' % (vT0 + 1, acc + 2, acc + 3))
        A('v_cndmask_b32 v%d, v%d, v%d, s[72:73]' % (x, vT0, vT0 + 1))
        if a & 1:
            cc = a >> 1
            dpp('v_add_f32', vU0, vU0, 'quad_perm:[1,0,3,2]')
            A('s_nop 0')
            dpp('v_add_f32', vU0 + 1, vU0 + 1, 'quad_perm:[1,0,3,2]')
            A('v_cndmask_b32 v%d, v%d, v%d, s[70:71]' % (vX0 + cc, vU0, vU0 + 1))
            if cc:
                dpp('v_add_f32', vX0, vX0, 'quad_perm:[2,3,0,1]')
                A('s_nop 0')
                dpp('v_add_f32', vX0 + 1, vX0 + 1, 'quad_perm:[2,3,0,1]')
                grp = c // 4
                A('v_cndmask_b32 v%d, v%d, v%d, s[72:73]' % (vR, vX0, vX0 + 1))
                A('v_max_f32 v%d, v%d, v%d' % (vM, vM, vR))
                A('ds_write_b32 v%d, v%d offset:%d' % (vSA, vR, sc_off(grp)))
                if (grp + 1) % GPB == 0 and grp + 1 < HALF // 16: A('v_add_u32 v%d, %d, v%d' % (vSA, GPB * 256, vSA))
    def proc(u):
        t = 2 * u
        if t < HALF:
            if noproc & 1: return
            c = t // 4
            acc = vA + 4 * (c & 1)
            for i in range(2):
                j = (t + i) % 4
                A('v_mfma_f32_16x16x32_bf16 v[%d:%d], v[%d:%d], %s, %s' % (acc, acc + 3, vQM + 4 * j, vQM + 4 * j + 3, rr(t + i), '0' if j == 0 else 'v[%d:%d]' % (acc, acc + 3)))
            if t % 4 == 0 and c > 0: post(c - 1)
            if t + 2 == HALF: post(c)
            if t + 2 == HALF:
                A('v_subrev_u32 v%d, %d, v%d' % (vSA, ((HALF // 16 - 1) // GPB) * GPB * 256, vSA))
                A('ds_read_b32 v%d, v%d' % (vR, vSA))
                A('v_mov_b32 v%d, %d' % (vT0 + 1, L_CTL))
                for ctl in ('row_ror:8', 'row_ror:4', 'row_ror:2', 'row_ror:1'):
                    dpp('v_max_f32', vM, vM, ctl); A('s_nop 1')
                for sw in ('v_permlane16_swap_b32', 'v_permlane32_swap_b32'):
                    A('v_mov_b32 v{T}, v{M}\ns_nop 1\n{sw} v{M}, v{T}\nv_max_f32 v{M}, v{M}, v{T}'.format(T=vT, M=vM, sw=sw))
                A('v_mul_f32 v%d, s55, v%d\ns_barrier' % (vMC, vM))
                prepA(0)
        else:
            if noproc & 2: return
            if cur[0][-1].startswith('v_and'): A('s_nop 0')
            A('v_mfma_f32_16x16x32_bf16 v[%d:%d], v[%d:%d], %s, v[%d:%d]' % (vAcc, vAcc + 3, vA, vA + 3, rr(t), vAcc, vAcc + 3))
            A('v_mfma_f32_16x16x32_bf16 v[%d:%d], v[%d:%d], %s, v[%d:%d]' % (vAcc, vAcc + 3, vA + 4, vA + 7, rr(t + 1), vAcc, vAcc + 3))
            uu = u - HALF // 2
            if uu + 1 < HALF // 2: prepA(uu + 1)
            if uu + 1 == HALF // 2 - 8:
                pass
    win = [n]
    def paced_issue(cnt):
        for _ in range(cnt // q):
            t = st['issued']
            if t + q - 1 - win[0] >= 0:
                wait_landed(t + q - 1 - win[0])
            for i in range(q): issue(t + i)
    n0 = (n // q) * q
    def job_off(dst, jreg, rowbytes, bits=0):
        if bits:
            A('''s_and_b32 s68, {j}, {m}
s_lshr_b32 s69, {j}, {b}
s_mul_i32 {d}, s68, {rb}
s_lshl_b32 s69, s69, 7
s_add_u32 {d}, {d}, s69'''.format(j=jreg, d=dst, rb=rowbytes, m=(1 << bits) - 1, b=bits))
            return
        A('''s_mul_i32 s68, {j}, 7282
s_lshr_b32 s68, s68, 16
s_mul_i32 s69, s68, 9
s_sub_u32 s69, {j}, s69
s_mul_i32 {d}, s68, {rb}
s_lshl_b32 s69, s69, 7
s_add_u32 {d}, {d}, s69'''.format(j=jreg, d=dst, rb=rowbytes))
    def side_dma(cnt, sr, so, step, ldsreg, vreg):
        for i in range(cnt):
            A('s_mov_b32 m0, %d\ns_waitcnt vmcnt(%d)\nbuffer_load_dwordx4 %s, %s, %s offen nt lds\ns_add_u32 %s, %s, %s' % (ldsreg + i * 1024, w0 - 1, vreg, sr, so, so, so, step))
    A('''v_lshrrev_b32 v4, 3, v0
v_and_b32 v5, 7, v0
v_lshlrev_b32 v5, 4, v5
v_mul_u32_u24 v6, 1152, v4
v_add_u32 v6, v6, v5
v_mul_u32_u24 v7, 9216, v4
v_add_u32 v7, v7, v5''')
    srd(44, 12, 4096 * 1152)
    A('''s_and_b32 s68, s2, 7
s_bfe_u32 s69, s2, 0x10003
s_lshl_b32 s69, s69, 4
s_add_u32 s68, s68, s69
s_mul_i32 s75, s68, 147456
s_lshr_b32 s69, s2, 4
s_lshl_b32 s69, s69, 7
s_add_u32 s75, s75, s69
s_add_u32 s77, s75, 1179648
s_mov_b32 s78, %d''' % L_QW)
    A('''s_cmp_ge_u32 s2, 184
s_cbranch_scc1 L_S_down
s_cmp_lt_u32 s2, 40
s_cbranch_scc1 L_S_light
s_cmp_lt_u32 s2, 112
s_cselect_b32 s40, s16, s18
s_cselect_b32 s41, s17, s19
s_cselect_b32 s74, 40, 112
s_mov_b32 s42, 5308416
s_mov_b32 s43, 0x20000
s_sub_u32 s74, s2, s74
s_lshr_b32 s74, s74, 3
s_and_b32 s76, s2, 7
s_mul_i32 s76, s76, 9
s_add_u32 s74, s74, s76
s_lshl_b32 s74, s74, 7
s_mov_b32 s76, 73728
s_branch L_S_big
L_S_down:
s_sub_u32 s74, s2, 184''')
    job_off('s74', 's74', 663552, 3 if rm & 2 else 0)
    srd(40, 20, 4608 * 1152)
    A('''s_mov_b32 s76, 9216
v_mov_b32 v7, v6
L_S_big:''')
    if b0: A('s_barrier')
    if sm & 4: side_dma(72, 's[40:43]', 's74', 's76', L_W, 'v7')
    A('s_cmp_ge_u32 s2, 144\ns_cbranch_scc1 L_S_k\ns_branch L_S_wo\nL_S_light:\ns_mov_b32 s78, %d' % L_W)
    if b0: A('s_barrier')
    A('L_S_wo:')
    if sm & 2:
        for i in range(32):
            so = 's75' if i < 16 else 's77'
            A('s_add_u32 m0, s78, %d\ns_waitcnt vmcnt(%d)\nbuffer_load_dwordx4 v6, s[44:47], %s offen nt lds\ns_add_u32 %s, %s, 9216' % (i * 1024, w0 - 1, so, so, so))
    A('L_S_k:')
    for t in range(n0):
        A('s_waitcnt vmcnt(%d)' % (max(w0, n0) - 1))
        issue(t)
    A("""v_and_b32 v{T}, 1, v0
v_lshlrev_b32 v{T}, 4, v{T}
v_mov_b32 v{T2}, 0xffff
v_lshlrev_b32 v{T2}, v{T}, v{T2}
v_bfe_u32 v{T}, v0, 1, 3""".format(T=vT, T2=vT2))
    for j in range(4):
        A('v_cmp_eq_u32 vcc, %d, v%d\ns_nop 1\nv_cndmask_b32 v%d, 0, v%d, vcc' % (j, vT, vMask + j, vT2))
    epoch(vTag)
    A("""v_mov_b32 v{M}, 0xff800000
v_mov_b32 v{Lr}, 0
v_mov_b32 v{a0}, 0
v_mov_b32 v{a1}, 0
v_mov_b32 v{a2}, 0
v_mov_b32 v{a3}, 0
s_mov_b32 s55, {csc}
s_mov_b32 s70, 0xaaaaaaaa
s_mov_b32 s71, 0xaaaaaaaa
s_mov_b32 s72, 0xcccccccc
s_mov_b32 s73, 0xcccccccc
v_and_b32 v{T}, 15, v0
v_lshlrev_b32 v{T}, 4, v{T}
v_and_b32 v{T2}, 16, v0
v_lshl_add_u32 v{Ad}, v{T}, 1, v{T2}
s_lshl_b32 s57, s31, 3
s_add_u32 s57, s57, s30
s_lshl_b32 s57, s57, 9
s_add_u32 s57, s57, {orec}
s_mov_b32 s63, 0xffff0000
s_mov_b32 s58, {lsc}
v_lshl_add_u32 v{SA}, v0, 2, s58""".format(M=vM, Lr=vL, a0=vAcc, a1=vAcc + 1, a2=vAcc + 2, a3=vAcc + 3, csc=hex(CSC), T=vT, T2=vT2,
                              Ad=vAddr, SA=vSA, lsc=L_SC, orec=OREC))
    paced_issue(D - n0 - ((D - n0) & 1))
    A('s_barrier')
    A('ds_read_b128 v[%d:%d], v%d\nv_bfe_u32 v%d, v0, 2, 2' % (vQ, vQ + 3, vS0, vT))
    for j in range(4): A('v_cmp_eq_u32 s[%d:%d], %d, v%d' % (76 + 2 * j, 77 + 2 * j, j, vT))
    A('s_waitcnt lgkmcnt(0)')
    for j in range(4):
        for i in range(4): A('v_cndmask_b32 v%d, 0, v%d, s[%d:%d]' % (vQM + 4 * j + i, vQ + i, 76 + 2 * j, 77 + 2 * j))
    A('s_nop 0')
    done = [0]
    extra = [0]
    def do_proc():
        u = done[0]
        wait_landed(2 * u + 1)
        proc(u)
        done[0] += 1
    if not na: na = n0
    assert na >= n0 and (na - n0) % 2 == 0 and na + 2 <= D and nend <= na
    target_ahead = 2 + na
    k1 = n0 // 2 if D > target_ahead else 0
    for _ in range(k1):
        do_proc(); paced_issue(2)
    while st['issued'] - 2 * done[0] > target_ahead - 2:
        if st['issued'] - 2 * done[0] >= target_ahead + 2:
            do_proc(); do_proc(); paced_issue(2)
        else:
            do_proc()
    def steady():
        paced_issue(2); do_proc()
    def loop(name, limit):
        while (2 * done[0]) % D != 0: steady()
        niter = (limit - st['issued']) // D
        assert niter >= 2
        kc = ctl and gK >= 0
        info['cntK'] = niter - niter * pK // 100
        A('s_mov_b32 s58, %d' % niter)
        if kc: A('v_mov_b32 v%d, %d' % (vS1, L_CTL))
        snap = (dict(st), done[0])
        for vi, (nm, w) in enumerate([(name, n)] + ([(name + 'f', nf), (name + 's', ns)] if kc else [])):
            st.update(snap[0]); done[0] = snap[1]
            st['landed'] = 2 * done[0] - 1
            win[0] = w
            if vi: sec('stream2')
            A(nm + ':')
            if kc: A('ds_read_b32 v%d, v%d' % (vT2, vS1))
            for _ in range(D // 2): steady()
            if vi: A('s_branch L_Kdisp')
        win[0] = n
        sec('stream')
        A("""L_Kdisp:
s_sub_u32 s58, s58, 1
s_cmp_eq_u32 s58, %d
s_cbranch_scc1 L_midC
L_midCback:""" % info['cntK'])
        if kc:
            A("""s_waitcnt lgkmcnt(0)
v_readfirstlane_b32 s60, v{c}
s_cmp_eq_u32 s58, 0
s_cbranch_scc1 L_Kexit
s_lshr_b32 s61, s60, 2
s_cmp_gt_u32 s58, s61
s_cselect_b32 s60, s60, 0
s_bitcmp1_b32 s60, 0
s_cbranch_scc1 {nm}f
s_bitcmp1_b32 s60, 1
s_cbranch_scc1 {nm}s
s_branch {nm}
L_Kexit:
v_mov_b32 v{c}, 0
ds_write_b32 v{a}, v{c}""".format(c=vT2, nm=name, a=vS1))
        else:
            A('s_cmp_lg_u32 s58, 0\ns_cbranch_scc1 %s' % name)
        st['issued'] += (niter - 1) * D
        done[0] += (niter - 1) * (D // 2)
        st['landed'] = 2 * done[0] - 1
    loop('L_loopK', HALF)
    while 2 * done[0] < HALF or (2 * done[0] - HALF) % D != 0: steady()
    assert HALF % D == 0 or True
    loop2_base = done[0]
    niter = (TOT - D - st['issued']) // D
    nit2 = kend // D if nend else 0
    niter -= nit2
    cps = [niter - niter * p // 100 for p in (pB, pC, pD) if p]
    info['cntA'], info['cps'] = niter, cps
    A('s_mov_b32 s58, %d\ns_mov_b32 s75, %d\ns_and_b32 s74, s75, 0xff' % (niter, sum(c << (8 * i) for i, c in enumerate(cps)) | (0xff << (8 * len(cps))) & 0xffffffff))
    variants = [('L_loopV', n)] + ([('L_loopVf', nf), ('L_loopVs', ns)] if ctl else [])
    assert not ctl or nf <= na
    snap = (dict(st), done[0])
    for vi, (name, w) in enumerate(variants):
        st.update(snap[0]); done[0] = snap[1]
        st['landed'] = 2 * done[0] - 1
        win[0] = w
        if vi: sec('stream2')
        A(name + ':')
        if ctl: A('ds_read_b32 v%d, v%d' % (vT2, vT0 + 1))
        for _ in range(D // 2): steady()
        if vi: A('s_branch L_Vdisp')
    win[0] = n
    sec('stream')
    A("""L_Vdisp:
s_sub_u32 s58, s58, 1
s_cmp_eq_u32 s58, s74
s_cbranch_scc1 L_midB
L_midBback:""")
    if ctl:
        A("""v_readfirstlane_b32 s60, v{c}
s_cmp_eq_u32 s58, 0
s_cbranch_scc1 L_Vexit
s_lshr_b32 s61, s60, 2
s_cmp_gt_u32 s58, s61
s_cselect_b32 s60, s60, 0
s_bitcmp1_b32 s60, 0
s_cbranch_scc1 L_loopVf
s_bitcmp1_b32 s60, 1
s_cbranch_scc1 L_loopVs
s_branch L_loopV
L_Vexit:""".format(c=vT2))
    else:
        A('s_cmp_lg_u32 s58, 0\ns_cbranch_scc1 L_loopV')
    st['issued'] += (niter - 1) * D
    st['landed'] += (niter - 1) * D
    done[0] += (niter - 1) * (D // 2)
    st['landed'] = 2 * done[0] - 1
    if nend: win[0] = nend
    if nit2:
        st['landed'] = 2 * done[0] - 1
        A('s_mov_b32 s58, %d\nL_loopV2:' % nit2)
        for _ in range(D // 2): steady()
        A('s_sub_u32 s58, s58, 1\ns_cmp_lg_u32 s58, 0\ns_cbranch_scc1 L_loopV2')
        st['issued'] += (nit2 - 1) * D
        st['landed'] += (nit2 - 1) * D
        done[0] += (nit2 - 1) * (D // 2)
    while st['issued'] < TOT: steady()
    ml_done = False
    while done[0] < TOT // 2:
        if not ml_done and done[0] + 1 >= TOT // 2 - 8 + 1:
            finish_l(); ml_done = True
        do_proc()
    A("""s_mov_b32 exec_hi, 0
s_cmp_eq_u32 s60, 1
s_nop 5
v_mul_f32 v4, v{a0}, v{Lr}
v_mul_f32 v5, v{a1}, v{Lr}
v_mul_f32 v6, v{a2}, v{Lr}
v_mul_f32 v7, v{a3}, v{Lr}
v_cvt_pk_bf16_f32 v2, v4, v5
v_cvt_pk_bf16_f32 v3, v6, v7
v_lshl_or_b32 v4, v2, 16, v{tg}
v_and_or_b32 v5, v2, s63, v{tg}
v_lshl_or_b32 v6, v3, 16, v{tg}
v_and_or_b32 v7, v3, s63, v{tg}
{st}
s_barrier""".format(st=('s_cbranch_scc1 L_oloc\nbuffer_store_dwordx4 v[4:7], v%d, s[48:51], s57 offen sc1\ns_branch L_odone\nL_oloc:\nbuffer_store_dwordx4 v[4:7], v%d, s[48:51], s57 offen\nL_odone:' % (vAddr, vAddr))
                 if loc & 1 else 'buffer_store_dwordx4 v[4:7], v%d, s[48:51], s57 offen %s' % (vAddr, 'sc1' if dbl < 0 else ''), a0=vAcc, a1=vAcc + 1, a2=vAcc + 2, a3=vAcc + 3, Ad=vAddr, Lr=vL, tg=vTag))
    if diag:
        A('s_mov_b64 exec, -1')
        stamp(3)
        A('s_mov_b32 exec_hi, 0')
    if dbl >= 0:
        A('s_waitcnt vmcnt(0)')
        if dbl: A('s_sleep %d' % dbl)
        A('buffer_store_dwordx4 v[4:7], v%d, s[48:51], s57 offen sc1' % vAddr)
    A('s_endpgm')
    A('L_midB:' + ('\ns_memrealtime s[94:95]' if diag == 5 else '') + '\ns_barrier\ns_lshr_b32 s75, s75, 8\ns_and_b32 s74, s75, 0xff\ns_branch L_midBback')
    A('L_midC:' + ('\ns_memrealtime s[96:97]' if diag == 5 else '') + '\ns_barrier\ns_branch L_midCback')

    XF = 72
    AC = 16
    AC2 = 32
    FR = 144
    PUB = 64
    def ha_setup1():
        srd(36, 4, 9216)
        A("""v_and_b32 v5, 7, v0
v_mul_u32_u24 v9, 1152, v5
v_lshrrev_b32 v8, 4, v0
v_lshl_add_u32 v9, v8, 4, v9""")
    def ha_setup2():
        trbase(6, 128, 16, 10)
        A("""v_and_b32 v10, 8, v0
v_lshlrev_b32 v12, 1, v10
v_lshl_add_u32 v12, v8, 5, v12
v_cmp_ne_u32 s[66:67], 0, v10""")
        epoch()
    def wdma(ldsoff, step, sr='s[32:35]', so='s54'):
        A('s_mov_b32 m0, %d\ns_nop 0\nbuffer_load_dwordx4 v4, %s, %s offen nt lds\ns_add_u32 %s, %s, %s' % (ldsoff, sr, so, so, so, step))
    def w_reads(ks, base, koff, hfs=512):
        b = FR + (ks % 2) * 16
        for nt in range(4):
            for hf in range(2):
                off = koff * 4096 + hf * hfs + (nt >> 1) * 64 + (nt & 1) * 8
                r = b + nt * 4 + hf * 2
                A('ds_read_b64_tr_b16 v[%d:%d], v%d offset:%d' % (r, r + 1, base, off))
    def w_mfma(ks, acc, xreg, first):
        b = FR + (ks % 2) * 16
        for nt in range(4):
            A('v_mfma_f32_16x16x32_bf16 v[%d:%d], v[%d:%d], v[%d:%d], %s' % (acc + nt * 4, acc + nt * 4 + 3, b + nt * 4, b + 3 + nt * 4, xreg, xreg + 3,
              '0' if first else 'v[%d:%d]' % (acc + nt * 4, acc + nt * 4 + 3)))
    def select8(dst, acc):
        for i in range(2):
            for e in range(4):
                A('v_cndmask_b32 v%d, v%d, v%d, s[66:67]' % (dst + 4 * i + e, acc + 8 * i + e, acc + 8 * i + 4 + e))
    def publish(linestride, local=False):
        if local:
            l1, l2 = newlab('L_ploc'), newlab('L_pdn')
            A('s_cmp_eq_u32 s64, 1\ns_cbranch_scc1 %s' % l1)
        for i in range(2):
            A('buffer_store_dwordx4 v[%d:%d], v11, s[48:51], s57 offen offset:%d sc1%s' % (PUB + 4 * i, PUB + 3 + 4 * i, i * linestride, ' nt' if snt & 1 else ''))
        if local:
            A('s_branch %s\n%s:' % (l2, l1))
            for i in range(2):
                A('buffer_store_dwordx4 v[%d:%d], v11, s[48:51], s57 offen offset:%d%s' % (PUB + 4 * i, PUB + 3 + 4 * i, i * linestride, ' nt' if snt & 4 else ''))
            A(l2 + ':')
    def publish_f32(linestride, local=False):
        A('s_nop 6')
        select8(PUB, AC)
        for i in range(8): A('v_bfi_b32 v%d, s59, v%d, v62' % (PUB + i, PUB + i))
        publish(linestride, local)

    sec('haq')
    A('L_HA:')
    if prio: A('s_setprio %d' % prio)
    A('s_sub_u32 s52, s2, 16\ns_cmp_lt_u32 s52, 128\ns_cbranch_scc1 L_HA_noq')
    srd(32, 10, 576 * 8192)
    ha_setup1()
    A("""s_lshr_b32 s52, s2, 3
s_and_b32 s52, s52, 15
s_and_b32 s53, s52, 1
s_bfe_u32 s54, s52, 0x10001
s_lshr_b32 s52, s52, 2
s_lshl_b32 s52, s52, 3
s_and_b32 s55, s2, 7
s_add_u32 s52, s52, s55
s_lshl_b32 s52, s52, 1
s_add_u32 s52, s52, s54
s_mul_i32 s54, s53, 2359296
s_lshl_b32 s55, s52, 7
s_add_u32 s54, s54, s55
s_mul_i32 s56, s53, 576
v_lshrrev_b32 v4, 3, v0
v_lshlrev_b32 v4, 13, v4
v_lshl_add_u32 v4, v5, 4, v4""")
    for ks in range(9):
        A('buffer_load_dwordx4 v[%d:%d], v9, s[36:39], s56 offen offset:%d%s' % (XF + 4 * ks, XF + 4 * ks + 3, ks * 64, ' nt' if xnt else ''))
    for i in range(36):
        wdma(L_QW + i * 1024, '65536')
        if b0 and i == b0q: A('s_barrier')
    ha_setup2()
    A("""v_lshlrev_b32 v11, 15, v5
v_add_u32 v11, v11, v12
s_lshl_b32 s57, s52, 1
s_add_u32 s57, s57, s53
s_lshl_b32 s57, s57, 8
s_add_u32 s57, s57, %d""" % QP)
    xq = 1 if loc & 2 else 0
    if xq: class_load(60, 61)
    A('s_waitcnt vmcnt(%d)' % (32 + xq))
    w_reads(0, 6, 0)
    for ks in range(9):
        if ks + 1 < 9:
            A('s_waitcnt vmcnt(%d)' % (28 - 4 * ks + xq))
            w_reads(ks + 1, 6, ks + 1)
            A('s_waitcnt lgkmcnt(8)')
        else:
            A('s_waitcnt lgkmcnt(0)')
        w_mfma(ks, AC, XF + 4 * ks, ks == 0)
    if xq:
        A('s_waitcnt vmcnt(0)')
        class_test(60, 's64')
    publish_f32(128, bool(xq))
    if qgate: A('v_mov_b32 v2, %d\nv_mov_b32 v3, 1\nds_write_b32 v2, v3' % (L_CTL + 4))
    stamp(5)
    A('s_branch L_HA2')

    sec('ha2')
    def xloads():
        for ks in range(18):
            if ks >= wa: A('s_waitcnt vmcnt(%d)' % (wa - 1))
            A('buffer_load_dwordx4 v[%d:%d], v9, s[36:39], 0 offen offset:%d%s' % (XF + 4 * ks, XF + 4 * ks + 3, ks * 64, ' nt' if xnt else ''))
    A("""L_HA_noq:
s_setprio 0""")
    ha_setup1()
    if b0: A('s_barrier')
    ha_setup2()
    A('s_cmp_lt_u32 s2, 40\ns_cbranch_scc1 L_HA_idle')
    xloads()
    A('s_waitcnt vmcnt(0)')
    if qgate: A('v_mov_b32 v2, %d\nv_mov_b32 v3, 1\nds_write_b32 v2, v3' % (L_CTL + 4))
    A('s_barrier')
    if not sm & 8: A('s_endpgm')
    A("""s_branch L_FFN1x
L_HA_idle:
s_barrier
s_endpgm
L_HA2:
s_setprio 0
s_barrier""")
    if not sm & 8: A('s_endpgm')
    A("""s_cmp_ge_u32 s2, 184
s_cbranch_scc1 L_FFN2
s_cmp_lt_u32 s2, 40
s_cbranch_scc1 L_end""")
    xloads()
    A('L_FFN1x:')
    A("""v_add_u32 v6, {lw}, v6
v_add_u32 v7, 36864, v6
v_mul_u32_u24 v11, 18432, v5
v_add_u32 v11, v11, v12
s_cmp_lt_u32 s2, 112
s_cselect_b32 s52, 40, 112
s_sub_u32 s52, s2, s52
s_lshr_b32 s52, s52, 3
s_and_b32 s53, s2, 7
s_mul_i32 s53, s53, 9
s_add_u32 s52, s52, s53
s_lshl_b32 s52, s52, 8
s_add_u32 s57, s52, {preg}
v_mov_b32 v13, {lf}
s_waitcnt vmcnt(0)""".format(lw=L_W, preg=PREG, lf=L_CTL + 8))
    w_reads(0, 6, 0)
    for ks in range(18):
        if ks + 1 < 18:
            w_reads(ks + 1, 6 if ks + 1 < 9 else 7, (ks + 1) % 9)
            A('s_waitcnt lgkmcnt(8)')
        else:
            A('s_waitcnt lgkmcnt(0)')
        w_mfma(ks, AC, XF + 4 * ks, ks == 0)
    A('s_cmp_ge_u32 s2, 112\ns_cbranch_scc1 L_UP')
    A('ds_read_b32 v3, v13\ns_waitcnt lgkmcnt(0)\nv_readfirstlane_b32 s64, v3')
    publish_f32(128, bool(loc & 4))
    stamp(9)
    A('s_barrier\ns_branch L_FIN')
    A("""L_UP:
s_mov_b32 s58, {nl}
s_mov_b32 s63, 0xffff0000
s_nop 3""".format(nl=hex(NLOG2E)))
    select8(PUB, AC)
    for i in range(2): round4([PUB + 4 * i + e for e in range(4)], 56)
    A('s_barrier')
    poll_tag(['buffer_load_dwordx4 v[%d:%d], v11, s[48:51], s57 offen offset:%d %s' % (48 + 4 * i, 51 + 4 * i, i * 128, MF) for i in range(2)],
             range(48, 56), slp)
    for e in range(8): A('v_and_b32 v%d, s59, v%d' % (48 + e, 48 + e))
    for i in range(2): round4([48 + 4 * i + e for e in range(4)], 56)
    for e in range(8): A('v_mul_f32 v%d, s58, v%d' % (16 + e, 48 + e))
    for e in range(8): A('v_exp_f32 v%d, v%d' % (16 + e, 16 + e))
    for e in range(8): A('v_add_f32 v%d, 1.0, v%d' % (16 + e, 16 + e))
    for e in range(8): A('v_rcp_f32 v%d, v%d' % (16 + e, 16 + e))
    for e in range(8): A('v_mul_f32 v%d, v%d, v%d' % (48 + e, 48 + e, 16 + e))
    for i in range(2): round4([48 + 4 * i + e for e in range(4)], 56)
    for e in range(8): A('v_mul_f32 v%d, v%d, v%d' % (PUB + e, PUB + e, 48 + e))
    for i in range(2): round4([PUB + 4 * i + e for e in range(4)], 56)
    for e in range(8): A('v_or_b32 v%d, v%d, v62' % (PUB + e, PUB + e))
    A('ds_read_b32 v3, v13\ns_add_u32 s57, s52, %d\ns_waitcnt lgkmcnt(0)\nv_readfirstlane_b32 s64, v3' % HM)
    publish(128, bool(loc & 8))
    stamp(9)
    A('s_branch L_FIN')

    A('L_FFN2:')
    trbase(6, 128, 16, 10, 4)
    if rm & 2: A('s_sub_u32 s53, s2, 184\ns_and_b32 s52, s53, 7\ns_lshr_b32 s53, s53, 3')
    else: A('s_sub_u32 s53, s2, 184\ns_mul_i32 s52, s53, 7282\ns_lshr_b32 s52, s52, 16\ns_mul_i32 s54, s52, 9\ns_sub_u32 s53, s53, s54')
    A("""v_add_u32 v6, {lw}, v6
v_add_u32 v7, 36864, v6
v_mul_u32_u24 v9, 18432, v5
v_lshl_add_u32 v9, v8, 4, v9
v_and_b32 v10, 8, v0
v_lshl_add_u32 v9, v10, 3, v9
s_mul_i32 s56, s52, 2304
s_add_u32 s56, s56, {hm}
s_mov_b32 s58, 0x07060302
v_mul_u32_u24 v11, 18432, v5
v_add_u32 v11, v11, v12
s_lshl_b32 s57, s53, 11
s_lshl_b32 s63, s52, 7
s_add_u32 s57, s57, s63
s_add_u32 s57, s57, {fin}
s_barrier
s_barrier""".format(lw=L_W, hm=HM, fin=FIN))
    def pack_frags(raw, cnt, sel):
        for k in range(cnt):
            r = raw + 4 * k
            A('v_perm_b32 v%d, v%d, v%d, %s\nv_perm_b32 v%d, v%d, v%d, %s' % (r, r + 1, r, sel, r + 1, r + 3, r + 2, sel))
        for k in range(cnt):
            r = raw + 4 * k
            for t in range(2):
                A('v_mov_b32_dpp v%d, v%d row_ror:8 row_mask:0xf bank_mask:0xf' % (r + 2 + t, r + t))
    def spread8(acc):
        for i in range(2):
            for e in range(4):
                A('v_mov_b32_dpp v%d, v%d row_ror:8 row_mask:0xf bank_mask:0xc' % (acc + 8 * i + e, acc + 8 * i + 4 + e))
    poll_tag(['buffer_load_dwordx4 v[%d:%d], v9, s[48:51], s56 offen offset:%d %s' % (XF + 4 * k, XF + 4 * k + 3, k * 128, MF) for k in range(18)],
             range(XF, XF + 72), slp)
    pack_frags(XF, 18, 's58')
    w_reads(0, 6, 0, 2048)
    for k in range(18):
        if k + 1 < 18:
            w_reads(k + 1, 6 if k + 1 < 9 else 7, (k + 1) % 9, 2048)
            A('s_waitcnt lgkmcnt(8)')
        else:
            A('s_waitcnt lgkmcnt(0)')
        w_mfma(k, AC, XF + 4 * k, k == 0)
    A('s_nop 7')
    spread8(AC)
    for i in range(2):
        for e in range(4): A('v_bfi_b32 v%d, s59, v%d, v62' % (PUB + 4 * i + e, AC + 8 * i + e))
    publish(1024)
    stamp(9)
    A('s_endpgm')

    sec('hbq')
    A('L_HB:')
    if prio: A('s_setprio %d' % prio)
    A("""v_bfe_u32 v6, v0, 3, 1
v_lshlrev_b32 v6, 9, v6
v_bfe_u32 v7, v0, 4, 1
v_lshl_add_u32 v6, v7, 8, v6
v_and_b32 v5, 7, v0
v_lshl_add_u32 v6, v5, 5, v6
v_lshrrev_b32 v7, 5, v0
v_lshl_add_u32 v6, v7, 4, v6
s_lshl_b32 s56, s30, 6
s_lshl_b32 s57, s31, 1
s_add_u32 s56, s56, s57
s_lshl_b32 s56, s56, 9
s_add_u32 s56, s56, {qp}
v_and_b32 v5, 15, v0
v_lshlrev_b32 v5, 4, v5
v_lshl_add_u32 v5, v7, 3, v5
v_add_u32 v4, {lq}, v5""".format(qp=QP, lq=L_Q))
    if qgate: A('v_mov_b32 v2, %d\nv_mov_b32 v3, 0\nds_write_b32 v2, v3' % (L_CTL + 4))
    epoch()
    if loc:
        A("""s_getreg_b32 s65, hwreg(HW_REG_XCC_ID)
s_and_b32 s65, s65, 15
s_add_u32 s65, s65, s89
s_and_b32 s64, s2, 7
s_mul_i32 s64, s64, 1280
s_lshr_b32 s63, s2, 3
s_lshl_b32 s63, s63, 2
s_add_u32 s64, s64, s63
s_add_u32 s64, s64, {xl}
v_mov_b32 v12, 0
v_mov_b32 v13, s65
s_mov_b64 exec, 1
buffer_store_dword v13, v12, s[48:51], s64 offen {fl}
s_mov_b64 exec, -1""".format(xl=XL, fl='' if xp else 'sc1'))
    if b0: A('s_barrier')
    if qgate:
        A("""s_sub_u32 s62, s2, 16
s_cmp_lt_u32 s62, 24
s_cbranch_scc1 L_qg3
L_qg:
s_sleep 1
ds_read_b32 v3, v2
s_waitcnt lgkmcnt(0)
v_readfirstlane_b32 s62, v3
s_cmp_eq_u32 s62, 0
s_cbranch_scc1 L_qg
L_qg3:""")
    poll_tag(['buffer_load_dwordx4 v[16:19], v6, s[48:51], s56 offen %s' % QF], range(16, 20), qslp)
    stamp(12)
    A('v_mov_b32 v2, %d\nv_mov_b32 v3, 0\nds_write_b32 v2, v3' % (L_CTL + 8))
    for i in range(4): A('v_and_b32 v%d, s59, v%d' % (32 + i, 16 + i))
    for i in range(4): A('v_mov_b32 v%d, v%d' % (40 + i, 32 + i))
    for i in range(4): A('v_permlane16_swap_b32 v%d, v%d' % (32 + i, 40 + i))
    for i in range(4): A('v_add_f32 v%d, v%d, v%d' % (32 + i, 32 + i, 40 + i))
    for i in range(2): A('v_cvt_pk_bf16_f32 v%d, v%d, v%d' % (8 + i, 32 + 2 * i, 33 + 2 * i))
    if ctl: A('v_mov_b32 v2, %d\nv_mov_b32 v3, 0\nds_write_b32 v2, v3' % L_CTL)
    A("""ds_write_b64 v4, v[8:9]
s_waitcnt lgkmcnt(0)
s_barrier
s_branch L_HB2""")
    sec('hb2')
    A('L_HB2:\ns_setprio 0')
    stamp(2)
    if loc:
        class_load(14, 15)
        A('s_waitcnt vmcnt(0)')
        class_test(14, 's64')
        A('v_mov_b32 v2, %d\nv_mov_b32 v3, s64\nds_write_b32 v2, v3' % (L_CTL + 8))
    if ck == 1:
        A('''s_cmp_ge_u32 s2, 32
s_cbranch_scc1 L_nozero
s_mul_i32 s40, s2, %d
s_add_u32 s40, s40, %d
v_mov_b32 v2, 0
s_mov_b64 exec, 1
buffer_store_dword v2, v2, s[48:51], s40 offen sc1
s_mov_b64 exec, -1
L_nozero:''' % (rks, RK))
    WF = 64
    OF = 192
    FB = 164
    YA = 44
    A("""v_lshrrev_b32 v8, 4, v0
v_and_b32 v11, 8, v0
v_lshlrev_b32 v11, 3, v11
v_lshl_add_u32 v11, v8, 4, v11
v_and_b32 v10, 7, v0
v_lshl_add_u32 v12, v10, 9, v11
v_mul_u32_u24 v14, {bs}, v10
v_add_u32 v14, v14, v11
s_and_b32 s68, s2, 7
s_bfe_u32 s69, s2, 0x10003
s_lshl_b32 s69, s69, 4
s_add_u32 s68, s68, s69
s_lshl_b32 s72, s68, 12
s_add_u32 s72, s72, {orec}
s_add_u32 s73, s72, 32768
s_lshr_b32 s74, s2, 4
s_lshl_b32 s74, s74, 12
s_and_b32 s75, s2, 15
s_lshl_b32 s75, s75, 7
s_add_u32 s74, s74, s75
s_add_u32 s74, s74, {yin}
s_mov_b32 s71, 0x07060302
""".format(orec=OREC, bs=18 * 2048, yin=YIN))
    A("""s_cmp_ge_u32 s2, 144
s_cbranch_scc1 L_HB3
s_cmp_lt_u32 s2, 40
s_cselect_b32 s65, {lw}, {lqw}""".format(lw=L_W, lqw=L_QW).replace(', 0', ', 0'))
    trbase(6, 128, 8, 7, 4)
    A('v_add_u32 v6, s65, v6')
    for nt in range(4):
        for ks in range(8):
            for hf in range(2):
                r = WF + (nt * 8 + ks) * 4 + hf * 2
                A('ds_read_b64_tr_b16 v[%d:%d], v6 offset:%d' % (r, r + 1, ks * 4096 + hf * 2048 + nt * 32))
            if ks % 4 == 3: A('s_waitcnt lgkmcnt(0)')
    A('L_HB3:\ns_barrier')
    def checkpoint(k, cnt, gf, gs):
        if not ctl or gf < 0: return
        lab_ = newlab('L_nock')
        core = '''s_and_b32 s41, s2, 7
s_lshr_b32 s42, s2, 6
s_lshl_b32 s42, s42, 3
s_add_u32 s41, s41, s42
v_lshlrev_b32 v2, 2, v0
v_mov_b32 v3, s89
s_lshl_b64 s[42:43], 1, s41
s_mov_b32 exec_hi, 0
buffer_load_dword v4, v2, s[48:51], s40 offen sc1
s_mov_b64 exec, s[42:43]
buffer_store_dword v3, v2, s[48:51], s40 offen sc1
s_mov_b32 exec_lo, -1
s_waitcnt vmcnt(1)
v_cmp_eq_u32 vcc, s89, v4
s_mov_b64 exec, -1
s_mov_b32 s41, {gf}
s_mov_b32 s42, {gs}
s_bcnt1_i32_b32 s40, vcc_lo
''' if ck == 0 else '''s_add_u32 s42, s28, s40
s_addc_u32 s43, s29, 0
s_mov_b32 s40, 1
s_atomic_add s40, s[42:43], 0 glc
s_waitcnt lgkmcnt(0)''' + ('''
s_mov_b32 s41, 1
s_atomic_add s41, s[42:43], 256 glc
s_waitcnt lgkmcnt(0)''' if dum else '') + '''
s_min_u32 s40, s40, 31
s_mov_b32 s41, {gf}
s_mov_b32 s42, {gs}
''' if ck == 1 else '''s_mov_b32 s40, 16
s_mov_b32 s41, {gf}
s_mov_b32 s42, {gs}
'''
        A("""s_bfe_u32 s40, s2, 0x30003
s_mul_i32 s40, s40, {rs}
s_add_u32 s40, s40, {rk}
{core}v_cvt_f32_u32 v2, s40
v_mul_f32 v2, {r16}, v2
v_add_f32 v2, {b0}, v2
v_mul_f32 v3, v2, v2
v_mul_f32 v4, v3, v3
v_mul_f32 v4, v4, v4
v_mul_f32 v4, {c9}, v4
v_fmac_f32 v4, 0.5, v3
v_add_f32 v4, {c1}, v4
v_mul_f32 v2, v2, v4
s_cmp_ge_u32 s40, 16
s_cselect_b32 s41, s41, s42
s_cselect_b32 s43, 1, 2
v_fma_f32 v2, abs(v2), s41, 0.5
v_cvt_u32_f32 v2, v2
s_nop 0
v_readfirstlane_b32 s44, v2
s_sub_u32 s45, {c0}, s44
s_max_i32 s45, s45, 0
s_lshl_b32 s45, s45, 2
s_or_b32 s45, s45, s43
s_cmp_eq_u32 s44, 0
s_cselect_b32 s45, 0, s45
v_mov_b32 v2, {lctl}
v_mov_b32 v3, s45
ds_write_b32 v2, v3
{lab}:""".format(core=core.format(gf=hex(f2u(gf / 10)), gs=hex(f2u(gs / 10))), lab=lab_, rk=RK + k * 8 * rks, rs=rks, gf=hex(f2u(gf / 10)), gs=hex(f2u(gs / 10)), r16=hex(f2u(1 / 16)), b0=hex(f2u(-15.5 / 16)),
           c9=hex(f2u(0.6)), c1=hex(f2u(1.2)), c0=cnt - 2, lctl=L_CTL))
    checkpoint(3, info['cntK'], gK, gKs)
    A('s_barrier')
    checkpoint(0, info['cntA'], gA, gAs)
    stamp(14)
    for k, (g1, g2) in enumerate(((gB, gBs), (gC, gCs), (gD, gDs))[:len(info['cps'])]):
        A('s_barrier')
        checkpoint(1 + k, info['cps'][k], g1, g2)
    A('s_cmp_ge_u32 s2, 144\ns_cbranch_scc1 ' + ('L_hbend' if hs != 4 else 'L_end'))
    if prio: A('s_setprio %d' % prio)
    A('s_barrier')
    if not sm & 64: A('s_endpgm')
    poll_tag(['buffer_load_dwordx4 v[%d:%d], v12, s[48:51], %s offen offset:%d %s' % (OF + 4 * ks, OF + 4 * ks + 3, 's72' if ks < 4 else 's73', (ks % 4) * 128, 'sc1 nt' if h1nt else 'sc1') for ks in range(8)],
             range(OF, OF + 32), tslp)
    if b3 == 2: A('s_barrier')
    for half in range(2):
        pack_frags(OF + 16 * half, 4, 's71')
        for ks in range(4 * half, 4 * half + 4):
            for nt in range(4):
                r = WF + (nt * 8 + ks) * 4
                A('v_mfma_f32_16x16x32_bf16 v[%d:%d], v[%d:%d], v[%d:%d], %s' % (YA + nt * 4, YA + nt * 4 + 3, r, r + 3, OF + ks * 4, OF + 3 + ks * 4, '0' if ks == 0 else 'v[%d:%d]' % (YA + nt * 4, YA + nt * 4 + 3)))
    A('s_nop 5')
    for i in range(2):
        for e in range(4):
            A('v_mov_b32_dpp v%d, v%d row_ror:8 row_mask:0xf bank_mask:0xc' % (YA + 8 * i + e, YA + 8 * i + 4 + e))
        for e in range(4):
            A('v_bfi_b32 v%d, s59, v%d, v62' % (YA + 8 * i + e, YA + 8 * i + e))
        A('buffer_store_dwordx4 v[%d:%d], v14, s[48:51], s74 offen offset:%d sc1%s' % (YA + 8 * i, YA + 8 * i + 3, i * 2048, ' nt' if snt & 2 else ''))
    if b3 == 1: A('s_barrier')
    stamp(4)
    A('L_hbend:')
    stamp(99)
    A('s_endpgm')

    A("""L_FIN:
s_sub_u32 s64, s2, 40
s_mul_i32 s76, s64, 3641
s_lshr_b32 s76, s76, 16
s_mul_i32 s77, s76, 18
s_sub_u32 s77, s64, s77
s_mul_i32 s56, s76, 1152
s_add_u32 s57, s56, 1152
s_mov_b32 s63, 0xffff0000""")
    if not sm & 32: A('s_endpgm')
    srd(32, 4, 's57')
    srd(36, 22, 1152)
    A("""v_lshlrev_b32 v5, 5, v0
v_lshlrev_b32 v15, 3, v0
buffer_load_dwordx4 v[16:19], v5, s[32:35], s56 offen{f}
buffer_load_dwordx4 v[20:23], v5, s[32:35], s56 offen offset:16{f}
buffer_load_dwordx4 v[24:27], v5, s[36:39], 0 offen{f}
buffer_load_dwordx4 v[28:31], v5, s[36:39], 0 offen offset:16{f}
s_mov_b32 s58, 0x3f803f80
v_mov_b32 v32, 0
s_waitcnt vmcnt(0)""".format(f=' nt' if xnt else ''))
    for r in range(8):
        A("""v_lshlrev_b32 v34, 16, v{x}
v_and_b32 v35, s63, v{x}
v_lshlrev_b32 v36, 16, v{w}
v_and_b32 v37, s63, v{w}
v_mul_f32 v34, v34, v36
v_mul_f32 v35, v35, v37
v_cvt_pk_bf16_f32 v34, v34, v35
v_dot2_f32_bf16 v32, v34, s58, v32""".format(x=16 + r, w=24 + r))
    A("""s_nop 2
v_add_f32_dpp v32, v32, v32 quad_perm:[1,0,3,2] row_mask:0xf bank_mask:0xf
s_nop 1
v_add_f32_dpp v32, v32, v32 quad_perm:[2,3,0,1] row_mask:0xf bank_mask:0xf
s_nop 1
v_add_f32_dpp v32, v32, v32 row_half_mirror row_mask:0xf bank_mask:0xf
s_nop 1""")
    xsum([32], 34)
    A("""v_cvt_pk_bf16_f32 v32, v32, v32
v_and_b32 v32, s63, v32
v_mul_f32 v32, {nl2e}, v32
v_exp_f32 v32, v32
s_nop 0
v_add_f32 v32, 1.0, v32
v_rcp_f32 v32, v32
s_nop 0
v_cvt_pk_bf16_f32 v32, v32, v32
v_and_b32 v{g}, s63, v32
v_sub_f32 v33, 1.0, v{g}
v_cvt_pk_bf16_f32 v33, v33, v33
v_and_b32 v33, s63, v33
s_lshl_b32 s56, s64, 10
s_add_u32 s56, s56, {fin}
s_barrier
s_barrier""".format(nl2e=hex(NLOG2E), fin=FIN, g=FB + 4))
    poll_tag(['buffer_load_dwordx4 v[%d:%d], v1, s[48:51], s56 offen %s' % (FB, FB + 3, MF)], range(FB, FB + 4), slp)
    stamp(13)
    for r in range(FB, FB + 4): A('v_and_b32 v%d, s59, v%d' % (r, r))
    xsum(list(range(FB, FB + 4)), 40)
    round4(range(FB, FB + 4), 40)
    for r in range(FB, FB + 4): A('v_mul_f32 v%d, v33, v%d' % (r, r))
    round4(range(FB, FB + 4), 40)
    A("""s_lshl_b32 s78, s64, 11
s_add_u32 s78, s78, {yin}
s_mul_i32 s79, s76, 1152
s_lshl_b32 s56, s77, 6
s_add_u32 s79, s79, s56""".format(yin=YIN))
    srd(32, 24, 8 * 1152)
    for _ in range(len(info['cps']) - 1): A('s_barrier')
    if prio: A('s_setprio %d' % prio)
    A('s_barrier')
    if not sm & 64:
        stamp(1)
        A('s_endpgm')
    if b3: A('s_barrier')
    poll_tag(['buffer_load_dwordx4 v[%d:%d], v1, s[48:51], s78 offen offset:%d %s' % (16 + 4 * i, 19 + 4 * i, i * 1024, TF) for i in range(2)],
             range(16, 24), fslp2)
    for r in range(16, 24): A('v_and_b32 v%d, s59, v%d' % (r, r))
    for c in range(4): A('v_add_f32 v%d, v%d, v%d' % (16 + c, 16 + c, 20 + c))
    xsum([16, 17, 18, 19], 20)
    round4([16, 17, 18, 19], 20)
    for c in range(4): A('v_mul_f32 v%d, v%d, v%d' % (16 + c, FB + 4, 16 + c))
    round4([16, 17, 18, 19], 20)
    for c in range(4): A('v_add_f32 v%d, v%d, v%d' % (16 + c, 16 + c, FB + c))
    A("""v_cvt_pk_bf16_f32 v20, v16, v17
v_cvt_pk_bf16_f32 v21, v18, v19
s_mov_b64 exec, 0xff
buffer_store_dwordx2 v[20:21], v15, s[32:35], s79 offen
s_cmp_lg_u32 s64, 0
s_cbranch_scc1 L_noepoch
s_mov_b64 exec, 1
v_mov_b32 v2, s88
v_mov_b32 v3, %d
buffer_store_dword v2, v3, s[48:51], 0 offen sc1
L_noepoch:
s_mov_b64 exec, -1""" % EPOCH)
    if diag:
        A('s_waitcnt vmcnt(0)')
        stamp(1)
    A('L_end:\ns_endpgm')

    nacc = 0
    nv = max(RING + D * 4, 224)
    if diag: nv = 256
    assert nv <= 256
    out = HEADER + '; @launch grid=(256,1,1) block=(192,1,1) lds=%d\n' % lds
    out += '.amdgcn_target "amdgcn-amd-amdhsa--gfx950"\n.text\n.globl %s\n.p2align 8\n.type %s,@function\n' % (KN, KN)
    L = []
    for nm in ('entry', 'haq', 'hbq', 'stream', 'stream2', 'ha2', 'hb2'): L += secs.get(nm, [])
    out += '\n'.join(('' if x.endswith(':') else '    ') + x for x in L) + '\n'
    out += '''.section .rodata,"a"
.p2align 6
.amdhsa_kernel %s
  .amdhsa_next_free_vgpr %d
  .amdhsa_next_free_sgpr 102
  .amdhsa_accum_offset %d
  .amdhsa_group_segment_fixed_size 0
  .amdhsa_kernarg_size 104
  .amdhsa_user_sgpr_count 2
  .amdhsa_user_sgpr_kernarg_segment_ptr 1
  .amdhsa_system_sgpr_workgroup_id_x 1
.end_amdhsa_kernel
''' % (KN, nv + nacc, nv)
    return out


if __name__ == '__main__':
    names = []
    for spec in sys.argv[1:]:
        kw = {}
        for p in spec.split(','):
            if not p: continue
            k, v = p.split('=')
            kw[k] = int(v)
        nm = 'k_' + (spec.replace(',', '_').replace('=', '') or 'def') + '.s'
        open(nm, 'w').write(gen(**kw))
        names.append(nm)
    print(' '.join(names))
```

```python
import sys, math, struct

KN = 'gated_mix__mha_block_cached__swiglu_ffn__decode_kernel'

HEADER = '''; Kernarg layout for this problem (104 bytes, ptrs only, base s[0:1]):
'''

DOC = "; ---------------------------------------------------------------------------------------------\n; ---------------------------------------------------------------------------------------------\n"

EPOCH = 0x0
RK = 0x1000
XL = 0xB000
QP = 0x10000
HM = 0x70000
FIN = 0xA0000
PREG = 0xD0000
OREC = 0x100000
YIN = 0x140000
WS_SIZE = 0x200000
L_QW = 0
L_W = 36864
L_SC = 110592
L_Q = 143360
L_CTL = 143616
LDS_BYTES = 143680

def f2u(x):
    return struct.unpack('<I', struct.pack('<f', x))[0]

CSC = f2u(math.log2(math.e) / math.sqrt(128.0))
NLOG2E = f2u(-math.log2(math.e))


def gen(hs=0, n=20, q=2, D=32, w0=24, na=28, nend=0, kend=0, ctl=1, nf=24, ns=18, gA=125, gAs=100, gB=65, gBs=55, pB=45, pC=72, gC=50, gCs=40, pD=90, gD=30, gDs=25, rks=1280, pt=0, ck=1, b0q=35, fslp2=2, b3=2, loc=15, xp=1, dbl=-1, gK=-1, gKs=0, pK=25, qgate=1, dum=0, f0=1, hwo=10, ilv=1, h1nt=1, xnt=0, cnt_=0, snt=0, rm=3, Z=64, zg=4, wa=4, diag=0, spin=1 << 17, prio=3, vacc=0, slp=64, qslp=2, b0=1, fb=0,
        sm=127, noproc=0, tslp=0, mnt=1, qnt=1, tnt=0, lds=LDS_BYTES, ww=2, wa2=0, n1=0, n1it=0):
    secs = {}
    cur = [None]
    def sec(name):
        cur[0] = secs.setdefault(name, [])
    def A(s):
        for x in s.split('\n'):
            x = x.strip()
            if x: cur[0].append(x)
    lab = [0]
    def newlab(p):
        lab[0] += 1
        return '%s_%d' % (p, lab[0])
    MF = 'sc1 nt' if mnt else 'sc1'
    QF = 'sc1 nt' if qnt else 'sc1'
    TF = 'sc1 nt' if tnt else 'sc1'
    TAG = 62

    sec('entry')
    A(KN + ':')
    A('s_cmp_ge_u32 s2, 256\ns_cbranch_scc1 L_end')
    if diag: A('s_memrealtime s[90:91]')
    A("""s_load_dwordx16 s[4:19], s[0:1], 0
s_load_dwordx8 s[20:27], s[0:1], 64
s_load_dwordx2 s[28:29], s[0:1], 96
v_lshrrev_b32 v1, 6, v0
v_and_b32 v0, 63, v0
v_readfirstlane_b32 s3, v1
v_lshlrev_b32 v1, 4, v0
s_lshr_b32 s30, s2, 5
s_and_b32 s31, s2, 31
s_waitcnt lgkmcnt(0)
s_load_dword s88, s[28:29], %d
s_mov_b32 s48, s28
s_mov_b32 s49, s29
s_mov_b32 s50, %d
s_mov_b32 s51, 0x20000
s_cmp_eq_u32 s3, 0
s_cbranch_scc1 L_S
s_cmp_eq_u32 s3, 2
s_cbranch_scc1 L_HB""" % (EPOCH, WS_SIZE))

    def stamp(slot):
        if not diag: return
        if diag in (4, 5) and slot not in (1, 3): return
        if diag == 6 and slot not in (1, 3, 2, 14, 5, 15): return
        if diag == 7 and slot not in (1, 3): return
        if diag in (1, 6) and slot == 99: return
        if diag == 1 and slot == 15: return
        if diag == 3:
            if hs and slot == hs: A('s_memrealtime s[90:91]\ns_waitcnt lgkmcnt(0)')
            if (slot == 1 and hs in (0, 1)) or (slot == 3 and hs == 3) or (slot == 99 and hs in (2, 12, 14, 4)):
                lp = newlab('L_hold')
                A('%s:\ns_memrealtime s[92:93]\ns_waitcnt lgkmcnt(0)\ns_sub_u32 s92, s92, s90\ns_cmp_lt_u32 s92, 25000\ns_cbranch_scc1 %s' % (lp, lp))
            return
        A("""s_memrealtime s[92:93]
s_add_u32 s80, s28, 0x40000000
s_addc_u32 s81, s29, 0
s_mov_b32 s82, 0x20000
s_mov_b32 s83, 0x20000
s_lshl_b32 s84, s2, 7
s_mov_b64 s[86:87], exec
s_mov_b64 exec, 1
s_waitcnt lgkmcnt(0)
v_mov_b32 v250, s92
v_mov_b32 v251, s93
v_mov_b32 v252, s84
buffer_store_dwordx2 v[250:251], v252, s[80:83], 0 offen offset:%d""" % (slot * 8))
        if slot == 3:
            A("""s_sub_u32 s85, s2, """ + ('0' if f0 else '40') + """
s_cmp_lt_u32 s85, 144
s_cbranch_scc1 L_st3
buffer_store_dwordx2 v[250:251], v252, s[80:83], 0 offen offset:8
L_st3:
s_getreg_b32 s85, hwreg(HW_REG_XCC_ID)
v_mov_b32 v250, s90
v_mov_b32 v251, s91
buffer_store_dwordx2 v[250:251], v252, s[80:83], 0 offen
s_nop 1
v_mov_b32 v250, s85
v_mov_b32 v251, 0
buffer_store_dwordx2 v[250:251], v252, s[80:83], 0 offen offset:48""")
        A('s_mov_b64 exec, s[86:87]')

    def epoch(tagreg=TAG):
        A("""s_waitcnt lgkmcnt(0)
s_mul_i32 s89, s88, 0x9E3779B1
s_add_u32 s89, s89, 0x7F4A7C15
s_add_u32 s88, s88, 1
s_and_b32 s63, s88, 0xff
v_mov_b32 v%d, s63
s_mov_b32 s59, 0xffffff00""" % tagreg)
    def poll_tag(loads, regs, sleep, full=()):
        lp, ld = newlab('L_poll'), newlab('L_pdone')
        A('s_mov_b32 s62, %d\n%s:' % (spin, lp))
        for x in loads: A(x)
        A('s_waitcnt vmcnt(0)')
        rs = list(regs)
        A('v_xor_b32 v2, v%d, v62\nv_xor_b32 v3, v%d, v62' % (rs[0], rs[1]))
        for i, r in enumerate(rs[2:]):
            A('v_bitop3_b32 v%d, v%d, v%d, v62 bitop3:0xf6' % (2 + (i & 1), 2 + (i & 1), r))
        A('v_or_b32 v2, v2, v3\nv_and_b32 v2, 0xff, v2')
        for r in full:
            A('v_bitop3_b32 v2, v2, v%d, s89 bitop3:0xf6' % r)
        A("""v_cmp_ne_u32 vcc, 0, v2
s_cbranch_vccz {ld}
s_mov_b64 exec, vcc
{sl}
s_sub_u32 s62, s62, 1
s_cbranch_scc0 {lp}
{ld}:
s_mov_b64 exec, -1""".format(lp=lp, ld=ld, sl='s_sleep %d' % sleep if sleep else ''))
    def class_load(vd, va):
        A('''s_getreg_b32 s65, hwreg(HW_REG_XCC_ID)
s_and_b32 s65, s65, 15
s_add_u32 s65, s65, s89
s_and_b32 s64, s2, 7
s_mul_i32 s64, s64, 1280
s_add_u32 s64, s64, {xl}
v_and_b32 v{a}, 31, v0
v_lshlrev_b32 v{a}, 2, v{a}
buffer_load_dword v{d}, v{a}, s[48:51], s64 offen sc1{f}'''.format(xl=XL, a=va, d=vd, f=' nt' if cnt_ else ''))
    def class_test(vd, sd):
        A('v_cmp_ne_u32 vcc, s65, v%d\ns_nop 0\ns_cmp_eq_u64 vcc, 0\ns_cselect_b32 %s, 1, 0' % (vd, sd))
    def srd(sn, ptr, size):
        A('s_mov_b32 s%d, s%d\ns_mov_b32 s%d, s%d\ns_mov_b32 s%d, %s\ns_mov_b32 s%d, 0x20000' % (sn, ptr, sn + 1, ptr + 1, sn + 2, size, sn + 3))
    def trbase(dst, rowstride, colmul, tmp, gm=8):
        A("""v_lshrrev_b32 v{d}, 4, v0
v_mul_u32_u24 v{d}, {gm}, v{d}
v_bfe_u32 v{t}, v0, 2, 2
v_add_u32 v{d}, v{d}, v{t}
v_mul_u32_u24 v{d}, {rs}, v{d}
v_and_b32 v{t}, 3, v0
v_mul_u32_u24 v{t}, {cm}, v{t}
v_add_u32 v{d}, v{d}, v{t}""".format(d=dst, t=tmp, rs=rowstride, cm=colmul, gm=gm))
    def xsum(regs, tmp):
        for r in regs: A('v_add_f32_dpp v%d, v%d, v%d row_ror:8 row_mask:0xf bank_mask:0xf' % (r, r, r))
        for sw in ('v_permlane16_swap_b32', 'v_permlane32_swap_b32'):
            for i, r in enumerate(regs): A('v_mov_b32 v%d, v%d' % (tmp + i, r))
            if len(regs) < 3: A('s_nop 1')
            for i, r in enumerate(regs): A('%s v%d, v%d' % (sw, r, tmp + i))
            for i, r in enumerate(regs): A('v_add_f32 v%d, v%d, v%d' % (r, r, tmp + i))
    def round4(regs, tmp):
        a, b, c, d = regs
        A("""v_cvt_pk_bf16_f32 v{t0}, v{a}, v{b}
v_cvt_pk_bf16_f32 v{t1}, v{c}, v{d}
v_lshlrev_b32 v{a}, 16, v{t0}
v_and_b32 v{b}, s63, v{t0}
v_lshlrev_b32 v{c}, 16, v{t1}
v_and_b32 v{d}, s63, v{t1}""".format(a=a, b=b, c=c, d=d, t0=tmp, t1=tmp + 1))

    vQ = 4
    vMask = 8
    vT0, vU0, vX0 = 12, 14, 2
    vA = 16
    vAcc = 24
    vS0, vS1, vR, vT, vT2, vPK, vM, vMC, vL = 28, 29, 30, 31, 32, 33, 34, 35, 36
    vAddr, vSA, vTag = 37, 38, 39
    vKA, vKB, vVA, vVB = 40, 41, 42, 43
    vQM = 44
    RING = 60
    assert zg == 4
    assert D % 16 == 0 and n + q <= D and D % q == 0
    def rr(t):
        b = RING + (t % D) * 4
        return 'v[%d:%d]' % (b, b + 3)
    HALF = 2048
    TOT = 2 * HALF
    sec('stream')
    A("""L_S:
s_lshl_b32 s52, s2, 21
s_lshr_b32 s53, s2, 11
s_add_u32 s32, s6, s52
s_addc_u32 s33, s7, s53
s_mov_b32 s34, 0x200000
s_mov_b32 s35, 0x20000
s_add_u32 s36, s8, s52
s_addc_u32 s37, s9, s53
s_mov_b32 s38, 0x200000
s_mov_b32 s39, 0x20000
s_mov_b32 s54, 0
s_mov_b32 s53, 0
v_lshrrev_b32 v2, 4, v0
v_and_b32 v3, 3, v0
v_lshlrev_b32 v3, 4, v3
v_lshl_add_u32 v{QA}, v2, 6, v3
v_bfe_u32 v3, v0, 2, 2
v_lshl_add_u32 v{KA}, v3, 8, v{QA}
v_add_u32 v{KB}, {z}, v{KA}
v_and_b32 v3, 15, v0
v_lshlrev_b32 v3, 4, v3
v_lshl_add_u32 v{VA}, v2, 10, v3
v_add_u32 v{VB}, {z}, v{VA}
v_add_u32 v{QA}, {lq}, v{QA}""".format(QA=vS0, KA=vKA, KB=vKB, VA=vVA, VB=vVB, z=Z * 1024, lq=L_Q))
    st = {'issued': 0, 'landed': -1}
    info = {}
    def issue(t):
        sr, so = ('s[32:35]', 's54') if t < HALF else ('s[36:39]', 's53')
        r = t % (2 * zg)
        if t < HALF: A('buffer_load_dwordx4 %s, v%d, %s, %s offen offset:%d nt' % (rr(t), vKA if r < zg else vKB, sr, so, (r % zg) * 1024))
        else: A('buffer_load_dwordx4 %s, v%d, %s, %s offen offset:%d nt' % (rr(t), vVA if r < zg else vVB, sr, so, (r % zg) * 256))
        if r == 2 * zg - 1:
            A('s_add_u32 s68, %s, %d\ns_xor_b32 s69, s68, %s\ns_and_b32 s69, s69, %d\ns_add_u32 %s, s68, s69' % (so, zg * 1024, so, Z * 1024, so))
        st['issued'] = t + 1
    def wait_landed(t):
        c = st['issued'] - 1 - t
        assert 0 <= c < 63
        if t > st['landed']:
            A('s_waitcnt vmcnt(%d)' % c)
            st['landed'] = t
    def dpp(op, d, a, ctl, bank=0xf):
        A('%s_dpp v%d, v%d, v%d %s row_mask:0xf bank_mask:%s' % (op, d, a, a, ctl, hex(bank)))
    lane_of = lambda j: 4 * (j & 3) + (j >> 2)
    GPB = D // 16
    def sc_off(grp):
        return (grp % GPB) * 256
    def prepA(u):
        a = u % 8
        grp = u // 8
        if a == 0:
            A("""s_waitcnt lgkmcnt(0)
v_fma_f32 v{T}, v{R}, s55, -v{MC}
v_exp_f32 v{T}, v{T}""".format(T=vT, R=vR, MC=vMC))
            if grp + 1 < HALF // 16:
                if (grp + 1) % GPB == 0: A('v_add_u32 v%d, %d, v%d' % (vSA, GPB * 256, vSA))
                A('ds_read_b32 v%d, v%d offset:%d' % (vR, vSA, sc_off(grp + 1)))
            else:
                A('s_nop 0')
            A("""v_cvt_pk_bf16_f32 v{PK}, v{T}, v{T}
v_add_f32 v{Lr}, v{Lr}, v{T}
s_nop 0""".format(T=vT, PK=vPK, Lr=vL))
        for i in range(2):
            for k in range(4):
                A('v_and_b32_dpp v%d, v%d, v%d row_newbcast:%d row_mask:0xf bank_mask:0xf' % (vA + 4 * i + k, vPK, vMask + k, lane_of(2 * a + i)))
    def finish_l():
        for ctl in ('row_ror:8', 'row_ror:4', 'row_ror:2', 'row_ror:1'):
            dpp('v_add_f32', vL, vL, ctl); A('s_nop 1')
        A("""v_mov_b32 v{T}, v{Lr}
s_nop 1
v_permlane16_swap_b32 v{Lr}, v{T}
v_add_f32 v{Lr}, v{Lr}, v{T}
v_mov_b32 v{T}, v{Lr}
s_nop 1
v_permlane32_swap_b32 v{Lr}, v{T}
v_add_f32 v{Lr}, v{Lr}, v{T}
v_rcp_f32 v{Lr}, v{Lr}""".format(T=vT, Lr=vL))
        if loc & 1: A('ds_read_b32 v%d, v%d offset:8\ns_waitcnt lgkmcnt(0)\nv_readfirstlane_b32 s60, v%d' % (vT2, vT0 + 1, vT2))
    def pad_after_mfma(acc, need=8):
        have = 0
        for x in reversed(cur[0]):
            if x.startswith('v_mfma') and x.split()[1].startswith('v[%d:' % acc): break
            if x.endswith(':'):
                have += 1; break
            have += int(x.split()[1]) + 1 if x.startswith('s_nop') else 1
        if have < need: A('s_nop %d' % (need - have - 1))
    def post(c):
        acc = vA + 4 * (c & 1); a = c % 4
        x = vU0 + (a & 1)
        pad_after_mfma(acc)
        A('v_cndmask_b32 v%d, v%d, v%d, s[70:71]' % (vT0, acc, acc + 1))
        A('v_cndmask_b32 v%d, v%d, v%d, s[70:71]' % (vT0 + 1, acc + 2, acc + 3))
        A('v_cndmask_b32 v%d, v%d, v%d, s[72:73]' % (x, vT0, vT0 + 1))
        if a & 1:
            cc = a >> 1
            dpp('v_add_f32', vU0, vU0, 'quad_perm:[1,0,3,2]')
            A('s_nop 0')
            dpp('v_add_f32', vU0 + 1, vU0 + 1, 'quad_perm:[1,0,3,2]')
            A('v_cndmask_b32 v%d, v%d, v%d, s[70:71]' % (vX0 + cc, vU0, vU0 + 1))
            if cc:
                dpp('v_add_f32', vX0, vX0, 'quad_perm:[2,3,0,1]')
                A('s_nop 0')
                dpp('v_add_f32', vX0 + 1, vX0 + 1, 'quad_perm:[2,3,0,1]')
                grp = c // 4
                A('v_cndmask_b32 v%d, v%d, v%d, s[72:73]' % (vR, vX0, vX0 + 1))
                A('v_max_f32 v%d, v%d, v%d' % (vM, vM, vR))
                A('ds_write_b32 v%d, v%d offset:%d' % (vSA, vR, sc_off(grp)))
                if (grp + 1) % GPB == 0 and grp + 1 < HALF // 16: A('v_add_u32 v%d, %d, v%d' % (vSA, GPB * 256, vSA))
    def proc(u):
        t = 2 * u
        if t < HALF:
            if noproc & 1: return
            c = t // 4
            acc = vA + 4 * (c & 1)
            for i in range(2):
                j = (t + i) % 4
                A('v_mfma_f32_16x16x32_bf16 v[%d:%d], v[%d:%d], %s, %s' % (acc, acc + 3, vQM + 4 * j, vQM + 4 * j + 3, rr(t + i), '0' if j == 0 else 'v[%d:%d]' % (acc, acc + 3)))
            if t % 4 == 0 and c > 0: post(c - 1)
            if t + 2 == HALF: post(c)
            if t + 2 == HALF:
                A('v_subrev_u32 v%d, %d, v%d' % (vSA, ((HALF // 16 - 1) // GPB) * GPB * 256, vSA))
                A('ds_read_b32 v%d, v%d' % (vR, vSA))
                A('v_mov_b32 v%d, %d' % (vT0 + 1, L_CTL))
                for ctl in ('row_ror:8', 'row_ror:4', 'row_ror:2', 'row_ror:1'):
                    dpp('v_max_f32', vM, vM, ctl); A('s_nop 1')
                for sw in ('v_permlane16_swap_b32', 'v_permlane32_swap_b32'):
                    A('v_mov_b32 v{T}, v{M}\ns_nop 1\n{sw} v{M}, v{T}\nv_max_f32 v{M}, v{M}, v{T}'.format(T=vT, M=vM, sw=sw))
                A('v_mul_f32 v%d, s55, v%d\ns_barrier' % (vMC, vM))
                prepA(0)
        else:
            if noproc & 2: return
            if cur[0][-1].startswith('v_and'): A('s_nop 0')
            A('v_mfma_f32_16x16x32_bf16 v[%d:%d], v[%d:%d], %s, v[%d:%d]' % (vAcc, vAcc + 3, vA, vA + 3, rr(t), vAcc, vAcc + 3))
            A('v_mfma_f32_16x16x32_bf16 v[%d:%d], v[%d:%d], %s, v[%d:%d]' % (vAcc, vAcc + 3, vA + 4, vA + 7, rr(t + 1), vAcc, vAcc + 3))
            uu = u - HALF // 2
            if uu + 1 < HALF // 2: prepA(uu + 1)
            if uu + 1 == HALF // 2 - 8:
                pass
    win = [n]
    def paced_issue(cnt):
        for _ in range(cnt // q):
            t = st['issued']
            if t + q - 1 - win[0] >= 0:
                wait_landed(t + q - 1 - win[0])
            for i in range(q): issue(t + i)
    n0 = (n // q) * q
    def job_off(dst, jreg, rowbytes, bits=0):
        if bits:
            A('''s_and_b32 s68, {j}, {m}
s_lshr_b32 s69, {j}, {b}
s_mul_i32 {d}, s68, {rb}
s_lshl_b32 s69, s69, 7
s_add_u32 {d}, {d}, s69'''.format(j=jreg, d=dst, rb=rowbytes, m=(1 << bits) - 1, b=bits))
            return
        A('''s_mul_i32 s68, {j}, 7282
s_lshr_b32 s68, s68, 16
s_mul_i32 s69, s68, 9
s_sub_u32 s69, {j}, s69
s_mul_i32 {d}, s68, {rb}
s_lshl_b32 s69, s69, 7
s_add_u32 {d}, {d}, s69'''.format(j=jreg, d=dst, rb=rowbytes))
    def side_dma(cnt, sr, so, step, ldsreg, vreg):
        for i in range(cnt):
            A('s_mov_b32 m0, %d\ns_waitcnt vmcnt(%d)\nbuffer_load_dwordx4 %s, %s, %s offen nt lds\ns_add_u32 %s, %s, %s' % (ldsreg + i * 1024, w0 - 1, vreg, sr, so, so, so, step))
    A('''v_lshrrev_b32 v4, 3, v0
v_and_b32 v5, 7, v0
v_lshlrev_b32 v5, 4, v5
v_mul_u32_u24 v6, 1152, v4
v_add_u32 v6, v6, v5
v_mul_u32_u24 v7, 9216, v4
v_add_u32 v7, v7, v5''')
    srd(44, 12, 4096 * 1152)
    A('''s_and_b32 s68, s2, 7
s_bfe_u32 s69, s2, 0x10003
s_lshl_b32 s69, s69, 4
s_add_u32 s68, s68, s69
s_mul_i32 s75, s68, 147456
s_lshr_b32 s69, s2, 4
s_lshl_b32 s69, s69, 7
s_add_u32 s75, s75, s69
s_add_u32 s77, s75, 1179648
s_mov_b32 s78, %d''' % L_QW)
    A('''s_cmp_ge_u32 s2, 184
s_cbranch_scc1 L_S_down
s_cmp_lt_u32 s2, 40
s_cbranch_scc1 L_S_light
s_cmp_lt_u32 s2, 112
s_cselect_b32 s40, s16, s18
s_cselect_b32 s41, s17, s19
s_cselect_b32 s74, 40, 112
s_mov_b32 s42, 5308416
s_mov_b32 s43, 0x20000
s_sub_u32 s74, s2, s74
s_lshr_b32 s74, s74, 3
s_and_b32 s76, s2, 7
s_mul_i32 s76, s76, 9
s_add_u32 s74, s74, s76
s_lshl_b32 s74, s74, 7
s_mov_b32 s76, 73728
s_branch L_S_big
L_S_down:
s_sub_u32 s74, s2, 184''')
    job_off('s74', 's74', 663552, 3 if rm & 2 else 0)
    srd(40, 20, 4608 * 1152)
    A('''s_mov_b32 s76, 9216
v_mov_b32 v7, v6
L_S_big:''')
    if b0: A('s_barrier')
    if sm & 4: side_dma(72, 's[40:43]', 's74', 's76', L_W, 'v7')
    if hwo: A('s_branch L_S_k')
    else: A('s_cmp_ge_u32 s2, 144\ns_cbranch_scc1 L_S_k\ns_branch L_S_wo')
    A('L_S_light:\ns_mov_b32 s78, %d' % L_W)
    if b0: A('s_barrier')
    if hwo: A('s_cmp_ge_u32 s2, 16\ns_cbranch_scc1 L_S_k')
    A('L_S_wo:')
    if sm & 2:
        for i in range(32):
            so = 's75' if i < 16 else 's77'
            A('s_add_u32 m0, s78, %d\ns_waitcnt vmcnt(%d)\nbuffer_load_dwordx4 v6, s[44:47], %s offen nt lds\ns_add_u32 %s, %s, 9216' % (i * 1024, w0 - 1, so, so, so))
    A('L_S_k:')
    if diag == 7: A('s_memrealtime s[94:95]')
    for t in range(n0):
        A('s_waitcnt vmcnt(%d)' % (max(w0, n0) - 1))
        issue(t)
    A("""v_and_b32 v{T}, 1, v0
v_lshlrev_b32 v{T}, 4, v{T}
v_mov_b32 v{T2}, 0xffff
v_lshlrev_b32 v{T2}, v{T}, v{T2}
v_bfe_u32 v{T}, v0, 1, 3""".format(T=vT, T2=vT2))
    for j in range(4):
        A('v_cmp_eq_u32 vcc, %d, v%d\ns_nop 1\nv_cndmask_b32 v%d, 0, v%d, vcc' % (j, vT, vMask + j, vT2))
    epoch(vTag)
    A("""v_mov_b32 v{M}, 0xff800000
v_mov_b32 v{Lr}, 0
v_mov_b32 v{a0}, 0
v_mov_b32 v{a1}, 0
v_mov_b32 v{a2}, 0
v_mov_b32 v{a3}, 0
s_mov_b32 s55, {csc}
s_mov_b32 s70, 0xaaaaaaaa
s_mov_b32 s71, 0xaaaaaaaa
s_mov_b32 s72, 0xcccccccc
s_mov_b32 s73, 0xcccccccc
v_and_b32 v{T}, 15, v0
v_lshlrev_b32 v{T}, 4, v{T}
v_and_b32 v{T2}, 16, v0
v_lshl_add_u32 v{Ad}, v{T}, 1, v{T2}
s_lshl_b32 s57, s31, 3
s_add_u32 s57, s57, s30
s_lshl_b32 s57, s57, 9
s_add_u32 s57, s57, {orec}
s_mov_b32 s63, 0xffff0000
s_mov_b32 s58, {lsc}
v_lshl_add_u32 v{SA}, v0, 2, s58""".format(M=vM, Lr=vL, a0=vAcc, a1=vAcc + 1, a2=vAcc + 2, a3=vAcc + 3, csc=hex(CSC), T=vT, T2=vT2,
                              Ad=vAddr, SA=vSA, lsc=L_SC, orec=OREC))
    paced_issue(D - n0 - ((D - n0) & 1))
    if diag == 7: A('s_memrealtime s[96:97]')
    A('s_barrier')
    if diag == 7: A('s_memrealtime s[98:99]')
    A('ds_read_b128 v[%d:%d], v%d\nv_bfe_u32 v%d, v0, 2, 2' % (vQ, vQ + 3, vS0, vT))
    for j in range(4): A('v_cmp_eq_u32 s[%d:%d], %d, v%d' % (76 + 2 * j, 77 + 2 * j, j, vT))
    A('s_waitcnt lgkmcnt(0)')
    for j in range(4):
        for i in range(4): A('v_cndmask_b32 v%d, 0, v%d, s[%d:%d]' % (vQM + 4 * j + i, vQ + i, 76 + 2 * j, 77 + 2 * j))
    A('s_nop 0')
    done = [0]
    extra = [0]
    def do_proc():
        u = done[0]
        wait_landed(2 * u + 1)
        proc(u)
        done[0] += 1
    if not na: na = n0
    assert na >= n0 and (na - n0) % 2 == 0 and na + 2 <= D and nend <= na
    target_ahead = 2 + na
    k1 = n0 // 2 if D > target_ahead else 0
    for _ in range(k1):
        do_proc(); paced_issue(2)
    while st['issued'] - 2 * done[0] > target_ahead - 2:
        if st['issued'] - 2 * done[0] >= target_ahead + 2:
            do_proc(); do_proc(); paced_issue(2)
        else:
            do_proc()
    def steady():
        paced_issue(2); do_proc()
    def loop(name, limit):
        while (2 * done[0]) % D != 0: steady()
        niter = (limit - st['issued']) // D
        assert niter >= 2
        kc = ctl and gK >= 0
        info['cntK'] = niter - niter * pK // 100
        info['nK'] = niter
        A('s_mov_b32 s58, %d' % niter)
        if kc: A('v_mov_b32 v%d, %d' % (vS1, L_CTL))
        snap = (dict(st), done[0])
        for vi, (nm, w) in enumerate([(name, n)] + ([(name + 'f', nf), (name + 's', ns)] if kc else [])):
            st.update(snap[0]); done[0] = snap[1]
            st['landed'] = 2 * done[0] - 1
            win[0] = w
            if vi: sec('stream2')
            A(nm + ':')
            if kc: A('ds_read_b32 v%d, v%d' % (vT2, vS1))
            for _ in range(D // 2): steady()
            if vi: A('s_branch L_Kdisp')
        win[0] = n
        sec('stream')
        A("""L_Kdisp:
s_sub_u32 s58, s58, 1
s_cmp_eq_u32 s58, %d
s_cbranch_scc1 L_midC
L_midCback:""" % info['cntK'])
        if kc:
            A("""s_waitcnt lgkmcnt(0)
v_readfirstlane_b32 s60, v{c}
s_cmp_eq_u32 s58, 0
s_cbranch_scc1 L_Kexit
s_lshr_b32 s61, s60, 2
s_cmp_gt_u32 s58, s61
s_cselect_b32 s60, s60, 0
s_bitcmp1_b32 s60, 0
s_cbranch_scc1 {nm}f
s_bitcmp1_b32 s60, 1
s_cbranch_scc1 {nm}s
s_branch {nm}
L_Kexit:
v_mov_b32 v{c}, 0
ds_write_b32 v{a}, v{c}""".format(c=vT2, nm=name, a=vS1))
        else:
            A('s_cmp_lg_u32 s58, 0\ns_cbranch_scc1 %s' % name)
        st['issued'] += (niter - 1) * D
        done[0] += (niter - 1) * (D // 2)
        st['landed'] = 2 * done[0] - 1
    loop('L_loopK', HALF)
    while 2 * done[0] < HALF or (2 * done[0] - HALF) % D != 0: steady()
    assert HALF % D == 0 or True
    loop2_base = done[0]
    niter = (TOT - D - st['issued']) // D
    nit2 = kend // D if nend else 0
    niter -= nit2
    cps = [niter - niter * p // 100 for p in (pB, pC, pD) if p]
    info['cntA'], info['cps'] = niter, cps
    A('s_mov_b32 s58, %d\ns_mov_b32 s75, %d\ns_and_b32 s74, s75, 0xff' % (niter, sum(c << (8 * i) for i, c in enumerate(cps)) | (0xff << (8 * len(cps))) & 0xffffffff))
    variants = [('L_loopV', n)] + ([('L_loopVf', nf), ('L_loopVs', ns)] if ctl else [])
    assert not ctl or nf <= na
    snap = (dict(st), done[0])
    for vi, (name, w) in enumerate(variants):
        st.update(snap[0]); done[0] = snap[1]
        st['landed'] = 2 * done[0] - 1
        win[0] = w
        if vi: sec('stream2')
        A(name + ':')
        if ctl: A('ds_read_b32 v%d, v%d' % (vT2, vT0 + 1))
        for _ in range(D // 2): steady()
        if vi: A('s_branch L_Vdisp')
    win[0] = n
    sec('stream')
    A("""L_Vdisp:
s_sub_u32 s58, s58, 1
s_cmp_eq_u32 s58, s74
s_cbranch_scc1 L_midB
L_midBback:""")
    if ctl:
        A("""v_readfirstlane_b32 s60, v{c}
s_cmp_eq_u32 s58, 0
s_cbranch_scc1 L_Vexit
s_lshr_b32 s61, s60, 2
s_cmp_gt_u32 s58, s61
s_cselect_b32 s60, s60, 0
s_bitcmp1_b32 s60, 0
s_cbranch_scc1 L_loopVf
s_bitcmp1_b32 s60, 1
s_cbranch_scc1 L_loopVs
s_branch L_loopV
L_Vexit:""".format(c=vT2))
    else:
        A('s_cmp_lg_u32 s58, 0\ns_cbranch_scc1 L_loopV')
    st['issued'] += (niter - 1) * D
    st['landed'] += (niter - 1) * D
    done[0] += (niter - 1) * (D // 2)
    st['landed'] = 2 * done[0] - 1
    if nend: win[0] = nend
    if nit2:
        st['landed'] = 2 * done[0] - 1
        A('s_mov_b32 s58, %d\nL_loopV2:' % nit2)
        for _ in range(D // 2): steady()
        A('s_sub_u32 s58, s58, 1\ns_cmp_lg_u32 s58, 0\ns_cbranch_scc1 L_loopV2')
        st['issued'] += (nit2 - 1) * D
        st['landed'] += (nit2 - 1) * D
        done[0] += (nit2 - 1) * (D // 2)
    while st['issued'] < TOT: steady()
    ml_done = False
    while done[0] < TOT // 2:
        if not ml_done and done[0] + 1 >= TOT // 2 - 8 + 1:
            finish_l(); ml_done = True
        do_proc()
    A("""s_mov_b32 exec_hi, 0
s_cmp_eq_u32 s60, 1
s_nop 5
v_mul_f32 v4, v{a0}, v{Lr}
v_mul_f32 v5, v{a1}, v{Lr}
v_mul_f32 v6, v{a2}, v{Lr}
v_mul_f32 v7, v{a3}, v{Lr}
v_cvt_pk_bf16_f32 v2, v4, v5
v_cvt_pk_bf16_f32 v3, v6, v7
v_lshl_or_b32 v4, v2, 16, v{tg}
v_and_or_b32 v5, v2, s63, v{tg}
v_lshl_or_b32 v6, v3, 16, v{tg}
v_and_or_b32 v7, v3, s63, v{tg}
{st}
s_barrier""".format(st=('s_cbranch_scc1 L_oloc\nbuffer_store_dwordx4 v[4:7], v%d, s[48:51], s57 offen sc1\ns_branch L_odone\nL_oloc:\nbuffer_store_dwordx4 v[4:7], v%d, s[48:51], s57 offen\nL_odone:' % (vAddr, vAddr))
                 if loc & 1 else 'buffer_store_dwordx4 v[4:7], v%d, s[48:51], s57 offen %s' % (vAddr, 'sc1' if dbl < 0 else ''), a0=vAcc, a1=vAcc + 1, a2=vAcc + 2, a3=vAcc + 3, Ad=vAddr, Lr=vL, tg=vTag))
    if diag:
        A('s_mov_b64 exec, -1')
        stamp(3)
        if diag == 7: A('s_mov_b64 exec, 1\nv_mov_b32 v244, s94\nv_mov_b32 v245, s96\nv_mov_b32 v246, s98\nv_mov_b32 v247, s100\nbuffer_store_dwordx4 v[244:247], v252, s[80:83], 0 offen offset:64\ns_mov_b64 exec, -1')
        A('s_mov_b32 exec_hi, 0')
    if dbl >= 0:
        A('s_waitcnt vmcnt(0)')
        if dbl: A('s_sleep %d' % dbl)
        A('buffer_store_dwordx4 v[4:7], v%d, s[48:51], s57 offen sc1' % vAddr)
    A('s_endpgm')
    A('L_midB:' + ('\ns_memrealtime s[94:95]' if diag == 5 else '') + '\ns_barrier\ns_lshr_b32 s75, s75, 8\ns_and_b32 s74, s75, 0xff\ns_branch L_midBback')
    A('L_midC:' + ('\ns_memrealtime s[100:101]' if diag == 7 else '') + '\ns_barrier\ns_branch L_midCback')

    XF = 72
    AC = 16
    AC2 = 32
    FR = 144
    PUB = 64
    def ha_setup1():
        srd(36, 4, 9216)
        A("""v_and_b32 v5, 7, v0
v_mul_u32_u24 v9, 1152, v5
v_lshrrev_b32 v8, 4, v0
v_lshl_add_u32 v9, v8, 4, v9""")
    def ha_setup2():
        trbase(6, 128, 16, 10)
        A("""v_and_b32 v10, 8, v0
v_lshlrev_b32 v12, 1, v10
v_lshl_add_u32 v12, v8, 5, v12
v_cmp_ne_u32 s[66:67], 0, v10""")
        epoch()
    def wdma(ldsoff, step, sr='s[32:35]', so='s54'):
        A('s_mov_b32 m0, %d\ns_nop 0\nbuffer_load_dwordx4 v4, %s, %s offen nt lds\ns_add_u32 %s, %s, %s' % (ldsoff, sr, so, so, so, step))
    def w_reads(ks, base, koff, hfs=512):
        b = FR + (ks % 2) * 16
        for nt in range(4):
            for hf in range(2):
                off = koff * 4096 + hf * hfs + (nt >> 1) * 64 + (nt & 1) * 8
                r = b + nt * 4 + hf * 2
                A('ds_read_b64_tr_b16 v[%d:%d], v%d offset:%d' % (r, r + 1, base, off))
    def w_mfma(ks, acc, xreg, first):
        b = FR + (ks % 2) * 16
        for nt in range(4):
            A('v_mfma_f32_16x16x32_bf16 v[%d:%d], v[%d:%d], v[%d:%d], %s' % (acc + nt * 4, acc + nt * 4 + 3, b + nt * 4, b + 3 + nt * 4, xreg, xreg + 3,
              '0' if first else 'v[%d:%d]' % (acc + nt * 4, acc + nt * 4 + 3)))
    def select8(dst, acc):
        for i in range(2):
            for e in range(4):
                A('v_cndmask_b32 v%d, v%d, v%d, s[66:67]' % (dst + 4 * i + e, acc + 8 * i + e, acc + 8 * i + 4 + e))
    def publish(linestride, local=False):
        if local:
            l1, l2 = newlab('L_ploc'), newlab('L_pdn')
            A('s_cmp_eq_u32 s64, 1\ns_cbranch_scc1 %s' % l1)
        for i in range(2):
            A('buffer_store_dwordx4 v[%d:%d], v11, s[48:51], s57 offen offset:%d sc1%s' % (PUB + 4 * i, PUB + 3 + 4 * i, i * linestride, ' nt' if snt & 1 else ''))
        if local:
            A('s_branch %s\n%s:' % (l2, l1))
            for i in range(2):
                A('buffer_store_dwordx4 v[%d:%d], v11, s[48:51], s57 offen offset:%d%s' % (PUB + 4 * i, PUB + 3 + 4 * i, i * linestride, ' nt' if snt & 4 else ''))
            A(l2 + ':')
    def publish_f32(linestride, local=False):
        A('s_nop 6')
        select8(PUB, AC)
        for i in range(8): A('v_bfi_b32 v%d, s59, v%d, v62' % (PUB + i, PUB + i))
        publish(linestride, local)

    sec('haq')
    A('L_HA:')
    if prio: A('s_setprio %d' % prio)
    A('s_sub_u32 s52, s2, 16\ns_cmp_lt_u32 s52, 128\ns_cbranch_scc1 L_HA_noq')
    srd(32, 10, 576 * 8192)
    ha_setup1()
    A("""s_lshr_b32 s52, s2, 3
s_and_b32 s52, s52, 15
s_and_b32 s53, s52, 1
s_bfe_u32 s54, s52, 0x10001
s_lshr_b32 s52, s52, 2
s_lshl_b32 s52, s52, 3
s_and_b32 s55, s2, 7
s_add_u32 s52, s52, s55
s_lshl_b32 s52, s52, 1
s_add_u32 s52, s52, s54
s_mul_i32 s54, s53, 2359296
s_lshl_b32 s55, s52, 7
s_add_u32 s54, s54, s55
s_mul_i32 s56, s53, 576
v_lshrrev_b32 v4, 3, v0
v_lshlrev_b32 v4, 13, v4
v_lshl_add_u32 v4, v5, 4, v4""")
    for ks in range(9):
        A('buffer_load_dwordx4 v[%d:%d], v9, s[36:39], s56 offen offset:%d%s' % (XF + 4 * ks, XF + 4 * ks + 3, ks * 64, ' nt' if xnt else ''))
    for i in range(36):
        wdma(L_QW + i * 1024, '65536')
        if b0 and i == b0q: A('s_barrier')
    ha_setup2()
    A("""v_lshlrev_b32 v11, 15, v5
v_add_u32 v11, v11, v12
s_lshl_b32 s57, s52, 1
s_add_u32 s57, s57, s53
s_lshl_b32 s57, s57, 8
s_add_u32 s57, s57, %d""" % QP)
    xq = 1 if loc & 2 else 0
    if xq: class_load(60, 61)
    A('s_waitcnt vmcnt(%d)' % (32 + xq))
    w_reads(0, 6, 0)
    for ks in range(9):
        if ks + 1 < 9:
            A('s_waitcnt vmcnt(%d)' % (28 - 4 * ks + xq))
            w_reads(ks + 1, 6, ks + 1)
            A('s_waitcnt lgkmcnt(8)')
        else:
            A('s_waitcnt lgkmcnt(0)')
        w_mfma(ks, AC, XF + 4 * ks, ks == 0)
    if xq:
        A('s_waitcnt vmcnt(0)')
        class_test(60, 's64')
    publish_f32(128, bool(xq))
    if qgate: A('v_mov_b32 v2, %d\nv_mov_b32 v3, 1\nds_write_b32 v2, v3' % (L_CTL + 4))
    stamp(5)
    if diag == 6: A('s_mov_b64 exec, 1\nv_mov_b32 v3, s64\nbuffer_store_dword v3, v252, s[80:83], 0 offen offset:60\ns_mov_b64 exec, -1')
    A('s_branch L_HA2')

    sec('ha2')
    def xloads():
        for ks in range(18):
            if ks >= wa: A('s_waitcnt vmcnt(%d)' % (wa - 1))
            A('buffer_load_dwordx4 v[%d:%d], v9, s[36:39], 0 offen offset:%d%s' % (XF + 4 * ks, XF + 4 * ks + 3, ks * 64, ' nt' if xnt else ''))
    A('L_HA_noq:')
    ha_setup1()
    if b0: A('s_barrier')
    if hwo and sm & 2:
        srd(44, 12, 4096 * 1152)
        A("""v_lshrrev_b32 v4, 3, v0
v_mul_u32_u24 v4, 1152, v4
v_lshl_add_u32 v4, v5, 4, v4
s_and_b32 s68, s2, 7
s_bfe_u32 s69, s2, 0x10003
s_lshl_b32 s69, s69, 4
s_add_u32 s68, s68, s69
s_mul_i32 s75, s68, 147456
s_lshr_b32 s69, s2, 4
s_lshl_b32 s69, s69, 7
s_add_u32 s75, s75, s69
s_add_u32 s77, s75, 1179648
s_cmp_lt_u32 s2, 40
s_cselect_b32 s78, %d, %d""" % (L_W, L_QW))
        for i in range(32):
            so = 's75' if i < 16 else 's77'
            A('s_add_u32 m0, s78, %d\ns_waitcnt vmcnt(%d)\nbuffer_load_dwordx4 v4, s[44:47], %s offen nt lds\ns_add_u32 %s, %s, 9216' % (i * 1024, hwo - 1, so, so, so))
    ha_setup2()
    A("""s_waitcnt vmcnt(0)
s_branch L_HA2
L_HA_fin:
s_barrier
s_branch L_FIN
L_HA2:
s_setprio 0
s_barrier""")
    if not sm & 8: A('s_endpgm')
    A("""s_cmp_ge_u32 s2, 184
s_cbranch_scc1 L_FFN2
s_cmp_lt_u32 s2, 40
s_cbranch_scc1 """ + ('L_HA_fin' if f0 else 'L_end'))
    xloads()
    A('L_FFN1x:')
    A("""v_add_u32 v6, {lw}, v6
v_add_u32 v7, 36864, v6
v_mul_u32_u24 v11, 18432, v5
v_add_u32 v11, v11, v12
s_cmp_lt_u32 s2, 112
s_cselect_b32 s52, 40, 112
s_sub_u32 s52, s2, s52
s_lshr_b32 s52, s52, 3
s_and_b32 s53, s2, 7
s_mul_i32 s53, s53, 9
s_add_u32 s52, s52, s53
s_lshl_b32 s52, s52, 8
s_add_u32 s57, s52, {preg}
v_mov_b32 v13, {lf}
s_waitcnt vmcnt(0)""".format(lw=L_W, preg=PREG, lf=L_CTL + 8))
    w_reads(0, 6, 0)
    for ks in range(18):
        if ks + 1 < 18:
            w_reads(ks + 1, 6 if ks + 1 < 9 else 7, (ks + 1) % 9)
            A('s_waitcnt lgkmcnt(8)')
        else:
            A('s_waitcnt lgkmcnt(0)')
        w_mfma(ks, AC, XF + 4 * ks, ks == 0)
    A('s_cmp_ge_u32 s2, 112\ns_cbranch_scc1 L_UP')
    A('ds_read_b32 v3, v13\ns_waitcnt lgkmcnt(0)\nv_readfirstlane_b32 s64, v3')
    publish_f32(128, bool(loc & 4))
    stamp(9)
    A('s_barrier\ns_branch L_FIN')
    A("""L_UP:
s_mov_b32 s58, {nl}
s_mov_b32 s63, 0xffff0000
s_nop 3""".format(nl=hex(NLOG2E)))
    select8(PUB, AC)
    for i in range(2): round4([PUB + 4 * i + e for e in range(4)], 56)
    A('s_barrier')
    poll_tag(['buffer_load_dwordx4 v[%d:%d], v11, s[48:51], s57 offen offset:%d %s' % (48 + 4 * i, 51 + 4 * i, i * 128, MF) for i in range(2)],
             range(48, 56), slp)
    for e in range(8): A('v_and_b32 v%d, s59, v%d' % (48 + e, 48 + e))
    for i in range(2): round4([48 + 4 * i + e for e in range(4)], 56)
    for e in range(8): A('v_mul_f32 v%d, s58, v%d' % (16 + e, 48 + e))
    for e in range(8): A('v_exp_f32 v%d, v%d' % (16 + e, 16 + e))
    for e in range(8): A('v_add_f32 v%d, 1.0, v%d' % (16 + e, 16 + e))
    for e in range(8): A('v_rcp_f32 v%d, v%d' % (16 + e, 16 + e))
    for e in range(8): A('v_mul_f32 v%d, v%d, v%d' % (48 + e, 48 + e, 16 + e))
    for i in range(2): round4([48 + 4 * i + e for e in range(4)], 56)
    for e in range(8): A('v_mul_f32 v%d, v%d, v%d' % (PUB + e, PUB + e, 48 + e))
    for i in range(2): round4([PUB + 4 * i + e for e in range(4)], 56)
    for e in range(8): A('v_or_b32 v%d, v%d, v62' % (PUB + e, PUB + e))
    A('ds_read_b32 v3, v13\ns_add_u32 s57, s52, %d\ns_waitcnt lgkmcnt(0)\nv_readfirstlane_b32 s64, v3' % HM)
    publish(128, bool(loc & 8))
    stamp(9)
    if f0: A('s_cmp_ge_u32 s2, 144\ns_cbranch_scc1 L_end')
    A('s_branch L_FIN')

    A('L_FFN2:')
    trbase(6, 128, 16, 10, 4)
    if rm & 2: A('s_sub_u32 s53, s2, 184\ns_and_b32 s52, s53, 7\ns_lshr_b32 s53, s53, 3')
    else: A('s_sub_u32 s53, s2, 184\ns_mul_i32 s52, s53, 7282\ns_lshr_b32 s52, s52, 16\ns_mul_i32 s54, s52, 9\ns_sub_u32 s53, s53, s54')
    A("""v_add_u32 v6, {lw}, v6
v_add_u32 v7, 36864, v6
v_mul_u32_u24 v9, 18432, v5
v_lshl_add_u32 v9, v8, 4, v9
v_and_b32 v10, 8, v0
v_lshl_add_u32 v9, v10, 3, v9
s_mul_i32 s56, s52, 2304
s_add_u32 s56, s56, {hm}
s_mov_b32 s58, 0x07060302
v_mul_u32_u24 v11, 18432, v5
v_add_u32 v11, v11, v12
s_lshl_b32 s57, s53, 11
s_lshl_b32 s63, s52, 7
s_add_u32 s57, s57, s63
s_add_u32 s57, s57, {fin}
s_barrier
s_barrier""".format(lw=L_W, hm=HM, fin=FIN))
    def pack_frags(raw, cnt, sel):
        for k in range(cnt):
            r = raw + 4 * k
            A('v_perm_b32 v%d, v%d, v%d, %s\nv_perm_b32 v%d, v%d, v%d, %s' % (r, r + 1, r, sel, r + 1, r + 3, r + 2, sel))
        for k in range(cnt):
            r = raw + 4 * k
            for t in range(2):
                A('v_mov_b32_dpp v%d, v%d row_ror:8 row_mask:0xf bank_mask:0xf' % (r + 2 + t, r + t))
    def spread8(acc):
        for i in range(2):
            for e in range(4):
                A('v_mov_b32_dpp v%d, v%d row_ror:8 row_mask:0xf bank_mask:0xc' % (acc + 8 * i + e, acc + 8 * i + 4 + e))
    poll_tag(['buffer_load_dwordx4 v[%d:%d], v9, s[48:51], s56 offen offset:%d %s' % (XF + 4 * k, XF + 4 * k + 3, k * 128, MF) for k in range(18)],
             range(XF, XF + 72), slp)
    pack_frags(XF, 18, 's58')
    w_reads(0, 6, 0, 2048)
    for k in range(18):
        if k + 1 < 18:
            w_reads(k + 1, 6 if k + 1 < 9 else 7, (k + 1) % 9, 2048)
            A('s_waitcnt lgkmcnt(8)')
        else:
            A('s_waitcnt lgkmcnt(0)')
        w_mfma(k, AC, XF + 4 * k, k == 0)
    A('s_nop 7')
    spread8(AC)
    for i in range(2):
        for e in range(4): A('v_bfi_b32 v%d, s59, v%d, v62' % (PUB + 4 * i + e, AC + 8 * i + e))
    publish(1024)
    stamp(9)
    A('s_endpgm')

    sec('hbq')
    A('L_HB:')
    if prio: A('s_setprio %d' % prio)
    A("""v_bfe_u32 v6, v0, 3, 1
v_lshlrev_b32 v6, 9, v6
v_bfe_u32 v7, v0, 4, 1
v_lshl_add_u32 v6, v7, 8, v6
v_and_b32 v5, 7, v0
v_lshl_add_u32 v6, v5, 5, v6
v_lshrrev_b32 v7, 5, v0
v_lshl_add_u32 v6, v7, 4, v6
s_lshl_b32 s56, s30, 6
s_lshl_b32 s57, s31, 1
s_add_u32 s56, s56, s57
s_lshl_b32 s56, s56, 9
s_add_u32 s56, s56, {qp}
v_and_b32 v5, 15, v0
v_lshlrev_b32 v5, 4, v5
v_lshl_add_u32 v5, v7, 3, v5
v_add_u32 v4, {lq}, v5""".format(qp=QP, lq=L_Q))
    if qgate: A('v_mov_b32 v2, %d\nv_mov_b32 v3, 0\nds_write_b32 v2, v3' % (L_CTL + 4))
    epoch()
    if loc:
        A("""s_getreg_b32 s65, hwreg(HW_REG_XCC_ID)
s_and_b32 s65, s65, 15
s_add_u32 s65, s65, s89
s_and_b32 s64, s2, 7
s_mul_i32 s64, s64, 1280
s_lshr_b32 s63, s2, 3
s_lshl_b32 s63, s63, 2
s_add_u32 s64, s64, s63
s_add_u32 s64, s64, {xl}
v_mov_b32 v12, 0
v_mov_b32 v13, s65
s_mov_b64 exec, 1
buffer_store_dword v13, v12, s[48:51], s64 offen {fl}
s_mov_b64 exec, -1""".format(xl=XL, fl='' if xp else 'sc1'))
    if b0: A('s_barrier')
    if qgate:
        A("""s_sub_u32 s62, s2, 16
s_cmp_lt_u32 s62, 128
s_cbranch_scc1 L_qg3
L_qg:
s_sleep 1
ds_read_b32 v3, v2
s_waitcnt lgkmcnt(0)
v_readfirstlane_b32 s62, v3
s_cmp_eq_u32 s62, 0
s_cbranch_scc1 L_qg
L_qg3:""")
    poll_tag(['buffer_load_dwordx4 v[16:19], v6, s[48:51], s56 offen %s' % QF], range(16, 20), qslp)
    stamp(12)
    A('v_mov_b32 v2, %d\nv_mov_b32 v3, 0\nds_write_b32 v2, v3' % (L_CTL + 8))
    for i in range(4): A('v_and_b32 v%d, s59, v%d' % (32 + i, 16 + i))
    for i in range(4): A('v_mov_b32 v%d, v%d' % (40 + i, 32 + i))
    for i in range(4): A('v_permlane16_swap_b32 v%d, v%d' % (32 + i, 40 + i))
    for i in range(4): A('v_add_f32 v%d, v%d, v%d' % (32 + i, 32 + i, 40 + i))
    for i in range(2): A('v_cvt_pk_bf16_f32 v%d, v%d, v%d' % (8 + i, 32 + 2 * i, 33 + 2 * i))
    if ctl: A('v_mov_b32 v2, %d\nv_mov_b32 v3, 0\nds_write_b32 v2, v3' % L_CTL)
    A("""ds_write_b64 v4, v[8:9]
s_waitcnt lgkmcnt(0)
s_barrier
s_branch L_HB2""")
    sec('hb2')
    A('L_HB2:\ns_setprio 0')
    stamp(2)
    if loc:
        class_load(14, 15)
        A('s_waitcnt vmcnt(0)')
        class_test(14, 's64')
        A('v_mov_b32 v2, %d\nv_mov_b32 v3, s64\nds_write_b32 v2, v3' % (L_CTL + 8))
        if diag == 6: A('s_mov_b64 exec, 1\nbuffer_store_dword v3, v252, s[80:83], 0 offen offset:56\ns_mov_b64 exec, -1')
    if ck == 1:
        A('''s_cmp_ge_u32 s2, 32
s_cbranch_scc1 L_nozero
s_mul_i32 s40, s2, %d
s_add_u32 s40, s40, %d
v_mov_b32 v2, 0
s_mov_b64 exec, 1
buffer_store_dword v2, v2, s[48:51], s40 offen sc1
s_mov_b64 exec, -1
L_nozero:''' % (rks, RK))
    WF = 64
    OF = 192
    FB = 164
    YA = 44
    A("""v_lshrrev_b32 v8, 4, v0
v_and_b32 v11, 8, v0
v_lshlrev_b32 v11, 3, v11
v_lshl_add_u32 v11, v8, 4, v11
v_and_b32 v10, 7, v0
v_lshl_add_u32 v12, v10, 9, v11
v_mul_u32_u24 v14, {bs}, v10
v_add_u32 v14, v14, v11
s_and_b32 s68, s2, 7
s_bfe_u32 s69, s2, 0x10003
s_lshl_b32 s69, s69, 4
s_add_u32 s68, s68, s69
s_lshl_b32 s72, s68, 12
s_add_u32 s72, s72, {orec}
s_add_u32 s73, s72, 32768
s_lshr_b32 s74, s2, 4
s_lshl_b32 s74, s74, 12
s_and_b32 s75, s2, 15
s_lshl_b32 s75, s75, 7
s_add_u32 s74, s74, s75
s_add_u32 s74, s74, {yin}
s_mov_b32 s71, 0x07060302
""".format(orec=OREC, bs=18 * 2048, yin=YIN))
    A("""s_cmp_ge_u32 s2, 144
s_cbranch_scc1 L_HB3
s_cmp_lt_u32 s2, 40
s_cselect_b32 s65, {lw}, {lqw}""".format(lw=L_W, lqw=L_QW).replace(', 0', ', 0'))
    trbase(6, 128, 8, 7, 4)
    A('v_add_u32 v6, s65, v6')
    for nt in range(4):
        for ks in range(8):
            for hf in range(2):
                r = WF + (nt * 8 + ks) * 4 + hf * 2
                A('ds_read_b64_tr_b16 v[%d:%d], v6 offset:%d' % (r, r + 1, ks * 4096 + hf * 2048 + nt * 32))
            if ks % 4 == 3: A('s_waitcnt lgkmcnt(0)')
    A('L_HB3:\ns_barrier')
    def checkpoint(k, cnt, gf, gs):
        if not ctl or gf < 0: return
        lab_ = newlab('L_nock')
        core = '''s_and_b32 s41, s2, 7
s_lshr_b32 s42, s2, 6
s_lshl_b32 s42, s42, 3
s_add_u32 s41, s41, s42
v_lshlrev_b32 v2, 2, v0
v_mov_b32 v3, s89
s_lshl_b64 s[42:43], 1, s41
s_mov_b32 exec_hi, 0
buffer_load_dword v4, v2, s[48:51], s40 offen sc1
s_mov_b64 exec, s[42:43]
buffer_store_dword v3, v2, s[48:51], s40 offen sc1
s_mov_b32 exec_lo, -1
s_waitcnt vmcnt(1)
v_cmp_eq_u32 vcc, s89, v4
s_mov_b64 exec, -1
s_mov_b32 s41, {gf}
s_mov_b32 s42, {gs}
s_bcnt1_i32_b32 s40, vcc_lo
''' if ck == 0 else '''s_add_u32 s42, s28, s40
s_addc_u32 s43, s29, 0
s_mov_b32 s40, 1
s_atomic_add s40, s[42:43], 0 glc
s_waitcnt lgkmcnt(0)''' + ('''
s_mov_b32 s41, 1
s_atomic_add s41, s[42:43], 256 glc
s_waitcnt lgkmcnt(0)''' if dum else '') + '''
s_min_u32 s40, s40, 31
s_mov_b32 s41, {gf}
s_mov_b32 s42, {gs}
''' if ck == 1 else '''s_mov_b32 s40, 16
s_mov_b32 s41, {gf}
s_mov_b32 s42, {gs}
'''
        A("""s_bfe_u32 s40, s2, 0x30003
s_mul_i32 s40, s40, {rs}
s_add_u32 s40, s40, {rk}
{core}v_cvt_f32_u32 v2, s40
v_mul_f32 v2, {r16}, v2
v_add_f32 v2, {b0}, v2
v_mul_f32 v3, v2, v2
v_mul_f32 v4, v3, v3
v_mul_f32 v4, v4, v4
v_mul_f32 v4, {c9}, v4
v_fmac_f32 v4, 0.5, v3
v_add_f32 v4, {c1}, v4
v_mul_f32 v2, v2, v4
s_cmp_ge_u32 s40, 16
s_cselect_b32 s41, s41, s42
s_cselect_b32 s43, 1, 2
v_fma_f32 v2, abs(v2), s41, 0.5
v_cvt_u32_f32 v2, v2
s_nop 0
v_readfirstlane_b32 s44, v2
s_sub_u32 s45, {c0}, s44
s_max_i32 s45, s45, 0
s_lshl_b32 s45, s45, 2
s_or_b32 s45, s45, s43
s_cmp_eq_u32 s44, 0
s_cselect_b32 s45, 0, s45
v_mov_b32 v2, {lctl}
v_mov_b32 v3, s45
ds_write_b32 v2, v3
{lab}:""".format(core=core.format(gf=hex(f2u(gf / 10)), gs=hex(f2u(gs / 10))), lab=lab_, rk=RK + k * 8 * rks, rs=rks, gf=hex(f2u(gf / 10)), gs=hex(f2u(gs / 10)), r16=hex(f2u(1 / 16)), b0=hex(f2u(-15.5 / 16)),
           c9=hex(f2u(0.6)), c1=hex(f2u(1.2)), c0=cnt - 2, lctl=L_CTL))
    checkpoint(3, info['cntK'], gK, gKs)
    A('s_barrier')
    checkpoint(0, info['cntA'], gA, gAs)
    stamp(14)
    for k, (g1, g2) in enumerate(((gB, gBs), (gC, gCs), (gD, gDs))[:len(info['cps'])]):
        A('s_barrier')
        if k == 0: stamp(15)
        checkpoint(1 + k, info['cps'][k], g1, g2)
    A('s_cmp_ge_u32 s2, 144\ns_cbranch_scc1 ' + ('L_hbend' if hs != 4 else 'L_end'))
    if prio: A('s_setprio %d' % prio)
    A('s_barrier')
    if not sm & 64: A('s_endpgm')
    poll_tag(['buffer_load_dwordx4 v[%d:%d], v12, s[48:51], %s offen offset:%d %s' % (OF + 4 * ks, OF + 4 * ks + 3, 's72' if ks < 4 else 's73', (ks % 4) * 128, 'sc1 nt' if h1nt else 'sc1') for ks in range(8)],
             range(OF, OF + 32), tslp)
    if b3 == 2: A('s_barrier')
    if diag == 1: A('s_memrealtime s[94:95]')
    if not ilv:
        for half in range(2):
            pack_frags(OF + 16 * half, 4, 's71')
            for ks in range(4 * half, 4 * half + 4):
                for nt in range(4):
                    r = WF + (nt * 8 + ks) * 4
                    A('v_mfma_f32_16x16x32_bf16 v[%d:%d], v[%d:%d], v[%d:%d], %s' % (YA + nt * 4, YA + nt * 4 + 3, r, r + 3, OF + ks * 4, OF + 3 + ks * 4, '0' if ks == 0 else 'v[%d:%d]' % (YA + nt * 4, YA + nt * 4 + 3)))
    else:
        def pk_perm(k):
            r = OF + 4 * k
            A('v_perm_b32 v%d, v%d, v%d, s71\nv_perm_b32 v%d, v%d, v%d, s71' % (r, r + 1, r, r + 1, r + 3, r + 2))
        def pk_dpp(k):
            r = OF + 4 * k
            for t in range(2): A('v_mov_b32_dpp v%d, v%d row_ror:8 row_mask:0xf bank_mask:0xf' % (r + 2 + t, r + t))
        pk_perm(0); pk_perm(1); pk_dpp(0); pk_dpp(1)
        for ks in range(8):
            for nt in range(4):
                r = WF + (nt * 8 + ks) * 4
                A('v_mfma_f32_16x16x32_bf16 v[%d:%d], v[%d:%d], v[%d:%d], %s' % (YA + nt * 4, YA + nt * 4 + 3, r, r + 3, OF + ks * 4, OF + 3 + ks * 4, '0' if ks == 0 else 'v[%d:%d]' % (YA + nt * 4, YA + nt * 4 + 3)))
                if ks + 2 < 8 and nt == 0: pk_perm(ks + 2)
                if ks + 2 < 8 and nt == 2: pk_dpp(ks + 2)
    A('s_nop 5')
    for i in range(2):
        for e in range(4):
            A('v_mov_b32_dpp v%d, v%d row_ror:8 row_mask:0xf bank_mask:0xc' % (YA + 8 * i + e, YA + 8 * i + 4 + e))
        for e in range(4):
            A('v_bfi_b32 v%d, s59, v%d, v62' % (YA + 8 * i + e, YA + 8 * i + e))
        A('buffer_store_dwordx4 v[%d:%d], v14, s[48:51], s74 offen offset:%d sc1%s' % (YA + 8 * i, YA + 8 * i + 3, i * 2048, ' nt' if snt & 2 else ''))
    if b3 == 1: A('s_barrier')
    stamp(4)
    if diag == 1: A('s_mov_b64 exec, 1\nv_mov_b32 v246, s94\nv_mov_b32 v247, s95\nbuffer_store_dwordx2 v[246:247], v252, s[80:83], 0 offen offset:80\ns_mov_b64 exec, -1')
    A('L_hbend:')
    stamp(99)
    A('s_endpgm')

    A("""L_FIN:
s_sub_u32 s64, s2, """ + ('0' if f0 else '40') + """
s_mul_i32 s76, s64, 3641
s_lshr_b32 s76, s76, 16
s_mul_i32 s77, s76, 18
s_sub_u32 s77, s64, s77
s_mul_i32 s56, s76, 1152
s_add_u32 s57, s56, 1152
s_mov_b32 s63, 0xffff0000""")
    if not sm & 32: A('s_endpgm')
    srd(32, 4, 's57')
    srd(36, 22, 1152)
    A("""v_lshlrev_b32 v5, 5, v0
v_lshlrev_b32 v15, 3, v0
buffer_load_dwordx4 v[16:19], v5, s[32:35], s56 offen{f}
buffer_load_dwordx4 v[20:23], v5, s[32:35], s56 offen offset:16{f}
buffer_load_dwordx4 v[24:27], v5, s[36:39], 0 offen{f}
buffer_load_dwordx4 v[28:31], v5, s[36:39], 0 offen offset:16{f}
s_mov_b32 s58, 0x3f803f80
v_mov_b32 v32, 0
s_waitcnt vmcnt(0)""".format(f=' nt' if xnt else ''))
    for r in range(8):
        A("""v_lshlrev_b32 v34, 16, v{x}
v_and_b32 v35, s63, v{x}
v_lshlrev_b32 v36, 16, v{w}
v_and_b32 v37, s63, v{w}
v_mul_f32 v34, v34, v36
v_mul_f32 v35, v35, v37
v_cvt_pk_bf16_f32 v34, v34, v35
v_dot2_f32_bf16 v32, v34, s58, v32""".format(x=16 + r, w=24 + r))
    A("""s_nop 2
v_add_f32_dpp v32, v32, v32 quad_perm:[1,0,3,2] row_mask:0xf bank_mask:0xf
s_nop 1
v_add_f32_dpp v32, v32, v32 quad_perm:[2,3,0,1] row_mask:0xf bank_mask:0xf
s_nop 1
v_add_f32_dpp v32, v32, v32 row_half_mirror row_mask:0xf bank_mask:0xf
s_nop 1""")
    xsum([32], 34)
    A("""v_cvt_pk_bf16_f32 v32, v32, v32
v_and_b32 v32, s63, v32
v_mul_f32 v32, {nl2e}, v32
v_exp_f32 v32, v32
s_nop 0
v_add_f32 v32, 1.0, v32
v_rcp_f32 v32, v32
s_nop 0
v_cvt_pk_bf16_f32 v32, v32, v32
v_and_b32 v{g}, s63, v32
v_sub_f32 v33, 1.0, v{g}
v_cvt_pk_bf16_f32 v33, v33, v33
v_and_b32 v33, s63, v33
s_lshl_b32 s56, s64, 10
s_add_u32 s56, s56, {fin}
s_barrier
s_barrier""".format(nl2e=hex(NLOG2E), fin=FIN, g=FB + 4))
    poll_tag(['buffer_load_dwordx4 v[%d:%d], v1, s[48:51], s56 offen %s' % (FB, FB + 3, MF)], range(FB, FB + 4), slp)
    stamp(13)
    for r in range(FB, FB + 4): A('v_and_b32 v%d, s59, v%d' % (r, r))
    xsum(list(range(FB, FB + 4)), 40)
    round4(range(FB, FB + 4), 40)
    for r in range(FB, FB + 4): A('v_mul_f32 v%d, v33, v%d' % (r, r))
    round4(range(FB, FB + 4), 40)
    A("""s_lshl_b32 s78, s64, 11
s_add_u32 s78, s78, {yin}
s_mul_i32 s79, s76, 1152
s_lshl_b32 s56, s77, 6
s_add_u32 s79, s79, s56""".format(yin=YIN))
    srd(32, 24, 8 * 1152)
    for _ in range(len(info['cps']) - 1): A('s_barrier')
    if pt == 2:
        for i in range(2): A('buffer_load_dwordx4 v[%d:%d], v1, s[48:51], s78 offen offset:%d sc1' % (16 + 4 * i, 19 + 4 * i, i * 1024))
    if prio: A('s_setprio %d' % prio)
    A('s_barrier')
    if not sm & 64:
        stamp(1)
        A('s_endpgm')
    if pt == 1:
        for i in range(2): A('buffer_load_dwordx4 v[%d:%d], v1, s[48:51], s78 offen offset:%d sc1' % (16 + 4 * i, 19 + 4 * i, i * 1024))
    if b3: A('s_barrier')
    poll_tag(['buffer_load_dwordx4 v[%d:%d], v1, s[48:51], s78 offen offset:%d %s' % (16 + 4 * i, 19 + 4 * i, i * 1024, TF) for i in range(2)],
             range(16, 24), fslp2)
    if diag == 1: A('s_memrealtime s[94:95]')
    for r in range(16, 24): A('v_and_b32 v%d, s59, v%d' % (r, r))
    for c in range(4): A('v_add_f32 v%d, v%d, v%d' % (16 + c, 16 + c, 20 + c))
    xsum([16, 17, 18, 19], 20)
    round4([16, 17, 18, 19], 20)
    for c in range(4): A('v_mul_f32 v%d, v%d, v%d' % (16 + c, FB + 4, 16 + c))
    round4([16, 17, 18, 19], 20)
    for c in range(4): A('v_add_f32 v%d, v%d, v%d' % (16 + c, 16 + c, FB + c))
    A("""v_cvt_pk_bf16_f32 v20, v16, v17
v_cvt_pk_bf16_f32 v21, v18, v19
s_mov_b64 exec, 0xff
buffer_store_dwordx2 v[20:21], v15, s[32:35], s79 offen
s_cmp_lg_u32 s64, 0
s_cbranch_scc1 L_noepoch
s_mov_b64 exec, 1
v_mov_b32 v2, s88
v_mov_b32 v3, %d
buffer_store_dword v2, v3, s[48:51], 0 offen sc1
L_noepoch:
s_mov_b64 exec, -1""" % EPOCH)
    if diag == 1: A('s_memrealtime s[96:97]')
    if diag:
        A('s_waitcnt vmcnt(0)')
        stamp(1)
    if diag == 1: A('s_mov_b64 exec, 1\nv_mov_b32 v244, s94\nv_mov_b32 v245, s95\nv_mov_b32 v246, s96\nv_mov_b32 v247, s97\nbuffer_store_dwordx2 v[244:245], v252, s[80:83], 0 offen offset:88\nbuffer_store_dwordx2 v[246:247], v252, s[80:83], 0 offen offset:64\ns_mov_b64 exec, -1')
    A('L_end:\ns_endpgm')

    nacc = 0
    nv = max(RING + D * 4, 224)
    if diag: nv = 256
    assert nv <= 256
    out = HEADER + '; @launch grid=(256,1,1) block=(192,1,1) lds=%d\n' % lds
    out += DOC
    out += '.amdgcn_target "amdgcn-amd-amdhsa--gfx950"\n.text\n.globl %s\n.p2align 8\n.type %s,@function\n' % (KN, KN)
    L = []
    titles = {'entry': 'entry: kernel arguments, role dispatch', 'haq': 'HA: partial q (64 columns x 288 rows of wq, 8 batches)',
              'hbq': 'HB: gather q of this (batch, head) into LDS', 'stream': 'S: side loads, K phase, V phase, publish o',
              'stream2': 'S: V loop bodies with a wider / narrower load window', 'ha2': 'HA: FFN gate / up / down slices',
              'hb2': 'HB: window control, out-projection slice ; HA: final sum'}
    for nm in ('entry', 'haq', 'hbq', 'stream', 'stream2', 'ha2', 'hb2'):
        if nm in secs:
            if nm != 'entry': L.append('; ======== ' + titles[nm] + ' ========:')
            L += secs[nm]
    out += '\n'.join(('' if x.endswith(':') else '    ') + x for x in L) + '\n'
    out += '''.section .rodata,"a"
.p2align 6
.amdhsa_kernel %s
  .amdhsa_next_free_vgpr %d
  .amdhsa_next_free_sgpr 102
  .amdhsa_accum_offset %d
  .amdhsa_group_segment_fixed_size 0
  .amdhsa_kernarg_size 104
  .amdhsa_user_sgpr_count 2
  .amdhsa_user_sgpr_kernarg_segment_ptr 1
  .amdhsa_system_sgpr_workgroup_id_x 1
.end_amdhsa_kernel
''' % (KN, nv + nacc, nv)
    return out


if __name__ == '__main__':
    names = []
    for spec in sys.argv[1:]:
        kw = {}
        for p in spec.split(','):
            if not p: continue
            k, v = p.split('=')
            kw[k] = int(v)
        nm = 'k_' + (spec.replace(',', '_').replace('=', '') or 'def') + '.s'
        open(nm, 'w').write(gen(**kw))
        names.append(nm)
    print(' '.join(names))
```

```python
import sys, math, struct

KN = 'gated_mix__mha_block_cached__swiglu_ffn__decode_kernel'

HEADER = '''; Kernarg layout for this problem (104 bytes, ptrs only, base s[0:1]):
'''

DOC = "; ---------------------------------------------------------------------------------------------\n; ---------------------------------------------------------------------------------------------\n"

EPOCH = 0x0
RK = 0x1000
XL = 0xB000
QP = 0x10000
HM = 0x70000
FIN = 0xA0000
PREG = 0xD0000
OREC = 0x100000
YIN = 0x140000
WS_SIZE = 0x200000
L_QW = 0
L_W = 36864
L_SC = 110592
L_Q = 143360
L_CTL = 143616
LDS_BYTES = 143680

def f2u(x):
    return struct.unpack('<I', struct.pack('<f', x))[0]

CSC = f2u(math.log2(math.e) / math.sqrt(128.0))
NLOG2E = f2u(-math.log2(math.e))


def gen(hs=0, n=20, q=2, D=32, w0=24, na=28, nend=0, kend=0, ctl=1, nf=24, ns=18, gA=125, gAs=100, gB=65, gBs=55, pB=45, pC=72, gC=50, gCs=40, pD=90, gD=30, gDs=25, rks=1280, pt=0, ck=1, b0q=35, fslp2=2, b3=2, loc=15, xp=1, dbl=-1, gK=-1, gKs=0, pK=25, qgate=1, dum=0, f0=1, early=1, hwo=10, ilv=1, h1nt=1, xnt=0, cnt_=0, snt=0, rm=3, Z=64, zg=4, wa=4, diag=0, spin=1, prio=3, vacc=0, slp=64, qslp=2, b0=0, fb=0,
        sm=127, noproc=0, tslp=0, mnt=1, qnt=1, tnt=0, lds=LDS_BYTES, ww=2, wa2=0, n1=0, n1it=0):
    secs = {}
    cur = [None]
    def sec(name):
        cur[0] = secs.setdefault(name, [])
    def A(s):
        for x in s.split('\n'):
            x = x.strip()
            if x: cur[0].append(x)
    lab = [0]
    def newlab(p):
        lab[0] += 1
        return '%s_%d' % (p, lab[0])
    MF = 'sc1 nt' if mnt else 'sc1'
    QF = 'sc1 nt' if qnt else 'sc1'
    TF = 'sc1 nt' if tnt else 'sc1'
    TAG = 60

    sec('entry')
    A(KN + ':')
    A('s_cmp_ge_u32 s2, 256\ns_cbranch_scc1 L_end')
    if diag: A('s_memrealtime s[90:91]')
    A("""s_load_dwordx16 s[4:19], s[0:1], 0
s_load_dwordx8 s[20:27], s[0:1], 64
s_load_dwordx2 s[28:29], s[0:1], 96
v_lshrrev_b32 v1, 6, v0
v_and_b32 v0, 63, v0
v_readfirstlane_b32 s3, v1
v_lshlrev_b32 v1, 4, v0
s_lshr_b32 s30, s2, 5
s_and_b32 s31, s2, 31
""")
    def common():
        A("""s_load_dword s88, s[28:29], %d
s_mov_b32 s48, s28
s_mov_b32 s49, s29
s_mov_b32 s50, %d
s_mov_b32 s51, 0x20000""" % (EPOCH, WS_SIZE))
    if not early:
        A('s_waitcnt lgkmcnt(0)')
        common()
    A("""s_cmp_eq_u32 s3, 0
s_cbranch_scc1 L_S
s_cmp_eq_u32 s3, 2
s_cbranch_scc1 L_HB""")

    def stamp(slot):
        if not diag: return
        if diag in (4, 5) and slot not in (1, 3): return
        if diag == 6 and slot not in (1, 3, 2, 14, 5, 15): return
        if diag == 7 and slot not in (1, 3): return
        if diag in (1, 6) and slot == 99: return
        if diag == 1 and slot == 15: return
        if diag == 3:
            if hs and slot == hs: A('s_memrealtime s[90:91]\ns_waitcnt lgkmcnt(0)')
            if (slot == 1 and hs in (0, 1)) or (slot == 3 and hs == 3) or (slot == 99 and hs in (2, 12, 14, 4)):
                lp = newlab('L_hold')
                A('%s:\ns_memrealtime s[92:93]\ns_waitcnt lgkmcnt(0)\ns_sub_u32 s92, s92, s90\ns_cmp_lt_u32 s92, 25000\ns_cbranch_scc1 %s' % (lp, lp))
            return
        A("""s_memrealtime s[92:93]
s_add_u32 s80, s28, 0x40000000
s_addc_u32 s81, s29, 0
s_mov_b32 s82, 0x20000
s_mov_b32 s83, 0x20000
s_lshl_b32 s84, s2, 7
s_mov_b64 s[86:87], exec
s_mov_b64 exec, 1
s_waitcnt lgkmcnt(0)
v_mov_b32 v250, s92
v_mov_b32 v251, s93
v_mov_b32 v252, s84
buffer_store_dwordx2 v[250:251], v252, s[80:83], 0 offen offset:%d""" % (slot * 8))
        if slot == 3:
            A("""s_sub_u32 s85, s2, """ + ('0' if f0 else '40') + """
s_cmp_lt_u32 s85, 144
s_cbranch_scc1 L_st3
buffer_store_dwordx2 v[250:251], v252, s[80:83], 0 offen offset:8
L_st3:
s_getreg_b32 s85, hwreg(HW_REG_XCC_ID)
v_mov_b32 v250, s90
v_mov_b32 v251, s91
buffer_store_dwordx2 v[250:251], v252, s[80:83], 0 offen
s_nop 1
v_mov_b32 v250, s85
v_mov_b32 v251, 0
buffer_store_dwordx2 v[250:251], v252, s[80:83], 0 offen offset:48""")
        A('s_mov_b64 exec, s[86:87]')

    def epoch():
        A("""s_waitcnt lgkmcnt(0)
s_mul_i32 s89, s88, 0x9E3779B1
s_add_u32 s89, s89, 0x7F4A7C15
s_add_u32 s88, s88, 1""")
        for e, c in enumerate((0, 0x55, 0xAA, 0x33)):
            A('s_add_u32 s63, s88, %d\ns_and_b32 s63, s63, 0xff\nv_mov_b32 v%d, s63' % (c, TAG + e))
        A('s_mov_b32 s59, 0xffffff00')
    def poll_tag(loads, regs, sleep, bound, masked=True, full=()):
        lp, ld = newlab('L_poll'), newlab('L_pdone')
        A('s_mov_b32 s62, %d\n%s:' % (bound if spin else 1 << 12, lp))
        for x in loads: A(x)
        A('s_waitcnt vmcnt(0)')
        rs = list(regs)
        assert rs[0] % 4 == 0 and rs == list(range(rs[0], rs[0] + len(rs))) and len(rs) % 4 == 0
        A('v_xor_b32 v2, v%d, v60\nv_xor_b32 v3, v%d, v61' % (rs[0], rs[1]))
        for i, r in enumerate(rs[2:]):
            A('v_bitop3_b32 v%d, v%d, v%d, v%d bitop3:0xf6' % (2 + (i & 1), 2 + (i & 1), r, TAG + r % 4))
        A('v_or_b32 v2, v2, v3\nv_and_b32 v2, 0xff, v2')
        for r in full:
            A('v_bitop3_b32 v2, v2, v%d, s89 bitop3:0xf6' % r)
        A("""v_cmp_ne_u32 vcc, 0, v2
s_cbranch_vccz {ld}
{mk}
{sl}
s_sub_u32 s62, s62, 1
s_cbranch_scc0 {lp}
{ld}:
s_mov_b64 exec, -1""".format(lp=lp, ld=ld, sl='s_sleep %d' % sleep if sleep else '', mk='s_mov_b64 exec, vcc' if masked else ''))
    def class_load(vd, va):
        A('''s_getreg_b32 s65, hwreg(HW_REG_XCC_ID)
s_and_b32 s65, s65, 15
s_add_u32 s65, s65, s89
s_and_b32 s64, s2, 7
s_mul_i32 s64, s64, 1280
s_add_u32 s64, s64, {xl}
v_and_b32 v{a}, 31, v0
v_lshlrev_b32 v{a}, 2, v{a}
buffer_load_dword v{d}, v{a}, s[48:51], s64 offen sc1{f}'''.format(xl=XL, a=va, d=vd, f=' nt' if cnt_ else ''))
    def class_test(vd, sd):
        A('v_cmp_ne_u32 vcc, s65, v%d\ns_nop 0\ns_cmp_eq_u64 vcc, 0\ns_cselect_b32 %s, 1, 0' % (vd, sd))
    def srd(sn, ptr, size):
        A('s_mov_b32 s%d, s%d\ns_mov_b32 s%d, s%d\ns_mov_b32 s%d, %s\ns_mov_b32 s%d, 0x20000' % (sn, ptr, sn + 1, ptr + 1, sn + 2, size, sn + 3))
    def trbase(dst, rowstride, colmul, tmp, gm=8):
        A("""v_lshrrev_b32 v{d}, 4, v0
v_mul_u32_u24 v{d}, {gm}, v{d}
v_bfe_u32 v{t}, v0, 2, 2
v_add_u32 v{d}, v{d}, v{t}
v_mul_u32_u24 v{d}, {rs}, v{d}
v_and_b32 v{t}, 3, v0
v_mul_u32_u24 v{t}, {cm}, v{t}
v_add_u32 v{d}, v{d}, v{t}""".format(d=dst, t=tmp, rs=rowstride, cm=colmul, gm=gm))
    def xsum(regs, tmp):
        for r in regs: A('v_add_f32_dpp v%d, v%d, v%d row_ror:8 row_mask:0xf bank_mask:0xf' % (r, r, r))
        for sw in ('v_permlane16_swap_b32', 'v_permlane32_swap_b32'):
            for i, r in enumerate(regs): A('v_mov_b32 v%d, v%d' % (tmp + i, r))
            if len(regs) < 3: A('s_nop 1')
            for i, r in enumerate(regs): A('%s v%d, v%d' % (sw, r, tmp + i))
            for i, r in enumerate(regs): A('v_add_f32 v%d, v%d, v%d' % (r, r, tmp + i))
    def round4(regs, tmp):
        a, b, c, d = regs
        A("""v_cvt_pk_bf16_f32 v{t0}, v{a}, v{b}
v_cvt_pk_bf16_f32 v{t1}, v{c}, v{d}
v_lshlrev_b32 v{a}, 16, v{t0}
v_and_b32 v{b}, s63, v{t0}
v_lshlrev_b32 v{c}, 16, v{t1}
v_and_b32 v{d}, s63, v{t1}""".format(a=a, b=b, c=c, d=d, t0=tmp, t1=tmp + 1))

    vQ = 4
    vMask = 8
    vT0, vU0, vX0 = 12, 14, 2
    vA = 16
    vAcc = 24
    vS0, vS1, vR, vT, vT2, vPK, vM, vMC, vL = 28, 29, 30, 31, 32, 33, 34, 35, 36
    vAddr, vSA = 37, 38
    vKA, vKB, vVA, vVB = 40, 41, 42, 43
    vQM = 44
    RING = 64
    assert zg == 4
    assert D % 16 == 0 and n + q <= D and D % q == 0
    def rr(t):
        b = RING + (t % D) * 4
        return 'v[%d:%d]' % (b, b + 3)
    HALF = 2048
    TOT = 2 * HALF
    sec('stream')
    A('L_S:')
    if early:
        A('s_waitcnt lgkmcnt(0)')
        common()
    A("""s_lshl_b32 s52, s2, 21
s_lshr_b32 s53, s2, 11
s_add_u32 s32, s6, s52
s_addc_u32 s33, s7, s53
s_mov_b32 s34, 0x200000
s_mov_b32 s35, 0x20000
s_add_u32 s36, s8, s52
s_addc_u32 s37, s9, s53
s_mov_b32 s38, 0x200000
s_mov_b32 s39, 0x20000
s_mov_b32 s54, 0
s_mov_b32 s53, 0
v_lshrrev_b32 v2, 4, v0
v_and_b32 v3, 3, v0
v_lshlrev_b32 v3, 4, v3
v_lshl_add_u32 v{QA}, v2, 6, v3
v_bfe_u32 v3, v0, 2, 2
v_lshl_add_u32 v{KA}, v3, 8, v{QA}
v_add_u32 v{KB}, {z}, v{KA}
v_and_b32 v3, 15, v0
v_lshlrev_b32 v3, 4, v3
v_lshl_add_u32 v{VA}, v2, 10, v3
v_add_u32 v{VB}, {z}, v{VA}
v_add_u32 v{QA}, {lq}, v{QA}""".format(QA=vS0, KA=vKA, KB=vKB, VA=vVA, VB=vVB, z=Z * 1024, lq=L_Q))
    st = {'issued': 0, 'landed': -1}
    info = {}
    def issue(t):
        sr, so = ('s[32:35]', 's54') if t < HALF else ('s[36:39]', 's53')
        r = t % (2 * zg)
        if t < HALF: A('buffer_load_dwordx4 %s, v%d, %s, %s offen offset:%d nt' % (rr(t), vKA if r < zg else vKB, sr, so, (r % zg) * 1024))
        else: A('buffer_load_dwordx4 %s, v%d, %s, %s offen offset:%d nt' % (rr(t), vVA if r < zg else vVB, sr, so, (r % zg) * 256))
        if r == 2 * zg - 1:
            A('s_add_u32 s68, %s, %d\ns_xor_b32 s69, s68, %s\ns_and_b32 s69, s69, %d\ns_add_u32 %s, s68, s69' % (so, zg * 1024, so, Z * 1024, so))
        st['issued'] = t + 1
    def wait_landed(t):
        c = st['issued'] - 1 - t
        assert 0 <= c < 63
        if t > st['landed']:
            A('s_waitcnt vmcnt(%d)' % c)
            st['landed'] = t
    def dpp(op, d, a, ctl, bank=0xf):
        A('%s_dpp v%d, v%d, v%d %s row_mask:0xf bank_mask:%s' % (op, d, a, a, ctl, hex(bank)))
    lane_of = lambda j: 4 * (j & 3) + (j >> 2)
    GPB = D // 16
    def sc_off(grp):
        return (grp % GPB) * 256
    def prepA(u):
        a = u % 8
        grp = u // 8
        if a == 0:
            A("""s_waitcnt lgkmcnt(0)
v_fma_f32 v{T}, v{R}, s55, -v{MC}
v_exp_f32 v{T}, v{T}""".format(T=vT, R=vR, MC=vMC))
            if grp + 1 < HALF // 16:
                if (grp + 1) % GPB == 0: A('v_add_u32 v%d, %d, v%d' % (vSA, GPB * 256, vSA))
                A('ds_read_b32 v%d, v%d offset:%d' % (vR, vSA, sc_off(grp + 1)))
            else:
                A('s_nop 0')
            A("""v_cvt_pk_bf16_f32 v{PK}, v{T}, v{T}
v_add_f32 v{Lr}, v{Lr}, v{T}
s_nop 0""".format(T=vT, PK=vPK, Lr=vL))
        for i in range(2):
            for k in range(4):
                A('v_and_b32_dpp v%d, v%d, v%d row_newbcast:%d row_mask:0xf bank_mask:0xf' % (vA + 4 * i + k, vPK, vMask + k, lane_of(2 * a + i)))
    def finish_l():
        for ctl in ('row_ror:8', 'row_ror:4', 'row_ror:2', 'row_ror:1'):
            dpp('v_add_f32', vL, vL, ctl); A('s_nop 1')
        A("""v_mov_b32 v{T}, v{Lr}
s_nop 1
v_permlane16_swap_b32 v{Lr}, v{T}
v_add_f32 v{Lr}, v{Lr}, v{T}
v_mov_b32 v{T}, v{Lr}
s_nop 1
v_permlane32_swap_b32 v{Lr}, v{T}
v_add_f32 v{Lr}, v{Lr}, v{T}
v_rcp_f32 v{Lr}, v{Lr}""".format(T=vT, Lr=vL))
        if loc & 1: A('ds_read_b32 v%d, v%d offset:8\ns_waitcnt lgkmcnt(0)\nv_readfirstlane_b32 s60, v%d' % (vT2, vT0 + 1, vT2))
    def pad_after_mfma(acc, need=8):
        have = 0
        for x in reversed(cur[0]):
            if x.startswith('v_mfma') and x.split()[1].startswith('v[%d:' % acc): break
            if x.endswith(':'):
                have += 1; break
            have += int(x.split()[1]) + 1 if x.startswith('s_nop') else 1
        if have < need: A('s_nop %d' % (need - have - 1))
    def post(c):
        acc = vA + 4 * (c & 1); a = c % 4
        x = vU0 + (a & 1)
        pad_after_mfma(acc)
        A('v_cndmask_b32 v%d, v%d, v%d, s[70:71]' % (vT0, acc, acc + 1))
        A('v_cndmask_b32 v%d, v%d, v%d, s[70:71]' % (vT0 + 1, acc + 2, acc + 3))
        A('v_cndmask_b32 v%d, v%d, v%d, s[72:73]' % (x, vT0, vT0 + 1))
        if a & 1:
            cc = a >> 1
            dpp('v_add_f32', vU0, vU0, 'quad_perm:[1,0,3,2]')
            A('s_nop 0')
            dpp('v_add_f32', vU0 + 1, vU0 + 1, 'quad_perm:[1,0,3,2]')
            A('v_cndmask_b32 v%d, v%d, v%d, s[70:71]' % (vX0 + cc, vU0, vU0 + 1))
            if cc:
                dpp('v_add_f32', vX0, vX0, 'quad_perm:[2,3,0,1]')
                A('s_nop 0')
                dpp('v_add_f32', vX0 + 1, vX0 + 1, 'quad_perm:[2,3,0,1]')
                grp = c // 4
                A('v_cndmask_b32 v%d, v%d, v%d, s[72:73]' % (vR, vX0, vX0 + 1))
                A('v_max_f32 v%d, v%d, v%d' % (vM, vM, vR))
                A('ds_write_b32 v%d, v%d offset:%d' % (vSA, vR, sc_off(grp)))
                if (grp + 1) % GPB == 0 and grp + 1 < HALF // 16: A('v_add_u32 v%d, %d, v%d' % (vSA, GPB * 256, vSA))
    def proc(u):
        t = 2 * u
        if t < HALF:
            if noproc & 1: return
            c = t // 4
            acc = vA + 4 * (c & 1)
            for i in range(2):
                j = (t + i) % 4
                A('v_mfma_f32_16x16x32_bf16 v[%d:%d], v[%d:%d], %s, %s' % (acc, acc + 3, vQM + 4 * j, vQM + 4 * j + 3, rr(t + i), '0' if j == 0 else 'v[%d:%d]' % (acc, acc + 3)))
            if t % 4 == 0 and c > 0: post(c - 1)
            if t + 2 == HALF: post(c)
            if t + 2 == HALF:
                A('v_subrev_u32 v%d, %d, v%d' % (vSA, ((HALF // 16 - 1) // GPB) * GPB * 256, vSA))
                A('ds_read_b32 v%d, v%d' % (vR, vSA))
                A('v_mov_b32 v%d, %d' % (vT0 + 1, L_CTL))
                for ctl in ('row_ror:8', 'row_ror:4', 'row_ror:2', 'row_ror:1'):
                    dpp('v_max_f32', vM, vM, ctl); A('s_nop 1')
                for sw in ('v_permlane16_swap_b32', 'v_permlane32_swap_b32'):
                    A('v_mov_b32 v{T}, v{M}\ns_nop 1\n{sw} v{M}, v{T}\nv_max_f32 v{M}, v{M}, v{T}'.format(T=vT, M=vM, sw=sw))
                A('v_mul_f32 v%d, s55, v%d\ns_barrier' % (vMC, vM))
                prepA(0)
        else:
            if noproc & 2: return
            if cur[0][-1].startswith('v_and'): A('s_nop 0')
            A('v_mfma_f32_16x16x32_bf16 v[%d:%d], v[%d:%d], %s, v[%d:%d]' % (vAcc, vAcc + 3, vA, vA + 3, rr(t), vAcc, vAcc + 3))
            A('v_mfma_f32_16x16x32_bf16 v[%d:%d], v[%d:%d], %s, v[%d:%d]' % (vAcc, vAcc + 3, vA + 4, vA + 7, rr(t + 1), vAcc, vAcc + 3))
            uu = u - HALF // 2
            if uu + 1 < HALF // 2: prepA(uu + 1)
            if uu + 1 == HALF // 2 - 8:
                pass
    win = [n]
    def paced_issue(cnt):
        for _ in range(cnt // q):
            t = st['issued']
            if t + q - 1 - win[0] >= 0:
                wait_landed(t + q - 1 - win[0])
            for i in range(q): issue(t + i)
    n0 = (n // q) * q
    def job_off(dst, jreg, rowbytes, bits=0):
        if bits:
            A('''s_and_b32 s68, {j}, {m}
s_lshr_b32 s69, {j}, {b}
s_mul_i32 {d}, s68, {rb}
s_lshl_b32 s69, s69, 7
s_add_u32 {d}, {d}, s69'''.format(j=jreg, d=dst, rb=rowbytes, m=(1 << bits) - 1, b=bits))
            return
        A('''s_mul_i32 s68, {j}, 7282
s_lshr_b32 s68, s68, 16
s_mul_i32 s69, s68, 9
s_sub_u32 s69, {j}, s69
s_mul_i32 {d}, s68, {rb}
s_lshl_b32 s69, s69, 7
s_add_u32 {d}, {d}, s69'''.format(j=jreg, d=dst, rb=rowbytes))
    def side_dma(cnt, sr, so, step, ldsreg, vreg):
        for i in range(cnt):
            A('s_mov_b32 m0, %d\ns_waitcnt vmcnt(%d)\nbuffer_load_dwordx4 %s, %s, %s offen nt lds\ns_add_u32 %s, %s, %s' % (ldsreg + i * 1024, w0 - 1, vreg, sr, so, so, so, step))
    A('''v_lshrrev_b32 v4, 3, v0
v_and_b32 v5, 7, v0
v_lshlrev_b32 v5, 4, v5
v_mul_u32_u24 v6, 1152, v4
v_add_u32 v6, v6, v5
v_mul_u32_u24 v7, 9216, v4
v_add_u32 v7, v7, v5''')
    srd(44, 12, 4096 * 1152)
    A('''s_and_b32 s68, s2, 7
s_bfe_u32 s69, s2, 0x10003
s_lshl_b32 s69, s69, 4
s_add_u32 s68, s68, s69
s_mul_i32 s75, s68, 147456
s_lshr_b32 s69, s2, 4
s_lshl_b32 s69, s69, 7
s_add_u32 s75, s75, s69
s_add_u32 s77, s75, 1179648
s_mov_b32 s78, %d''' % L_QW)
    A('''s_cmp_ge_u32 s2, 184
s_cbranch_scc1 L_S_down
s_cmp_lt_u32 s2, 40
s_cbranch_scc1 L_S_light
s_cmp_lt_u32 s2, 112
s_cselect_b32 s40, s16, s18
s_cselect_b32 s41, s17, s19
s_cselect_b32 s74, 40, 112
s_mov_b32 s42, 5308416
s_mov_b32 s43, 0x20000
s_sub_u32 s74, s2, s74
s_lshr_b32 s74, s74, 3
s_and_b32 s76, s2, 7
s_mul_i32 s76, s76, 9
s_add_u32 s74, s74, s76
s_lshl_b32 s74, s74, 7
s_mov_b32 s76, 73728
s_branch L_S_big
L_S_down:
s_sub_u32 s74, s2, 184''')
    job_off('s74', 's74', 663552, 3 if rm & 2 else 0)
    srd(40, 20, 4608 * 1152)
    A('''s_mov_b32 s76, 9216
v_mov_b32 v7, v6
L_S_big:''')
    if b0: A('s_barrier')
    if sm & 4: side_dma(72, 's[40:43]', 's74', 's76', L_W, 'v7')
    if hwo: A('s_branch L_S_k')
    else: A('s_cmp_ge_u32 s2, 144\ns_cbranch_scc1 L_S_k\ns_branch L_S_wo')
    A('L_S_light:\ns_mov_b32 s78, %d' % L_W)
    if b0: A('s_barrier')
    if hwo: A('s_cmp_ge_u32 s2, 16\ns_cbranch_scc1 L_S_k')
    A('L_S_wo:')
    if sm & 2:
        for i in range(32):
            so = 's75' if i < 16 else 's77'
            A('s_add_u32 m0, s78, %d\ns_waitcnt vmcnt(%d)\nbuffer_load_dwordx4 v6, s[44:47], %s offen nt lds\ns_add_u32 %s, %s, 9216' % (i * 1024, w0 - 1, so, so, so))
    A('L_S_k:')
    if diag == 7: A('s_memrealtime s[94:95]')
    for t in range(n0):
        A('s_waitcnt vmcnt(%d)' % (max(w0, n0) - 1))
        issue(t)
    A("""v_and_b32 v{T}, 1, v0
v_lshlrev_b32 v{T}, 4, v{T}
v_mov_b32 v{T2}, 0xffff
v_lshlrev_b32 v{T2}, v{T}, v{T2}
v_bfe_u32 v{T}, v0, 1, 3""".format(T=vT, T2=vT2))
    for j in range(4):
        A('v_cmp_eq_u32 vcc, %d, v%d\ns_nop 1\nv_cndmask_b32 v%d, 0, v%d, vcc' % (j, vT, vMask + j, vT2))
    epoch()
    A("""v_mov_b32 v{M}, 0xff800000
v_mov_b32 v{Lr}, 0
v_mov_b32 v{a0}, 0
v_mov_b32 v{a1}, 0
v_mov_b32 v{a2}, 0
v_mov_b32 v{a3}, 0
s_mov_b32 s55, {csc}
s_mov_b32 s70, 0xaaaaaaaa
s_mov_b32 s71, 0xaaaaaaaa
s_mov_b32 s72, 0xcccccccc
s_mov_b32 s73, 0xcccccccc
v_and_b32 v{T}, 15, v0
v_lshlrev_b32 v{T}, 4, v{T}
v_and_b32 v{T2}, 16, v0
v_lshl_add_u32 v{Ad}, v{T}, 1, v{T2}
s_lshl_b32 s57, s31, 3
s_add_u32 s57, s57, s30
s_lshl_b32 s57, s57, 9
s_add_u32 s57, s57, {orec}
s_mov_b32 s63, 0xffff0000
s_mov_b32 s58, {lsc}
v_lshl_add_u32 v{SA}, v0, 2, s58""".format(M=vM, Lr=vL, a0=vAcc, a1=vAcc + 1, a2=vAcc + 2, a3=vAcc + 3, csc=hex(CSC), T=vT, T2=vT2,
                              Ad=vAddr, SA=vSA, lsc=L_SC, orec=OREC))
    paced_issue(D - n0 - ((D - n0) & 1))
    if diag == 7: A('s_memrealtime s[96:97]')
    A('s_barrier')
    if diag == 7: A('s_memrealtime s[98:99]')
    A('ds_read_b128 v[%d:%d], v%d\nv_bfe_u32 v%d, v0, 2, 2' % (vQ, vQ + 3, vS0, vT))
    for j in range(4): A('v_cmp_eq_u32 s[%d:%d], %d, v%d' % (76 + 2 * j, 77 + 2 * j, j, vT))
    A('s_waitcnt lgkmcnt(0)')
    for j in range(4):
        for i in range(4): A('v_cndmask_b32 v%d, 0, v%d, s[%d:%d]' % (vQM + 4 * j + i, vQ + i, 76 + 2 * j, 77 + 2 * j))
    A('s_nop 0')
    done = [0]
    extra = [0]
    def do_proc():
        u = done[0]
        wait_landed(2 * u + 1)
        proc(u)
        done[0] += 1
    if not na: na = n0
    assert na >= n0 and (na - n0) % 2 == 0 and na + 2 <= D and nend <= na
    target_ahead = 2 + na
    k1 = n0 // 2 if D > target_ahead else 0
    for _ in range(k1):
        do_proc(); paced_issue(2)
    while st['issued'] - 2 * done[0] > target_ahead - 2:
        if st['issued'] - 2 * done[0] >= target_ahead + 2:
            do_proc(); do_proc(); paced_issue(2)
        else:
            do_proc()
    def steady():
        paced_issue(2); do_proc()
    def loop(name, limit):
        while (2 * done[0]) % D != 0: steady()
        niter = (limit - st['issued']) // D
        assert niter >= 2
        kc = ctl and gK >= 0
        info['cntK'] = niter - niter * pK // 100
        info['nK'] = niter
        A('s_mov_b32 s58, %d' % niter)
        if kc: A('v_mov_b32 v%d, %d' % (vS1, L_CTL))
        snap = (dict(st), done[0])
        for vi, (nm, w) in enumerate([(name, n)] + ([(name + 'f', nf), (name + 's', ns)] if kc else [])):
            st.update(snap[0]); done[0] = snap[1]
            st['landed'] = 2 * done[0] - 1
            win[0] = w
            if vi: sec('stream2')
            A(nm + ':')
            if kc: A('ds_read_b32 v%d, v%d' % (vT2, vS1))
            for _ in range(D // 2): steady()
            if vi: A('s_branch L_Kdisp')
        win[0] = n
        sec('stream')
        A("""L_Kdisp:
s_sub_u32 s58, s58, 1
s_cmp_eq_u32 s58, %d
s_cbranch_scc1 L_midC
L_midCback:""" % info['cntK'])
        if kc:
            A("""s_waitcnt lgkmcnt(0)
v_readfirstlane_b32 s60, v{c}
s_cmp_eq_u32 s58, 0
s_cbranch_scc1 L_Kexit
s_lshr_b32 s61, s60, 2
s_cmp_gt_u32 s58, s61
s_cselect_b32 s60, s60, 0
s_bitcmp1_b32 s60, 0
s_cbranch_scc1 {nm}f
s_bitcmp1_b32 s60, 1
s_cbranch_scc1 {nm}s
s_branch {nm}
L_Kexit:
v_mov_b32 v{c}, 0
ds_write_b32 v{a}, v{c}""".format(c=vT2, nm=name, a=vS1))
        else:
            A('s_cmp_lg_u32 s58, 0\ns_cbranch_scc1 %s' % name)
        st['issued'] += (niter - 1) * D
        done[0] += (niter - 1) * (D // 2)
        st['landed'] = 2 * done[0] - 1
    loop('L_loopK', HALF)
    while 2 * done[0] < HALF or (2 * done[0] - HALF) % D != 0: steady()
    assert HALF % D == 0 or True
    loop2_base = done[0]
    niter = (TOT - D - st['issued']) // D
    nit2 = kend // D if nend else 0
    niter -= nit2
    cps = [niter - niter * p // 100 for p in (pB, pC, pD) if p]
    info['cntA'], info['cps'] = niter, cps
    A('s_mov_b32 s58, %d\ns_mov_b32 s75, %d\ns_and_b32 s74, s75, 0xff' % (niter, sum(c << (8 * i) for i, c in enumerate(cps)) | (0xff << (8 * len(cps))) & 0xffffffff))
    variants = [('L_loopV', n)] + ([('L_loopVf', nf), ('L_loopVs', ns)] if ctl else [])
    assert not ctl or nf <= na
    snap = (dict(st), done[0])
    for vi, (name, w) in enumerate(variants):
        st.update(snap[0]); done[0] = snap[1]
        st['landed'] = 2 * done[0] - 1
        win[0] = w
        if vi: sec('stream2')
        A(name + ':')
        if ctl: A('ds_read_b32 v%d, v%d' % (vT2, vT0 + 1))
        for _ in range(D // 2): steady()
        if vi: A('s_branch L_Vdisp')
    win[0] = n
    sec('stream')
    A("""L_Vdisp:
s_sub_u32 s58, s58, 1
s_cmp_eq_u32 s58, s74
s_cbranch_scc1 L_midB
L_midBback:""")
    if ctl:
        A("""v_readfirstlane_b32 s60, v{c}
s_cmp_eq_u32 s58, 0
s_cbranch_scc1 L_Vexit
s_lshr_b32 s61, s60, 2
s_cmp_gt_u32 s58, s61
s_cselect_b32 s60, s60, 0
s_bitcmp1_b32 s60, 0
s_cbranch_scc1 L_loopVf
s_bitcmp1_b32 s60, 1
s_cbranch_scc1 L_loopVs
s_branch L_loopV
L_Vexit:""".format(c=vT2))
    else:
        A('s_cmp_lg_u32 s58, 0\ns_cbranch_scc1 L_loopV')
    st['issued'] += (niter - 1) * D
    st['landed'] += (niter - 1) * D
    done[0] += (niter - 1) * (D // 2)
    st['landed'] = 2 * done[0] - 1
    if nend: win[0] = nend
    if nit2:
        st['landed'] = 2 * done[0] - 1
        A('s_mov_b32 s58, %d\nL_loopV2:' % nit2)
        for _ in range(D // 2): steady()
        A('s_sub_u32 s58, s58, 1\ns_cmp_lg_u32 s58, 0\ns_cbranch_scc1 L_loopV2')
        st['issued'] += (nit2 - 1) * D
        st['landed'] += (nit2 - 1) * D
        done[0] += (nit2 - 1) * (D // 2)
    while st['issued'] < TOT: steady()
    ml_done = False
    while done[0] < TOT // 2:
        if not ml_done and done[0] + 1 >= TOT // 2 - 8 + 1:
            finish_l(); ml_done = True
        do_proc()
    A("""s_mov_b32 exec_hi, 0
s_cmp_eq_u32 s60, 1
s_nop 5
v_mul_f32 v4, v{a0}, v{Lr}
v_mul_f32 v5, v{a1}, v{Lr}
v_mul_f32 v6, v{a2}, v{Lr}
v_mul_f32 v7, v{a3}, v{Lr}
v_cvt_pk_bf16_f32 v2, v4, v5
v_cvt_pk_bf16_f32 v3, v6, v7
v_lshl_or_b32 v4, v2, 16, v60
v_and_or_b32 v5, v2, s63, v61
v_lshl_or_b32 v6, v3, 16, v62
v_and_or_b32 v7, v3, s63, v63
{st}
s_barrier""".format(st=('s_cbranch_scc1 L_oloc\nbuffer_store_dwordx4 v[4:7], v%d, s[48:51], s57 offen sc1\ns_branch L_odone\nL_oloc:\nbuffer_store_dwordx4 v[4:7], v%d, s[48:51], s57 offen\nL_odone:' % (vAddr, vAddr))
                 if loc & 1 else 'buffer_store_dwordx4 v[4:7], v%d, s[48:51], s57 offen %s' % (vAddr, 'sc1' if dbl < 0 else ''), a0=vAcc, a1=vAcc + 1, a2=vAcc + 2, a3=vAcc + 3, Ad=vAddr, Lr=vL))
    if diag:
        A('s_mov_b64 exec, -1')
        stamp(3)
        if diag == 7: A('s_mov_b64 exec, 1\nv_mov_b32 v244, s94\nv_mov_b32 v245, s96\nv_mov_b32 v246, s98\nv_mov_b32 v247, s100\nbuffer_store_dwordx4 v[244:247], v252, s[80:83], 0 offen offset:64\ns_mov_b64 exec, -1')
        A('s_mov_b32 exec_hi, 0')
    if dbl >= 0:
        A('s_waitcnt vmcnt(0)')
        if dbl: A('s_sleep %d' % dbl)
        A('buffer_store_dwordx4 v[4:7], v%d, s[48:51], s57 offen sc1' % vAddr)
    A('s_endpgm')
    A('L_midB:' + ('\ns_memrealtime s[94:95]' if diag == 5 else '') + '\ns_barrier\ns_lshr_b32 s75, s75, 8\ns_and_b32 s74, s75, 0xff\ns_branch L_midBback')
    A('L_midC:' + ('\ns_memrealtime s[100:101]' if diag == 7 else '') + '\ns_barrier\ns_branch L_midCback')

    XF = 72
    AC = 16
    AC2 = 32
    FR = 144
    PUB = 64
    def ha_setup1():
        srd(36, 4, 9216)
        A("""v_and_b32 v5, 7, v0
v_mul_u32_u24 v9, 1152, v5
v_lshrrev_b32 v8, 4, v0
v_lshl_add_u32 v9, v8, 4, v9""")
    def ha_setup2():
        trbase(6, 128, 16, 10)
        A("""v_and_b32 v10, 8, v0
v_lshlrev_b32 v12, 1, v10
v_lshl_add_u32 v12, v8, 5, v12
v_cmp_ne_u32 s[66:67], 0, v10""")
        epoch()
    def wdma(ldsoff, step, sr='s[32:35]', so='s54'):
        A('s_mov_b32 m0, %d\ns_nop 0\nbuffer_load_dwordx4 v4, %s, %s offen nt lds\ns_add_u32 %s, %s, %s' % (ldsoff, sr, so, so, so, step))
    def w_reads(ks, base, koff, hfs=512):
        b = FR + (ks % 2) * 16
        for nt in range(4):
            for hf in range(2):
                off = koff * 4096 + hf * hfs + (nt >> 1) * 64 + (nt & 1) * 8
                r = b + nt * 4 + hf * 2
                A('ds_read_b64_tr_b16 v[%d:%d], v%d offset:%d' % (r, r + 1, base, off))
    def w_mfma(ks, acc, xreg, first):
        b = FR + (ks % 2) * 16
        for nt in range(4):
            A('v_mfma_f32_16x16x32_bf16 v[%d:%d], v[%d:%d], v[%d:%d], %s' % (acc + nt * 4, acc + nt * 4 + 3, b + nt * 4, b + 3 + nt * 4, xreg, xreg + 3,
              '0' if first else 'v[%d:%d]' % (acc + nt * 4, acc + nt * 4 + 3)))
    def select8(dst, acc):
        for i in range(2):
            for e in range(4):
                A('v_cndmask_b32 v%d, v%d, v%d, s[66:67]' % (dst + 4 * i + e, acc + 8 * i + e, acc + 8 * i + 4 + e))
    def publish(linestride, local=False):
        if local:
            l1, l2 = newlab('L_ploc'), newlab('L_pdn')
            A('s_cmp_eq_u32 s64, 1\ns_cbranch_scc1 %s' % l1)
        for i in range(2):
            A('buffer_store_dwordx4 v[%d:%d], v11, s[48:51], s57 offen offset:%d sc1%s' % (PUB + 4 * i, PUB + 3 + 4 * i, i * linestride, ' nt' if snt & 1 else ''))
        if local:
            A('s_branch %s\n%s:' % (l2, l1))
            for i in range(2):
                A('buffer_store_dwordx4 v[%d:%d], v11, s[48:51], s57 offen offset:%d%s' % (PUB + 4 * i, PUB + 3 + 4 * i, i * linestride, ' nt' if snt & 4 else ''))
            A(l2 + ':')
    def publish_f32(linestride, local=False):
        A('s_nop 6')
        select8(PUB, AC)
        for i in range(8): A('v_bfi_b32 v%d, s59, v%d, v%d' % (PUB + i, PUB + i, TAG + i % 4))
        publish(linestride, local)

    sec('haq')
    A('L_HA:')
    if prio: A('s_setprio %d' % prio)
    if early:
        A('s_sub_u32 s52, s2, 16\ns_cmp_lt_u32 s52, 128\ns_cbranch_scc0 L_HA_q')
        if b0: A('s_barrier')
        A('s_branch L_HA_noq\nL_HA_q:\ns_waitcnt lgkmcnt(0)')
        common()
    else:
        A('s_sub_u32 s52, s2, 16\ns_cmp_lt_u32 s52, 128\ns_cbranch_scc1 L_HA_noq')
    srd(32, 10, 576 * 8192)
    ha_setup1()
    A("""s_lshr_b32 s52, s2, 3
s_and_b32 s52, s52, 15
s_and_b32 s53, s52, 1
s_bfe_u32 s54, s52, 0x10001
s_lshr_b32 s52, s52, 2
s_lshl_b32 s52, s52, 3
s_and_b32 s55, s2, 7
s_add_u32 s52, s52, s55
s_lshl_b32 s52, s52, 1
s_add_u32 s52, s52, s54
s_mul_i32 s54, s53, 2359296
s_lshl_b32 s55, s52, 7
s_add_u32 s54, s54, s55
s_mul_i32 s56, s53, 576
v_lshrrev_b32 v4, 3, v0
v_lshlrev_b32 v4, 13, v4
v_lshl_add_u32 v4, v5, 4, v4""")
    for ks in range(9):
        A('buffer_load_dwordx4 v[%d:%d], v9, s[36:39], s56 offen offset:%d%s' % (XF + 4 * ks, XF + 4 * ks + 3, ks * 64, ' nt' if xnt else ''))
    for i in range(36):
        wdma(L_QW + i * 1024, '65536')
        if b0 and i == b0q: A('s_barrier')
    ha_setup2()
    A("""v_lshlrev_b32 v11, 15, v5
v_add_u32 v11, v11, v12
s_lshl_b32 s57, s52, 1
s_add_u32 s57, s57, s53
s_lshl_b32 s57, s57, 8
s_add_u32 s57, s57, %d""" % QP)
    xq = 1 if loc & 2 else 0
    if xq: class_load(58, 59)
    A('s_waitcnt vmcnt(%d)' % (32 + xq))
    w_reads(0, 6, 0)
    for ks in range(9):
        if ks + 1 < 9:
            A('s_waitcnt vmcnt(%d)' % (28 - 4 * ks + xq))
            w_reads(ks + 1, 6, ks + 1)
            A('s_waitcnt lgkmcnt(8)')
        else:
            A('s_waitcnt lgkmcnt(0)')
        w_mfma(ks, AC, XF + 4 * ks, ks == 0)
    if xq:
        A('s_waitcnt vmcnt(0)')
        class_test(58, 's64')
    publish_f32(128, bool(xq))
    if qgate: A('v_mov_b32 v2, %d\nv_mov_b32 v3, 1\nds_write_b32 v2, v3' % (L_CTL + 4))
    stamp(5)
    if diag == 6: A('s_mov_b64 exec, 1\nv_mov_b32 v3, s64\nbuffer_store_dword v3, v252, s[80:83], 0 offen offset:60\ns_mov_b64 exec, -1')
    A('s_branch L_HA2')

    sec('ha2')
    def xloads():
        for ks in range(18):
            if ks >= wa: A('s_waitcnt vmcnt(%d)' % (wa - 1))
            A('buffer_load_dwordx4 v[%d:%d], v9, s[36:39], 0 offen offset:%d%s' % (XF + 4 * ks, XF + 4 * ks + 3, ks * 64, ' nt' if xnt else ''))
    A('L_HA_noq:')
    if early:
        A('s_waitcnt lgkmcnt(0)')
        common()
    ha_setup1()
    if b0 and not early: A('s_barrier')
    if hwo and sm & 2:
        srd(44, 12, 4096 * 1152)
        A("""v_lshrrev_b32 v4, 3, v0
v_mul_u32_u24 v4, 1152, v4
v_lshl_add_u32 v4, v5, 4, v4
s_and_b32 s68, s2, 7
s_bfe_u32 s69, s2, 0x10003
s_lshl_b32 s69, s69, 4
s_add_u32 s68, s68, s69
s_mul_i32 s75, s68, 147456
s_lshr_b32 s69, s2, 4
s_lshl_b32 s69, s69, 7
s_add_u32 s75, s75, s69
s_add_u32 s77, s75, 1179648
s_cmp_lt_u32 s2, 40
s_cselect_b32 s78, %d, %d""" % (L_W, L_QW))
        for i in range(32):
            so = 's75' if i < 16 else 's77'
            A('s_add_u32 m0, s78, %d\ns_waitcnt vmcnt(%d)\nbuffer_load_dwordx4 v4, s[44:47], %s offen nt lds\ns_add_u32 %s, %s, 9216' % (i * 1024, hwo - 1, so, so, so))
    ha_setup2()
    A("""s_waitcnt vmcnt(0)
s_branch L_HA2
L_HA_fin:
s_barrier
s_branch L_FIN
L_HA2:
s_setprio 0
s_barrier""")
    if not sm & 8: A('s_endpgm')
    A("""s_cmp_ge_u32 s2, 184
s_cbranch_scc1 L_FFN2
s_cmp_lt_u32 s2, 40
s_cbranch_scc1 """ + ('L_HA_fin' if f0 else 'L_end'))
    xloads()
    A('L_FFN1x:')
    A("""v_add_u32 v6, {lw}, v6
v_add_u32 v7, 36864, v6
v_mul_u32_u24 v11, 18432, v5
v_add_u32 v11, v11, v12
s_cmp_lt_u32 s2, 112
s_cselect_b32 s52, 40, 112
s_sub_u32 s52, s2, s52
s_lshr_b32 s52, s52, 3
s_and_b32 s53, s2, 7
s_mul_i32 s53, s53, 9
s_add_u32 s52, s52, s53
s_lshl_b32 s52, s52, 8
s_add_u32 s57, s52, {preg}
v_mov_b32 v13, {lf}
s_waitcnt vmcnt(0)""".format(lw=L_W, preg=PREG, lf=L_CTL + 8))
    w_reads(0, 6, 0)
    for ks in range(18):
        if ks + 1 < 18:
            w_reads(ks + 1, 6 if ks + 1 < 9 else 7, (ks + 1) % 9)
            A('s_waitcnt lgkmcnt(8)')
        else:
            A('s_waitcnt lgkmcnt(0)')
        w_mfma(ks, AC, XF + 4 * ks, ks == 0)
    A('s_cmp_ge_u32 s2, 112\ns_cbranch_scc1 L_UP')
    A('ds_read_b32 v3, v13\ns_waitcnt lgkmcnt(0)\nv_readfirstlane_b32 s64, v3')
    publish_f32(128, bool(loc & 4))
    stamp(9)
    A('s_barrier\ns_branch L_FIN')
    A("""L_UP:
s_mov_b32 s58, {nl}
s_mov_b32 s63, 0xffff0000
s_nop 3""".format(nl=hex(NLOG2E)))
    select8(PUB, AC)
    for i in range(2): round4([PUB + 4 * i + e for e in range(4)], 56)
    A('s_barrier')
    poll_tag(['buffer_load_dwordx4 v[%d:%d], v11, s[48:51], s57 offen offset:%d %s' % (48 + 4 * i, 51 + 4 * i, i * 128, MF) for i in range(2)],
             range(48, 56), slp, 1 << 19, masked=False)
    for e in range(8): A('v_and_b32 v%d, s59, v%d' % (48 + e, 48 + e))
    for i in range(2): round4([48 + 4 * i + e for e in range(4)], 56)
    for e in range(8): A('v_mul_f32 v%d, s58, v%d' % (16 + e, 48 + e))
    for e in range(8): A('v_exp_f32 v%d, v%d' % (16 + e, 16 + e))
    for e in range(8): A('v_add_f32 v%d, 1.0, v%d' % (16 + e, 16 + e))
    for e in range(8): A('v_rcp_f32 v%d, v%d' % (16 + e, 16 + e))
    for e in range(8): A('v_mul_f32 v%d, v%d, v%d' % (48 + e, 48 + e, 16 + e))
    for i in range(2): round4([48 + 4 * i + e for e in range(4)], 56)
    for e in range(8): A('v_mul_f32 v%d, v%d, v%d' % (PUB + e, PUB + e, 48 + e))
    for i in range(2): round4([PUB + 4 * i + e for e in range(4)], 56)
    for e in range(8): A('v_or_b32 v%d, v%d, v%d' % (PUB + e, PUB + e, TAG + e % 4))
    A('ds_read_b32 v3, v13\ns_add_u32 s57, s52, %d\ns_waitcnt lgkmcnt(0)\nv_readfirstlane_b32 s64, v3' % HM)
    publish(128, bool(loc & 8))
    stamp(9)
    if f0: A('s_cmp_ge_u32 s2, 144\ns_cbranch_scc1 L_end')
    A('s_branch L_FIN')

    A('L_FFN2:')
    trbase(6, 128, 16, 10, 4)
    if rm & 2: A('s_sub_u32 s53, s2, 184\ns_and_b32 s52, s53, 7\ns_lshr_b32 s53, s53, 3')
    else: A('s_sub_u32 s53, s2, 184\ns_mul_i32 s52, s53, 7282\ns_lshr_b32 s52, s52, 16\ns_mul_i32 s54, s52, 9\ns_sub_u32 s53, s53, s54')
    A("""v_add_u32 v6, {lw}, v6
v_add_u32 v7, 36864, v6
v_mul_u32_u24 v9, 18432, v5
v_lshl_add_u32 v9, v8, 4, v9
v_and_b32 v10, 8, v0
v_lshl_add_u32 v9, v10, 3, v9
s_mul_i32 s56, s52, 2304
s_add_u32 s56, s56, {hm}
s_mov_b32 s58, 0x07060302
v_mul_u32_u24 v11, 18432, v5
v_add_u32 v11, v11, v12
s_lshl_b32 s57, s53, 11
s_lshl_b32 s63, s52, 7
s_add_u32 s57, s57, s63
s_add_u32 s57, s57, {fin}
s_barrier
s_barrier""".format(lw=L_W, hm=HM, fin=FIN))
    def pack_frags(raw, cnt, sel):
        for k in range(cnt):
            r = raw + 4 * k
            A('v_perm_b32 v%d, v%d, v%d, %s\nv_perm_b32 v%d, v%d, v%d, %s' % (r, r + 1, r, sel, r + 1, r + 3, r + 2, sel))
        for k in range(cnt):
            r = raw + 4 * k
            for t in range(2):
                A('v_mov_b32_dpp v%d, v%d row_ror:8 row_mask:0xf bank_mask:0xf' % (r + 2 + t, r + t))
    def spread8(acc):
        for i in range(2):
            for e in range(4):
                A('v_mov_b32_dpp v%d, v%d row_ror:8 row_mask:0xf bank_mask:0xc' % (acc + 8 * i + e, acc + 8 * i + 4 + e))
    poll_tag(['buffer_load_dwordx4 v[%d:%d], v9, s[48:51], s56 offen offset:%d %s' % (XF + 4 * k, XF + 4 * k + 3, k * 128, MF) for k in range(18)],
             range(XF, XF + 72), slp, 1 << 19)
    pack_frags(XF, 18, 's58')
    w_reads(0, 6, 0, 2048)
    for k in range(18):
        if k + 1 < 18:
            w_reads(k + 1, 6 if k + 1 < 9 else 7, (k + 1) % 9, 2048)
            A('s_waitcnt lgkmcnt(8)')
        else:
            A('s_waitcnt lgkmcnt(0)')
        w_mfma(k, AC, XF + 4 * k, k == 0)
    A('s_nop 7')
    spread8(AC)
    for i in range(2):
        for e in range(4): A('v_bfi_b32 v%d, s59, v%d, v%d' % (PUB + 4 * i + e, AC + 8 * i + e, TAG + e))
    publish(1024)
    stamp(9)
    A('s_endpgm')

    sec('hbq')
    A('L_HB:')
    if prio: A('s_setprio %d' % prio)
    if early:
        if qgate: A('v_mov_b32 v2, %d\nv_mov_b32 v3, 0\nds_write_b32 v2, v3' % (L_CTL + 4))
        A('s_waitcnt lgkmcnt(0)')
        if b0: A('s_sub_u32 s60, s2, 16\ns_cmp_lt_u32 s60, 128\ns_cbranch_scc0 L_HB_a\ns_barrier\nL_HB_a:')
        common()
    A("""v_bfe_u32 v6, v0, 3, 1
v_lshlrev_b32 v6, 9, v6
v_bfe_u32 v7, v0, 4, 1
v_lshl_add_u32 v6, v7, 8, v6
v_and_b32 v5, 7, v0
v_lshl_add_u32 v6, v5, 5, v6
v_lshrrev_b32 v7, 5, v0
v_lshl_add_u32 v6, v7, 4, v6
s_lshl_b32 s56, s30, 6
s_lshl_b32 s57, s31, 1
s_add_u32 s56, s56, s57
s_lshl_b32 s56, s56, 9
s_add_u32 s56, s56, {qp}
v_and_b32 v5, 15, v0
v_lshlrev_b32 v5, 4, v5
v_lshl_add_u32 v5, v7, 3, v5
v_add_u32 v4, {lq}, v5""".format(qp=QP, lq=L_Q))
    if qgate and not early: A('v_mov_b32 v2, %d\nv_mov_b32 v3, 0\nds_write_b32 v2, v3' % (L_CTL + 4))
    epoch()
    if loc:
        A("""s_getreg_b32 s65, hwreg(HW_REG_XCC_ID)
s_and_b32 s65, s65, 15
s_add_u32 s65, s65, s89
s_and_b32 s64, s2, 7
s_mul_i32 s64, s64, 1280
s_lshr_b32 s63, s2, 3
s_lshl_b32 s63, s63, 2
s_add_u32 s64, s64, s63
s_add_u32 s64, s64, {xl}
v_mov_b32 v12, 0
v_mov_b32 v13, s65
s_mov_b64 exec, 1
buffer_store_dword v13, v12, s[48:51], s64 offen {fl}
s_mov_b64 exec, -1""".format(xl=XL, fl='' if xp else 'sc1'))
    if b0 and not early: A('s_barrier')
    if b0 and early: A('s_cmp_lt_u32 s60, 128\ns_cbranch_scc1 L_HB_b\ns_barrier\nL_HB_b:')
    if qgate:
        A("""s_sub_u32 s62, s2, 16
s_cmp_lt_u32 s62, 128
s_cbranch_scc1 L_qg3
s_mov_b32 s61, 4096
L_qg:
s_sub_u32 s61, s61, 1
s_cbranch_scc1 L_qg3
s_sleep 1
ds_read_b32 v3, v2
s_waitcnt lgkmcnt(0)
v_readfirstlane_b32 s62, v3
s_cmp_eq_u32 s62, 0
s_cbranch_scc1 L_qg
L_qg3:""")
    poll_tag(['buffer_load_dwordx4 v[16:19], v6, s[48:51], s56 offen %s' % QF], range(16, 20), qslp, 1 << 21, masked=False)
    stamp(12)
    A('v_mov_b32 v2, %d\nv_mov_b32 v3, 0\nds_write_b32 v2, v3' % (L_CTL + 8))
    for i in range(4): A('v_and_b32 v%d, s59, v%d' % (32 + i, 16 + i))
    for i in range(4): A('v_mov_b32 v%d, v%d' % (40 + i, 32 + i))
    for i in range(4): A('v_permlane16_swap_b32 v%d, v%d' % (32 + i, 40 + i))
    for i in range(4): A('v_add_f32 v%d, v%d, v%d' % (32 + i, 32 + i, 40 + i))
    for i in range(2): A('v_cvt_pk_bf16_f32 v%d, v%d, v%d' % (8 + i, 32 + 2 * i, 33 + 2 * i))
    if ctl: A('v_mov_b32 v2, %d\nv_mov_b32 v3, 0\nds_write_b32 v2, v3' % L_CTL)
    A("""ds_write_b64 v4, v[8:9]
s_waitcnt lgkmcnt(0)
s_barrier
s_branch L_HB2""")
    sec('hb2')
    A('L_HB2:\ns_setprio 0')
    stamp(2)
    if loc:
        class_load(14, 15)
        A('s_waitcnt vmcnt(0)')
        class_test(14, 's64')
        A('v_mov_b32 v2, %d\nv_mov_b32 v3, s64\nds_write_b32 v2, v3' % (L_CTL + 8))
        if diag == 6: A('s_mov_b64 exec, 1\nbuffer_store_dword v3, v252, s[80:83], 0 offen offset:56\ns_mov_b64 exec, -1')
    if ck == 1:
        A('''s_cmp_ge_u32 s2, 32
s_cbranch_scc1 L_nozero
s_mul_i32 s40, s2, %d
s_add_u32 s40, s40, %d
v_mov_b32 v2, 0
s_mov_b64 exec, 1
buffer_store_dword v2, v2, s[48:51], s40 offen sc1
s_mov_b64 exec, -1
L_nozero:''' % (rks, RK))
    WF = 64
    OF = 192
    FB = 164
    YA = 44
    A("""v_lshrrev_b32 v8, 4, v0
v_and_b32 v11, 8, v0
v_lshlrev_b32 v11, 3, v11
v_lshl_add_u32 v11, v8, 4, v11
v_and_b32 v10, 7, v0
v_lshl_add_u32 v12, v10, 9, v11
v_mul_u32_u24 v14, {bs}, v10
v_add_u32 v14, v14, v11
s_and_b32 s68, s2, 7
s_bfe_u32 s69, s2, 0x10003
s_lshl_b32 s69, s69, 4
s_add_u32 s68, s68, s69
s_lshl_b32 s72, s68, 12
s_add_u32 s72, s72, {orec}
s_add_u32 s73, s72, 32768
s_lshr_b32 s74, s2, 4
s_lshl_b32 s74, s74, 12
s_and_b32 s75, s2, 15
s_lshl_b32 s75, s75, 7
s_add_u32 s74, s74, s75
s_add_u32 s74, s74, {yin}
s_mov_b32 s71, 0x07060302
""".format(orec=OREC, bs=18 * 2048, yin=YIN))
    A("""s_cmp_ge_u32 s2, 144
s_cbranch_scc1 L_HB3
s_cmp_lt_u32 s2, 40
s_cselect_b32 s65, {lw}, {lqw}""".format(lw=L_W, lqw=L_QW).replace(', 0', ', 0'))
    trbase(6, 128, 8, 7, 4)
    A('v_add_u32 v6, s65, v6')
    for nt in range(4):
        for ks in range(8):
            for hf in range(2):
                r = WF + (nt * 8 + ks) * 4 + hf * 2
                A('ds_read_b64_tr_b16 v[%d:%d], v6 offset:%d' % (r, r + 1, ks * 4096 + hf * 2048 + nt * 32))
            if ks % 4 == 3: A('s_waitcnt lgkmcnt(0)')
    A('L_HB3:\ns_barrier')
    def checkpoint(k, cnt, gf, gs):
        if not ctl or gf < 0: return
        lab_ = newlab('L_nock')
        core = '''s_and_b32 s41, s2, 7
s_lshr_b32 s42, s2, 6
s_lshl_b32 s42, s42, 3
s_add_u32 s41, s41, s42
v_lshlrev_b32 v2, 2, v0
v_mov_b32 v3, s89
s_lshl_b64 s[42:43], 1, s41
s_mov_b32 exec_hi, 0
buffer_load_dword v4, v2, s[48:51], s40 offen sc1
s_mov_b64 exec, s[42:43]
buffer_store_dword v3, v2, s[48:51], s40 offen sc1
s_mov_b32 exec_lo, -1
s_waitcnt vmcnt(1)
v_cmp_eq_u32 vcc, s89, v4
s_mov_b64 exec, -1
s_mov_b32 s41, {gf}
s_mov_b32 s42, {gs}
s_bcnt1_i32_b32 s40, vcc_lo
''' if ck == 0 else '''s_add_u32 s42, s28, s40
s_addc_u32 s43, s29, 0
s_mov_b32 s40, 1
s_atomic_add s40, s[42:43], 0 glc
s_waitcnt lgkmcnt(0)''' + ('''
s_mov_b32 s41, 1
s_atomic_add s41, s[42:43], 256 glc
s_waitcnt lgkmcnt(0)''' if dum else '') + '''
s_min_u32 s40, s40, 31
s_mov_b32 s41, {gf}
s_mov_b32 s42, {gs}
''' if ck == 1 else '''s_mov_b32 s40, 16
s_mov_b32 s41, {gf}
s_mov_b32 s42, {gs}
'''
        A("""s_bfe_u32 s40, s2, 0x30003
s_mul_i32 s40, s40, {rs}
s_add_u32 s40, s40, {rk}
{core}v_cvt_f32_u32 v2, s40
v_mul_f32 v2, {r16}, v2
v_add_f32 v2, {b0}, v2
v_mul_f32 v3, v2, v2
v_mul_f32 v4, v3, v3
v_mul_f32 v4, v4, v4
v_mul_f32 v4, {c9}, v4
v_fmac_f32 v4, 0.5, v3
v_add_f32 v4, {c1}, v4
v_mul_f32 v2, v2, v4
s_cmp_ge_u32 s40, 16
s_cselect_b32 s41, s41, s42
s_cselect_b32 s43, 1, 2
v_fma_f32 v2, abs(v2), s41, 0.5
v_cvt_u32_f32 v2, v2
s_nop 0
v_readfirstlane_b32 s44, v2
s_sub_u32 s45, {c0}, s44
s_max_i32 s45, s45, 0
s_lshl_b32 s45, s45, 2
s_or_b32 s45, s45, s43
s_cmp_eq_u32 s44, 0
s_cselect_b32 s45, 0, s45
v_mov_b32 v2, {lctl}
v_mov_b32 v3, s45
ds_write_b32 v2, v3
{lab}:""".format(core=core.format(gf=hex(f2u(gf / 10)), gs=hex(f2u(gs / 10))), lab=lab_, rk=RK + k * 8 * rks, rs=rks, gf=hex(f2u(gf / 10)), gs=hex(f2u(gs / 10)), r16=hex(f2u(1 / 16)), b0=hex(f2u(-15.5 / 16)),
           c9=hex(f2u(0.6)), c1=hex(f2u(1.2)), c0=cnt - 2, lctl=L_CTL))
    checkpoint(3, info['cntK'], gK, gKs)
    A('s_barrier')
    checkpoint(0, info['cntA'], gA, gAs)
    stamp(14)
    for k, (g1, g2) in enumerate(((gB, gBs), (gC, gCs), (gD, gDs))[:len(info['cps'])]):
        A('s_barrier')
        if k == 0: stamp(15)
        checkpoint(1 + k, info['cps'][k], g1, g2)
    A('s_cmp_ge_u32 s2, 144\ns_cbranch_scc1 ' + ('L_hbend' if hs != 4 else 'L_end'))
    if prio: A('s_setprio %d' % prio)
    A('s_barrier')
    if not sm & 64: A('s_endpgm')
    poll_tag(['buffer_load_dwordx4 v[%d:%d], v12, s[48:51], %s offen offset:%d %s' % (OF + 4 * ks, OF + 4 * ks + 3, 's72' if ks < 4 else 's73', (ks % 4) * 128, 'sc1 nt' if h1nt else 'sc1') for ks in range(8)],
             range(OF, OF + 32), tslp, 1 << 22)
    if b3 == 2: A('s_barrier')
    if diag == 1: A('s_memrealtime s[94:95]')
    if not ilv:
        for half in range(2):
            pack_frags(OF + 16 * half, 4, 's71')
            for ks in range(4 * half, 4 * half + 4):
                for nt in range(4):
                    r = WF + (nt * 8 + ks) * 4
                    A('v_mfma_f32_16x16x32_bf16 v[%d:%d], v[%d:%d], v[%d:%d], %s' % (YA + nt * 4, YA + nt * 4 + 3, r, r + 3, OF + ks * 4, OF + 3 + ks * 4, '0' if ks == 0 else 'v[%d:%d]' % (YA + nt * 4, YA + nt * 4 + 3)))
    else:
        def pk_perm(k):
            r = OF + 4 * k
            A('v_perm_b32 v%d, v%d, v%d, s71\nv_perm_b32 v%d, v%d, v%d, s71' % (r, r + 1, r, r + 1, r + 3, r + 2))
        def pk_dpp(k):
            r = OF + 4 * k
            for t in range(2): A('v_mov_b32_dpp v%d, v%d row_ror:8 row_mask:0xf bank_mask:0xf' % (r + 2 + t, r + t))
        pk_perm(0); pk_perm(1); pk_dpp(0); pk_dpp(1)
        for ks in range(8):
            for nt in range(4):
                r = WF + (nt * 8 + ks) * 4
                A('v_mfma_f32_16x16x32_bf16 v[%d:%d], v[%d:%d], v[%d:%d], %s' % (YA + nt * 4, YA + nt * 4 + 3, r, r + 3, OF + ks * 4, OF + 3 + ks * 4, '0' if ks == 0 else 'v[%d:%d]' % (YA + nt * 4, YA + nt * 4 + 3)))
                if ks + 2 < 8 and nt == 0: pk_perm(ks + 2)
                if ks + 2 < 8 and nt == 2: pk_dpp(ks + 2)
    A('s_nop 5')
    for i in range(2):
        for e in range(4):
            A('v_mov_b32_dpp v%d, v%d row_ror:8 row_mask:0xf bank_mask:0xc' % (YA + 8 * i + e, YA + 8 * i + 4 + e))
        for e in range(4):
            A('v_bfi_b32 v%d, s59, v%d, v%d' % (YA + 8 * i + e, YA + 8 * i + e, TAG + e))
        A('buffer_store_dwordx4 v[%d:%d], v14, s[48:51], s74 offen offset:%d sc1%s' % (YA + 8 * i, YA + 8 * i + 3, i * 2048, ' nt' if snt & 2 else ''))
    if b3 == 1: A('s_barrier')
    stamp(4)
    if diag == 1: A('s_mov_b64 exec, 1\nv_mov_b32 v246, s94\nv_mov_b32 v247, s95\nbuffer_store_dwordx2 v[246:247], v252, s[80:83], 0 offen offset:80\ns_mov_b64 exec, -1')
    A('L_hbend:')
    stamp(99)
    A('s_endpgm')

    A("""L_FIN:
s_sub_u32 s64, s2, """ + ('0' if f0 else '40') + """
s_mul_i32 s76, s64, 3641
s_lshr_b32 s76, s76, 16
s_mul_i32 s77, s76, 18
s_sub_u32 s77, s64, s77
s_mul_i32 s56, s76, 1152
s_add_u32 s57, s56, 1152
s_mov_b32 s63, 0xffff0000""")
    if not sm & 32: A('s_endpgm')
    srd(32, 4, 's57')
    srd(36, 22, 1152)
    A("""v_lshlrev_b32 v5, 5, v0
v_lshlrev_b32 v15, 3, v0
buffer_load_dwordx4 v[16:19], v5, s[32:35], s56 offen{f}
buffer_load_dwordx4 v[20:23], v5, s[32:35], s56 offen offset:16{f}
buffer_load_dwordx4 v[24:27], v5, s[36:39], 0 offen{f}
buffer_load_dwordx4 v[28:31], v5, s[36:39], 0 offen offset:16{f}
s_mov_b32 s58, 0x3f803f80
v_mov_b32 v32, 0
s_waitcnt vmcnt(0)""".format(f=' nt' if xnt else ''))
    for r in range(8):
        A("""v_lshlrev_b32 v34, 16, v{x}
v_and_b32 v35, s63, v{x}
v_lshlrev_b32 v36, 16, v{w}
v_and_b32 v37, s63, v{w}
v_mul_f32 v34, v34, v36
v_mul_f32 v35, v35, v37
v_cvt_pk_bf16_f32 v34, v34, v35
v_dot2_f32_bf16 v32, v34, s58, v32""".format(x=16 + r, w=24 + r))
    A("""s_nop 2
v_add_f32_dpp v32, v32, v32 quad_perm:[1,0,3,2] row_mask:0xf bank_mask:0xf
s_nop 1
v_add_f32_dpp v32, v32, v32 quad_perm:[2,3,0,1] row_mask:0xf bank_mask:0xf
s_nop 1
v_add_f32_dpp v32, v32, v32 row_half_mirror row_mask:0xf bank_mask:0xf
s_nop 1""")
    xsum([32], 34)
    A("""v_cvt_pk_bf16_f32 v32, v32, v32
v_and_b32 v32, s63, v32
v_mul_f32 v32, {nl2e}, v32
v_exp_f32 v32, v32
s_nop 0
v_add_f32 v32, 1.0, v32
v_rcp_f32 v32, v32
s_nop 0
v_cvt_pk_bf16_f32 v32, v32, v32
v_and_b32 v{g}, s63, v32
v_sub_f32 v33, 1.0, v{g}
v_cvt_pk_bf16_f32 v33, v33, v33
v_and_b32 v33, s63, v33
s_lshl_b32 s56, s64, 10
s_add_u32 s56, s56, {fin}
s_barrier
s_barrier""".format(nl2e=hex(NLOG2E), fin=FIN, g=FB + 4))
    poll_tag(['buffer_load_dwordx4 v[%d:%d], v1, s[48:51], s56 offen %s' % (FB, FB + 3, MF)], range(FB, FB + 4), slp, 1 << 19, masked=False)
    stamp(13)
    for r in range(FB, FB + 4): A('v_and_b32 v%d, s59, v%d' % (r, r))
    xsum(list(range(FB, FB + 4)), 40)
    round4(range(FB, FB + 4), 40)
    for r in range(FB, FB + 4): A('v_mul_f32 v%d, v33, v%d' % (r, r))
    round4(range(FB, FB + 4), 40)
    A("""s_lshl_b32 s78, s64, 11
s_add_u32 s78, s78, {yin}
s_mul_i32 s79, s76, 1152
s_lshl_b32 s56, s77, 6
s_add_u32 s79, s79, s56""".format(yin=YIN))
    srd(32, 24, 8 * 1152)
    for _ in range(len(info['cps']) - 1): A('s_barrier')
    if pt == 2:
        for i in range(2): A('buffer_load_dwordx4 v[%d:%d], v1, s[48:51], s78 offen offset:%d sc1' % (16 + 4 * i, 19 + 4 * i, i * 1024))
    if prio: A('s_setprio %d' % prio)
    A('s_barrier')
    if not sm & 64:
        stamp(1)
        A('s_endpgm')
    if pt == 1:
        for i in range(2): A('buffer_load_dwordx4 v[%d:%d], v1, s[48:51], s78 offen offset:%d sc1' % (16 + 4 * i, 19 + 4 * i, i * 1024))
    if b3: A('s_barrier')
    poll_tag(['buffer_load_dwordx4 v[%d:%d], v1, s[48:51], s78 offen offset:%d %s' % (16 + 4 * i, 19 + 4 * i, i * 1024, TF) for i in range(2)],
             range(16, 24), fslp2, 1 << 21)
    if diag == 1: A('s_memrealtime s[94:95]')
    for r in range(16, 24): A('v_and_b32 v%d, s59, v%d' % (r, r))
    for c in range(4): A('v_add_f32 v%d, v%d, v%d' % (16 + c, 16 + c, 20 + c))
    xsum([16, 17, 18, 19], 20)
    round4([16, 17, 18, 19], 20)
    for c in range(4): A('v_mul_f32 v%d, v%d, v%d' % (16 + c, FB + 4, 16 + c))
    round4([16, 17, 18, 19], 20)
    for c in range(4): A('v_add_f32 v%d, v%d, v%d' % (16 + c, 16 + c, FB + c))
    A("""v_cvt_pk_bf16_f32 v20, v16, v17
v_cvt_pk_bf16_f32 v21, v18, v19
s_mov_b64 exec, 0xff
buffer_store_dwordx2 v[20:21], v15, s[32:35], s79 offen
s_cmp_lg_u32 s64, 0
s_cbranch_scc1 L_noepoch
s_mov_b64 exec, 1
v_mov_b32 v2, s88
v_mov_b32 v3, %d
buffer_store_dword v2, v3, s[48:51], 0 offen sc1
L_noepoch:
s_mov_b64 exec, -1""" % EPOCH)
    if diag == 1: A('s_memrealtime s[96:97]')
    if diag:
        A('s_waitcnt vmcnt(0)')
        stamp(1)
    if diag == 1: A('s_mov_b64 exec, 1\nv_mov_b32 v244, s94\nv_mov_b32 v245, s95\nv_mov_b32 v246, s96\nv_mov_b32 v247, s97\nbuffer_store_dwordx2 v[244:245], v252, s[80:83], 0 offen offset:88\nbuffer_store_dwordx2 v[246:247], v252, s[80:83], 0 offen offset:64\ns_mov_b64 exec, -1')
    A('L_end:\ns_endpgm')

    nacc = 0
    nv = max(RING + D * 4, 224)
    if diag: nv = 256
    assert nv <= 256
    out = HEADER + '; @launch grid=(256,1,1) block=(192,1,1) lds=%d\n' % lds
    out += DOC
    out += '.amdgcn_target "amdgcn-amd-amdhsa--gfx950"\n.text\n.globl %s\n.p2align 8\n.type %s,@function\n' % (KN, KN)
    L = []
    titles = {'entry': 'entry: kernel arguments, role dispatch', 'haq': 'HA: partial q (64 columns x 288 rows of wq, 8 batches)',
              'hbq': 'HB: gather q of this (batch, head) into LDS', 'stream': 'S: side loads, K phase, V phase, publish o',
              'stream2': 'S: V loop bodies with a wider / narrower load window', 'ha2': 'HA: FFN gate / up / down slices',
              'hb2': 'HB: window control, out-projection slice ; HA: final sum'}
    for nm in ('entry', 'haq', 'hbq', 'stream', 'stream2', 'ha2', 'hb2'):
        if nm in secs:
            if nm != 'entry': L.append('; ======== ' + titles[nm] + ' ========:')
            L += secs[nm]
    out += '\n'.join(('' if x.endswith(':') else '    ') + x for x in L) + '\n'
    out += '''.section .rodata,"a"
.p2align 6
.amdhsa_kernel %s
  .amdhsa_next_free_vgpr %d
  .amdhsa_next_free_sgpr 102
  .amdhsa_accum_offset %d
  .amdhsa_group_segment_fixed_size 0
  .amdhsa_kernarg_size 104
  .amdhsa_user_sgpr_count 2
  .amdhsa_user_sgpr_kernarg_segment_ptr 1
  .amdhsa_system_sgpr_workgroup_id_x 1
.end_amdhsa_kernel
''' % (KN, nv + nacc, nv)
    return out


if __name__ == '__main__':
    names = []
    for spec in sys.argv[1:]:
        kw = {}
        for p in spec.split(','):
            if not p: continue
            k, v = p.split('=')
            kw[k] = int(v)
        nm = 'k_' + (spec.replace(',', '_').replace('=', '') or 'def') + '.s'
        open(nm, 'w').write(gen(**kw))
        names.append(nm)
    print(' '.join(names))
```

```python
import sys, math, struct

KN = 'gated_mix__mha_block_cached__swiglu_ffn__decode_kernel'

HEADER = '''; Kernarg layout for this problem (104 bytes, ptrs only, base s[0:1]):
'''

DOC = "; ---------------------------------------------------------------------------------------------\n; ---------------------------------------------------------------------------------------------\n"

EPOCH = 0x0
RK = 0x1000
XL = 0xB000
QP = 0x10000
HM = 0x70000
FIN = 0xA0000
PREG = 0xD0000
OREC = 0x100000
YIN = 0x140000
WS_SIZE = 0x200000
L_QW = 0
L_W = 36864
L_SC = 110592
L_Q = 143360
L_CTL = 143616
LDS_BYTES = 143680

def f2u(x):
    return struct.unpack('<I', struct.pack('<f', x))[0]

CSC = f2u(math.log2(math.e) / math.sqrt(128.0))
NLOG2E = f2u(-math.log2(math.e))


def gen(hs=0, n=20, q=2, D=32, w0=24, na=28, nend=0, kend=0, ctl=1, nf=24, ns=18, gA=125, gAs=100, gB=65, gBs=55, pB=45, pC=72, gC=50, gCs=40, pD=90, gD=30, gDs=25, rks=1280, pt=0, ck=1, b0q=35, fslp2=2, b3=2, loc=15, xp=1, dbl=-1, gK=-1, gKs=0, pK=25, qgate=1, dum=0, probe=0, rnd=1, ysp=0, ysc=0, f0=1, early=1, hwo=10, ilv=1, h1nt=1, xnt=0, cnt_=0, snt=0, rm=3, Z=64, zg=4, wa=4, diag=0, spin=1, prio=3, vacc=0, slp=64, qslp=2, b0=0, fb=0,
        sm=127, noproc=0, tslp=0, mnt=1, qnt=1, tnt=0, lds=LDS_BYTES, ww=2, wa2=0, n1=0, n1it=0):
    secs = {}
    cur = [None]
    def sec(name):
        cur[0] = secs.setdefault(name, [])
    def A(s):
        for x in s.split('\n'):
            x = x.strip()
            if x: cur[0].append(x)
    lab = [0]
    def newlab(p):
        lab[0] += 1
        return '%s_%d' % (p, lab[0])
    MF = 'sc1 nt' if mnt else 'sc1'
    QF = 'sc1 nt' if qnt else 'sc1'
    TF = 'sc1 nt' if tnt else 'sc1'
    TAG = 60

    sec('entry')
    A(KN + ':')
    A('s_cmp_ge_u32 s2, 256\ns_cbranch_scc1 L_end')
    if diag: A('s_memrealtime s[90:91]')
    A("""s_load_dwordx16 s[4:19], s[0:1], 0
s_load_dwordx8 s[20:27], s[0:1], 64
s_load_dwordx2 s[28:29], s[0:1], 96
v_lshrrev_b32 v1, 6, v0
v_and_b32 v0, 63, v0
v_readfirstlane_b32 s3, v1
v_lshlrev_b32 v1, 4, v0
s_lshr_b32 s30, s2, 5
s_and_b32 s31, s2, 31
""")
    def common():
        A("""s_load_dword s88, s[28:29], %d
s_mov_b32 s48, s28
s_mov_b32 s49, s29
s_mov_b32 s50, %d
s_mov_b32 s51, 0x20000""" % (EPOCH, WS_SIZE))
    if not early:
        A('s_waitcnt lgkmcnt(0)')
        common()
    A("""s_cmp_eq_u32 s3, 0
s_cbranch_scc1 L_S
s_cmp_eq_u32 s3, 2
s_cbranch_scc1 L_HB""")

    def stamp(slot):
        if not diag: return
        if diag in (4, 5) and slot not in (1, 3): return
        if diag == 6 and slot not in (1, 3, 2, 14, 5, 15): return
        if diag == 7 and slot not in (1, 3): return
        if diag in (1, 6) and slot == 99: return
        if diag == 1 and slot == 15: return
        if diag == 3:
            if hs and slot == hs: A('s_memrealtime s[90:91]\ns_waitcnt lgkmcnt(0)')
            if (slot == 1 and hs in (0, 1)) or (slot == 3 and hs == 3) or (slot == 99 and hs in (2, 12, 14, 4)):
                lp = newlab('L_hold')
                A('%s:\ns_memrealtime s[92:93]\ns_waitcnt lgkmcnt(0)\ns_sub_u32 s92, s92, s90\ns_cmp_lt_u32 s92, 25000\ns_cbranch_scc1 %s' % (lp, lp))
            return
        A("""s_memrealtime s[92:93]
s_add_u32 s80, s28, 0x40000000
s_addc_u32 s81, s29, 0
s_mov_b32 s82, 0x20000
s_mov_b32 s83, 0x20000
s_lshl_b32 s84, s2, 7
s_mov_b64 s[86:87], exec
s_mov_b64 exec, 1
s_waitcnt lgkmcnt(0)
v_mov_b32 v250, s92
v_mov_b32 v251, s93
v_mov_b32 v252, s84
buffer_store_dwordx2 v[250:251], v252, s[80:83], 0 offen offset:%d""" % (slot * 8))
        if slot == 3:
            A("""s_sub_u32 s85, s2, """ + ('0' if f0 else '40') + """
s_cmp_lt_u32 s85, 144
s_cbranch_scc1 L_st3
buffer_store_dwordx2 v[250:251], v252, s[80:83], 0 offen offset:8
L_st3:
s_getreg_b32 s85, hwreg(HW_REG_XCC_ID)
v_mov_b32 v250, s90
v_mov_b32 v251, s91
buffer_store_dwordx2 v[250:251], v252, s[80:83], 0 offen
s_nop 1
v_mov_b32 v250, s85
v_mov_b32 v251, 0
buffer_store_dwordx2 v[250:251], v252, s[80:83], 0 offen offset:48""")
        A('s_mov_b64 exec, s[86:87]')

    def epoch():
        A("""s_waitcnt lgkmcnt(0)
s_mul_i32 s89, s88, 0x9E3779B1
s_add_u32 s89, s89, 0x7F4A7C15
s_add_u32 s88, s88, 1""")
        for e, c in enumerate((0, 0x55, 0xAA, 0x33)):
            A('s_add_u32 s63, s88, %d\ns_and_b32 s63, s63, 0xff\nv_mov_b32 v%d, s63' % (c, TAG + e))
        A('s_mov_b32 s59, 0xffffff00')
    def poll_tag(loads, regs, sleep, bound, masked=True, full=()):
        lp, ld = newlab('L_poll'), newlab('L_pdone')
        A('s_mov_b32 s62, %d\n%s:' % (bound if spin else 1 << 12, lp))
        for x in loads: A(x)
        A('s_waitcnt vmcnt(0)')
        rs = list(regs)
        assert rs[0] % 4 == 0 and rs == list(range(rs[0], rs[0] + len(rs))) and len(rs) % 4 == 0
        A('v_xor_b32 v2, v%d, v60\nv_xor_b32 v3, v%d, v61' % (rs[0], rs[1]))
        for i, r in enumerate(rs[2:]):
            A('v_bitop3_b32 v%d, v%d, v%d, v%d bitop3:0xf6' % (2 + (i & 1), 2 + (i & 1), r, TAG + r % 4))
        A('v_or_b32 v2, v2, v3\nv_and_b32 v2, 0xff, v2')
        for r in full:
            A('v_bitop3_b32 v2, v2, v%d, s89 bitop3:0xf6' % r)
        A("""v_cmp_ne_u32 vcc, 0, v2
s_cbranch_vccz {ld}
{mk}
{sl}
s_sub_u32 s62, s62, 1
s_cbranch_scc0 {lp}
{ld}:
s_mov_b64 exec, -1""".format(lp=lp, ld=ld, sl='s_sleep %d' % sleep if sleep else '', mk='s_mov_b64 exec, vcc' if masked else ''))
    def class_load(vd, va):
        A('''s_getreg_b32 s65, hwreg(HW_REG_XCC_ID)
s_and_b32 s65, s65, 15
s_add_u32 s65, s65, s89
s_and_b32 s64, s2, 7
s_mul_i32 s64, s64, 1280
s_add_u32 s64, s64, {xl}
v_and_b32 v{a}, 31, v0
v_lshlrev_b32 v{a}, 2, v{a}
buffer_load_dword v{d}, v{a}, s[48:51], s64 offen sc1{f}'''.format(xl=XL, a=va, d=vd, f=' nt' if cnt_ else ''))
    def class_test(vd, sd):
        A('v_cmp_ne_u32 vcc, s65, v%d\ns_nop 0\ns_cmp_eq_u64 vcc, 0\ns_cselect_b32 %s, 1, 0' % (vd, sd))
    def srd(sn, ptr, size):
        A('s_mov_b32 s%d, s%d\ns_mov_b32 s%d, s%d\ns_mov_b32 s%d, %s\ns_mov_b32 s%d, 0x20000' % (sn, ptr, sn + 1, ptr + 1, sn + 2, size, sn + 3))
    def trbase(dst, rowstride, colmul, tmp, gm=8):
        A("""v_lshrrev_b32 v{d}, 4, v0
v_mul_u32_u24 v{d}, {gm}, v{d}
v_bfe_u32 v{t}, v0, 2, 2
v_add_u32 v{d}, v{d}, v{t}
v_mul_u32_u24 v{d}, {rs}, v{d}
v_and_b32 v{t}, 3, v0
v_mul_u32_u24 v{t}, {cm}, v{t}
v_add_u32 v{d}, v{d}, v{t}""".format(d=dst, t=tmp, rs=rowstride, cm=colmul, gm=gm))
    def xsum(regs, tmp):
        for r in regs: A('v_add_f32_dpp v%d, v%d, v%d row_ror:8 row_mask:0xf bank_mask:0xf' % (r, r, r))
        for sw in ('v_permlane16_swap_b32', 'v_permlane32_swap_b32'):
            for i, r in enumerate(regs): A('v_mov_b32 v%d, v%d' % (tmp + i, r))
            if len(regs) < 3: A('s_nop 1')
            for i, r in enumerate(regs): A('%s v%d, v%d' % (sw, r, tmp + i))
            for i, r in enumerate(regs): A('v_add_f32 v%d, v%d, v%d' % (r, r, tmp + i))
    def round4(regs, tmp):
        a, b, c, d = regs
        A("""v_cvt_pk_bf16_f32 v{t0}, v{a}, v{b}
v_cvt_pk_bf16_f32 v{t1}, v{c}, v{d}
v_lshlrev_b32 v{a}, 16, v{t0}
v_and_b32 v{b}, s63, v{t0}
v_lshlrev_b32 v{c}, 16, v{t1}
v_and_b32 v{d}, s63, v{t1}""".format(a=a, b=b, c=c, d=d, t0=tmp, t1=tmp + 1))

    vQ = 4
    vMask = 8
    vT0, vU0, vX0 = 12, 14, 2
    vA = 16
    vAcc = 24
    vS0, vS1, vR, vT, vT2, vPK, vM, vMC, vL = 28, 29, 30, 31, 32, 33, 34, 35, 36
    vAddr, vSA = 37, 38
    vKA, vKB, vVA, vVB = 40, 41, 42, 43
    vQM = 44
    RING = 64
    assert zg == 4
    assert D % 16 == 0 and n + q <= D and D % q == 0
    def rr(t):
        b = RING + (t % D) * 4
        return 'v[%d:%d]' % (b, b + 3)
    HALF = 2048
    TOT = 2 * HALF
    sec('stream')
    A('L_S:')
    if early:
        A('s_waitcnt lgkmcnt(0)')
        common()
    A("""s_lshl_b32 s52, s2, 21
s_lshr_b32 s53, s2, 11
s_add_u32 s32, s6, s52
s_addc_u32 s33, s7, s53
s_mov_b32 s34, 0x200000
s_mov_b32 s35, 0x20000
s_add_u32 s36, s8, s52
s_addc_u32 s37, s9, s53
s_mov_b32 s38, 0x200000
s_mov_b32 s39, 0x20000
s_mov_b32 s54, 0
s_mov_b32 s53, 0
v_lshrrev_b32 v2, 4, v0
v_and_b32 v3, 3, v0
v_lshlrev_b32 v3, 4, v3
v_lshl_add_u32 v{QA}, v2, 6, v3
v_bfe_u32 v3, v0, 2, 2
v_lshl_add_u32 v{KA}, v3, 8, v{QA}
v_add_u32 v{KB}, {z}, v{KA}
v_and_b32 v3, 15, v0
v_lshlrev_b32 v3, 4, v3
v_lshl_add_u32 v{VA}, v2, 10, v3
v_add_u32 v{VB}, {z}, v{VA}
v_add_u32 v{QA}, {lq}, v{QA}""".format(QA=vS0, KA=vKA, KB=vKB, VA=vVA, VB=vVB, z=Z * 1024, lq=L_Q))
    st = {'issued': 0, 'landed': -1}
    info = {}
    def issue(t):
        sr, so = ('s[32:35]', 's54') if t < HALF else ('s[36:39]', 's53')
        r = t % (2 * zg)
        if t < HALF: A('buffer_load_dwordx4 %s, v%d, %s, %s offen offset:%d nt' % (rr(t), vKA if r < zg else vKB, sr, so, (r % zg) * 1024))
        else: A('buffer_load_dwordx4 %s, v%d, %s, %s offen offset:%d nt' % (rr(t), vVA if r < zg else vVB, sr, so, (r % zg) * 256))
        if r == 2 * zg - 1:
            A('s_add_u32 s68, %s, %d\ns_xor_b32 s69, s68, %s\ns_and_b32 s69, s69, %d\ns_add_u32 %s, s68, s69' % (so, zg * 1024, so, Z * 1024, so))
        st['issued'] = t + 1
    def wait_landed(t):
        c = st['issued'] - 1 - t
        assert 0 <= c < 63
        if t > st['landed']:
            A('s_waitcnt vmcnt(%d)' % c)
            st['landed'] = t
    def dpp(op, d, a, ctl, bank=0xf):
        A('%s_dpp v%d, v%d, v%d %s row_mask:0xf bank_mask:%s' % (op, d, a, a, ctl, hex(bank)))
    lane_of = lambda j: 4 * (j & 3) + (j >> 2)
    GPB = D // 16
    def sc_off(grp):
        return (grp % GPB) * 256
    def score_round(d, a):
        A("""v_cvt_pk_bf16_f32 v{d}, v{a}, v{a}
v_and_b32 v{d}, s63, v{d}
v_mul_f32 v{d}, s56, v{d}
v_cvt_pk_bf16_f32 v{d}, v{d}, v{d}
v_and_b32 v{d}, s63, v{d}""".format(d=d, a=a))
    def prepA(u):
        a = u % 8
        grp = u // 8
        if a == 0:
            A('s_waitcnt lgkmcnt(0)')
            if rnd:
                score_round(vT, vR)
                A('v_fma_f32 v{T}, v{T}, s55, -v{MC}'.format(T=vT, MC=vMC))
            else:
                A('v_fma_f32 v{T}, v{R}, s55, -v{MC}'.format(T=vT, R=vR, MC=vMC))
            A('v_exp_f32 v{T}, v{T}'.format(T=vT))
            if grp + 1 < HALF // 16:
                if (grp + 1) % GPB == 0: A('v_add_u32 v%d, %d, v%d' % (vSA, GPB * 256, vSA))
                A('ds_read_b32 v%d, v%d offset:%d' % (vR, vSA, sc_off(grp + 1)))
            else:
                A('s_nop 0')
            A("""v_cvt_pk_bf16_f32 v{PK}, v{T}, v{T}
v_add_f32 v{Lr}, v{Lr}, v{T}
s_nop 0""".format(T=vT, PK=vPK, Lr=vL))
        for i in range(2):
            for k in range(4):
                A('v_and_b32_dpp v%d, v%d, v%d row_newbcast:%d row_mask:0xf bank_mask:0xf' % (vA + 4 * i + k, vPK, vMask + k, lane_of(2 * a + i)))
    def finish_l():
        for ctl in ('row_ror:8', 'row_ror:4', 'row_ror:2', 'row_ror:1'):
            dpp('v_add_f32', vL, vL, ctl); A('s_nop 1')
        A("""v_mov_b32 v{T}, v{Lr}
s_nop 1
v_permlane16_swap_b32 v{Lr}, v{T}
v_add_f32 v{Lr}, v{Lr}, v{T}
v_mov_b32 v{T}, v{Lr}
s_nop 1
v_permlane32_swap_b32 v{Lr}, v{T}
v_add_f32 v{Lr}, v{Lr}, v{T}
v_rcp_f32 v{Lr}, v{Lr}""".format(T=vT, Lr=vL))
        if loc & 1: A('ds_read_b32 v%d, v%d offset:8\ns_waitcnt lgkmcnt(0)\nv_readfirstlane_b32 s60, v%d' % (vT2, vT0 + 1, vT2))
    def pad_after_mfma(acc, need=8):
        have = 0
        for x in reversed(cur[0]):
            if x.startswith('v_mfma') and x.split()[1].startswith('v[%d:' % acc): break
            if x.endswith(':'):
                have += 1; break
            have += int(x.split()[1]) + 1 if x.startswith('s_nop') else 1
        if have < need: A('s_nop %d' % (need - have - 1))
    def post(c):
        acc = vA + 4 * (c & 1); a = c % 4
        x = vU0 + (a & 1)
        pad_after_mfma(acc)
        A('v_cndmask_b32 v%d, v%d, v%d, s[70:71]' % (vT0, acc, acc + 1))
        A('v_cndmask_b32 v%d, v%d, v%d, s[70:71]' % (vT0 + 1, acc + 2, acc + 3))
        A('v_cndmask_b32 v%d, v%d, v%d, s[72:73]' % (x, vT0, vT0 + 1))
        if a & 1:
            cc = a >> 1
            dpp('v_add_f32', vU0, vU0, 'quad_perm:[1,0,3,2]')
            A('s_nop 0')
            dpp('v_add_f32', vU0 + 1, vU0 + 1, 'quad_perm:[1,0,3,2]')
            A('v_cndmask_b32 v%d, v%d, v%d, s[70:71]' % (vX0 + cc, vU0, vU0 + 1))
            if cc:
                dpp('v_add_f32', vX0, vX0, 'quad_perm:[2,3,0,1]')
                A('s_nop 0')
                dpp('v_add_f32', vX0 + 1, vX0 + 1, 'quad_perm:[2,3,0,1]')
                grp = c // 4
                A('v_cndmask_b32 v%d, v%d, v%d, s[72:73]' % (vR, vX0, vX0 + 1))
                A('v_max_f32 v%d, v%d, v%d' % (vM, vM, vR))
                A('ds_write_b32 v%d, v%d offset:%d' % (vSA, vR, sc_off(grp)))
                if (grp + 1) % GPB == 0 and grp + 1 < HALF // 16: A('v_add_u32 v%d, %d, v%d' % (vSA, GPB * 256, vSA))
    def proc(u):
        t = 2 * u
        if t < HALF:
            if noproc & 1: return
            c = t // 4
            acc = vA + 4 * (c & 1)
            for i in range(2):
                j = (t + i) % 4
                A('v_mfma_f32_16x16x32_bf16 v[%d:%d], v[%d:%d], %s, %s' % (acc, acc + 3, vQM + 4 * j, vQM + 4 * j + 3, rr(t + i), '0' if j == 0 else 'v[%d:%d]' % (acc, acc + 3)))
            if t % 4 == 0 and c > 0: post(c - 1)
            if t + 2 == HALF: post(c)
            if t + 2 == HALF:
                A('v_subrev_u32 v%d, %d, v%d' % (vSA, ((HALF // 16 - 1) // GPB) * GPB * 256, vSA))
                A('ds_read_b32 v%d, v%d' % (vR, vSA))
                A('v_mov_b32 v%d, %d' % (vT0 + 1, L_CTL))
                for ctl in ('row_ror:8', 'row_ror:4', 'row_ror:2', 'row_ror:1'):
                    dpp('v_max_f32', vM, vM, ctl); A('s_nop 1')
                for sw in ('v_permlane16_swap_b32', 'v_permlane32_swap_b32'):
                    A('v_mov_b32 v{T}, v{M}\ns_nop 1\n{sw} v{M}, v{T}\nv_max_f32 v{M}, v{M}, v{T}'.format(T=vT, M=vM, sw=sw))
                if rnd: score_round(vM, vM)
                A('v_mul_f32 v%d, s55, v%d\ns_barrier' % (vMC, vM))
                prepA(0)
        else:
            if noproc & 2: return
            if cur[0][-1].startswith('v_and'): A('s_nop 0')
            A('v_mfma_f32_16x16x32_bf16 v[%d:%d], v[%d:%d], %s, v[%d:%d]' % (vAcc, vAcc + 3, vA, vA + 3, rr(t), vAcc, vAcc + 3))
            A('v_mfma_f32_16x16x32_bf16 v[%d:%d], v[%d:%d], %s, v[%d:%d]' % (vAcc, vAcc + 3, vA + 4, vA + 7, rr(t + 1), vAcc, vAcc + 3))
            uu = u - HALF // 2
            if uu + 1 < HALF // 2: prepA(uu + 1)
            if uu + 1 == HALF // 2 - 8:
                pass
    win = [n]
    def paced_issue(cnt):
        for _ in range(cnt // q):
            t = st['issued']
            if t + q - 1 - win[0] >= 0:
                wait_landed(t + q - 1 - win[0])
            for i in range(q): issue(t + i)
    n0 = (n // q) * q
    def job_off(dst, jreg, rowbytes, bits=0):
        if bits:
            A('''s_and_b32 s68, {j}, {m}
s_lshr_b32 s69, {j}, {b}
s_mul_i32 {d}, s68, {rb}
s_lshl_b32 s69, s69, 7
s_add_u32 {d}, {d}, s69'''.format(j=jreg, d=dst, rb=rowbytes, m=(1 << bits) - 1, b=bits))
            return
        A('''s_mul_i32 s68, {j}, 7282
s_lshr_b32 s68, s68, 16
s_mul_i32 s69, s68, 9
s_sub_u32 s69, {j}, s69
s_mul_i32 {d}, s68, {rb}
s_lshl_b32 s69, s69, 7
s_add_u32 {d}, {d}, s69'''.format(j=jreg, d=dst, rb=rowbytes))
    def side_dma(cnt, sr, so, step, ldsreg, vreg):
        for i in range(cnt):
            A('s_mov_b32 m0, %d\ns_waitcnt vmcnt(%d)\nbuffer_load_dwordx4 %s, %s, %s offen nt lds\ns_add_u32 %s, %s, %s' % (ldsreg + i * 1024, w0 - 1, vreg, sr, so, so, so, step))
    A('''v_lshrrev_b32 v4, 3, v0
v_and_b32 v5, 7, v0
v_lshlrev_b32 v5, 4, v5
v_mul_u32_u24 v6, 1152, v4
v_add_u32 v6, v6, v5
v_mul_u32_u24 v7, 9216, v4
v_add_u32 v7, v7, v5''')
    srd(44, 12, 4096 * 1152)
    A('''s_and_b32 s68, s2, 7
s_bfe_u32 s69, s2, 0x10003
s_lshl_b32 s69, s69, 4
s_add_u32 s68, s68, s69
s_mul_i32 s75, s68, 147456
s_lshr_b32 s69, s2, 4
s_lshl_b32 s69, s69, 7
s_add_u32 s75, s75, s69
s_add_u32 s77, s75, 1179648
s_mov_b32 s78, %d''' % L_QW)
    A('''s_cmp_ge_u32 s2, 184
s_cbranch_scc1 L_S_down
s_cmp_lt_u32 s2, 40
s_cbranch_scc1 L_S_light
s_cmp_lt_u32 s2, 112
s_cselect_b32 s40, s16, s18
s_cselect_b32 s41, s17, s19
s_cselect_b32 s74, 40, 112
s_mov_b32 s42, 5308416
s_mov_b32 s43, 0x20000
s_sub_u32 s74, s2, s74
s_lshr_b32 s74, s74, 3
s_and_b32 s76, s2, 7
s_mul_i32 s76, s76, 9
s_add_u32 s74, s74, s76
s_lshl_b32 s74, s74, 7
s_mov_b32 s76, 73728
s_branch L_S_big
L_S_down:
s_sub_u32 s74, s2, 184''')
    job_off('s74', 's74', 663552, 3 if rm & 2 else 0)
    srd(40, 20, 4608 * 1152)
    A('''s_mov_b32 s76, 9216
v_mov_b32 v7, v6
L_S_big:''')
    if b0: A('s_barrier')
    if sm & 4: side_dma(72, 's[40:43]', 's74', 's76', L_W, 'v7')
    if hwo: A('s_branch L_S_k')
    else: A('s_cmp_ge_u32 s2, 144\ns_cbranch_scc1 L_S_k\ns_branch L_S_wo')
    A('L_S_light:\ns_mov_b32 s78, %d' % L_W)
    if b0: A('s_barrier')
    if hwo: A('s_cmp_ge_u32 s2, 16\ns_cbranch_scc1 L_S_k')
    A('L_S_wo:')
    if sm & 2:
        for i in range(32):
            so = 's75' if i < 16 else 's77'
            A('s_add_u32 m0, s78, %d\ns_waitcnt vmcnt(%d)\nbuffer_load_dwordx4 v6, s[44:47], %s offen nt lds\ns_add_u32 %s, %s, 9216' % (i * 1024, w0 - 1, so, so, so))
    A('L_S_k:')
    if diag == 7: A('s_memrealtime s[94:95]')
    for t in range(n0):
        A('s_waitcnt vmcnt(%d)' % (max(w0, n0) - 1))
        issue(t)
    A("""v_and_b32 v{T}, 1, v0
v_lshlrev_b32 v{T}, 4, v{T}
v_mov_b32 v{T2}, 0xffff
v_lshlrev_b32 v{T2}, v{T}, v{T2}
v_bfe_u32 v{T}, v0, 1, 3""".format(T=vT, T2=vT2))
    for j in range(4):
        A('v_cmp_eq_u32 vcc, %d, v%d\ns_nop 1\nv_cndmask_b32 v%d, 0, v%d, vcc' % (j, vT, vMask + j, vT2))
    epoch()
    A("""v_mov_b32 v{M}, 0xff800000
v_mov_b32 v{Lr}, 0
v_mov_b32 v{a0}, 0
v_mov_b32 v{a1}, 0
v_mov_b32 v{a2}, 0
v_mov_b32 v{a3}, 0
s_mov_b32 s55, {csc}
s_mov_b32 s56, {scl}
s_mov_b32 s70, 0xaaaaaaaa
s_mov_b32 s71, 0xaaaaaaaa
s_mov_b32 s72, 0xcccccccc
s_mov_b32 s73, 0xcccccccc
v_and_b32 v{T}, 15, v0
v_lshlrev_b32 v{T}, 4, v{T}
v_and_b32 v{T2}, 16, v0
v_lshl_add_u32 v{Ad}, v{T}, 1, v{T2}
s_lshl_b32 s57, s31, 3
s_add_u32 s57, s57, s30
s_lshl_b32 s57, s57, 9
s_add_u32 s57, s57, {orec}
s_mov_b32 s63, 0xffff0000
s_mov_b32 s58, {lsc}
v_lshl_add_u32 v{SA}, v0, 2, s58""".format(M=vM, Lr=vL, a0=vAcc, a1=vAcc + 1, a2=vAcc + 2, a3=vAcc + 3, csc=hex(f2u(math.log2(math.e)) if rnd else CSC), scl=hex(f2u(128.0 ** -0.5)), T=vT, T2=vT2,
                              Ad=vAddr, SA=vSA, lsc=L_SC, orec=OREC))
    paced_issue(D - n0 - ((D - n0) & 1))
    if diag == 7: A('s_memrealtime s[96:97]')
    A('s_barrier')
    if diag == 7: A('s_memrealtime s[98:99]')
    A('ds_read_b128 v[%d:%d], v%d\nv_bfe_u32 v%d, v0, 2, 2' % (vQ, vQ + 3, vS0, vT))
    for j in range(4): A('v_cmp_eq_u32 s[%d:%d], %d, v%d' % (76 + 2 * j, 77 + 2 * j, j, vT))
    A('s_waitcnt lgkmcnt(0)')
    for j in range(4):
        for i in range(4): A('v_cndmask_b32 v%d, 0, v%d, s[%d:%d]' % (vQM + 4 * j + i, vQ + i, 76 + 2 * j, 77 + 2 * j))
    A('s_nop 0')
    done = [0]
    extra = [0]
    def do_proc():
        u = done[0]
        wait_landed(2 * u + 1)
        proc(u)
        done[0] += 1
    if not na: na = n0
    assert na >= n0 and (na - n0) % 2 == 0 and na + 2 <= D and nend <= na
    target_ahead = 2 + na
    k1 = n0 // 2 if D > target_ahead else 0
    for _ in range(k1):
        do_proc(); paced_issue(2)
    while st['issued'] - 2 * done[0] > target_ahead - 2:
        if st['issued'] - 2 * done[0] >= target_ahead + 2:
            do_proc(); do_proc(); paced_issue(2)
        else:
            do_proc()
    def steady():
        paced_issue(2); do_proc()
    def loop(name, limit):
        while (2 * done[0]) % D != 0: steady()
        niter = (limit - st['issued']) // D
        assert niter >= 2
        kc = ctl and gK >= 0
        info['cntK'] = niter - niter * pK // 100
        info['nK'] = niter
        A('s_mov_b32 s58, %d' % niter)
        if kc: A('v_mov_b32 v%d, %d' % (vS1, L_CTL))
        snap = (dict(st), done[0])
        for vi, (nm, w) in enumerate([(name, n)] + ([(name + 'f', nf), (name + 's', ns)] if kc else [])):
            st.update(snap[0]); done[0] = snap[1]
            st['landed'] = 2 * done[0] - 1
            win[0] = w
            if vi: sec('stream2')
            A(nm + ':')
            if kc: A('ds_read_b32 v%d, v%d' % (vT2, vS1))
            for _ in range(D // 2): steady()
            if vi: A('s_branch L_Kdisp')
        win[0] = n
        sec('stream')
        A("""L_Kdisp:
s_sub_u32 s58, s58, 1
s_cmp_eq_u32 s58, %d
s_cbranch_scc1 L_midC
L_midCback:""" % info['cntK'])
        if kc:
            A("""s_waitcnt lgkmcnt(0)
v_readfirstlane_b32 s60, v{c}
s_cmp_eq_u32 s58, 0
s_cbranch_scc1 L_Kexit
s_lshr_b32 s61, s60, 2
s_cmp_gt_u32 s58, s61
s_cselect_b32 s60, s60, 0
s_bitcmp1_b32 s60, 0
s_cbranch_scc1 {nm}f
s_bitcmp1_b32 s60, 1
s_cbranch_scc1 {nm}s
s_branch {nm}
L_Kexit:
v_mov_b32 v{c}, 0
ds_write_b32 v{a}, v{c}""".format(c=vT2, nm=name, a=vS1))
        else:
            A('s_cmp_lg_u32 s58, 0\ns_cbranch_scc1 %s' % name)
        st['issued'] += (niter - 1) * D
        done[0] += (niter - 1) * (D // 2)
        st['landed'] = 2 * done[0] - 1
    loop('L_loopK', HALF)
    while 2 * done[0] < HALF or (2 * done[0] - HALF) % D != 0: steady()
    assert HALF % D == 0 or True
    loop2_base = done[0]
    niter = (TOT - D - st['issued']) // D
    nit2 = kend // D if nend else 0
    niter -= nit2
    cps = [niter - niter * p // 100 for p in (pB, pC, pD) if p]
    info['cntA'], info['cps'] = niter, cps
    A('s_mov_b32 s58, %d\ns_mov_b32 s75, %d\ns_and_b32 s74, s75, 0xff' % (niter, sum(c << (8 * i) for i, c in enumerate(cps)) | (0xff << (8 * len(cps))) & 0xffffffff))
    variants = [('L_loopV', n)] + ([('L_loopVf', nf), ('L_loopVs', ns)] if ctl else [])
    assert not ctl or nf <= na
    snap = (dict(st), done[0])
    for vi, (name, w) in enumerate(variants):
        st.update(snap[0]); done[0] = snap[1]
        st['landed'] = 2 * done[0] - 1
        win[0] = w
        if vi: sec('stream2')
        A(name + ':')
        if ctl: A('ds_read_b32 v%d, v%d' % (vT2, vT0 + 1))
        for _ in range(D // 2): steady()
        if vi: A('s_branch L_Vdisp')
    win[0] = n
    sec('stream')
    A("""L_Vdisp:
s_sub_u32 s58, s58, 1
s_cmp_eq_u32 s58, s74
s_cbranch_scc1 L_midB
L_midBback:""")
    if ctl:
        A("""v_readfirstlane_b32 s60, v{c}
s_cmp_eq_u32 s58, 0
s_cbranch_scc1 L_Vexit
s_lshr_b32 s61, s60, 2
s_cmp_gt_u32 s58, s61
s_cselect_b32 s60, s60, 0
s_bitcmp1_b32 s60, 0
s_cbranch_scc1 L_loopVf
s_bitcmp1_b32 s60, 1
s_cbranch_scc1 L_loopVs
s_branch L_loopV
L_Vexit:""".format(c=vT2))
    else:
        A('s_cmp_lg_u32 s58, 0\ns_cbranch_scc1 L_loopV')
    st['issued'] += (niter - 1) * D
    st['landed'] += (niter - 1) * D
    done[0] += (niter - 1) * (D // 2)
    st['landed'] = 2 * done[0] - 1
    if nend: win[0] = nend
    if nit2:
        st['landed'] = 2 * done[0] - 1
        A('s_mov_b32 s58, %d\nL_loopV2:' % nit2)
        for _ in range(D // 2): steady()
        A('s_sub_u32 s58, s58, 1\ns_cmp_lg_u32 s58, 0\ns_cbranch_scc1 L_loopV2')
        st['issued'] += (nit2 - 1) * D
        st['landed'] += (nit2 - 1) * D
        done[0] += (nit2 - 1) * (D // 2)
    while st['issued'] < TOT: steady()
    ml_done = False
    while done[0] < TOT // 2:
        if not ml_done and done[0] + 1 >= TOT // 2 - 8 + 1:
            finish_l(); ml_done = True
        do_proc()
    A("""s_mov_b32 exec_hi, 0
s_cmp_eq_u32 s60, 1
s_nop 5
v_mul_f32 v4, v{a0}, v{Lr}
v_mul_f32 v5, v{a1}, v{Lr}
v_mul_f32 v6, v{a2}, v{Lr}
v_mul_f32 v7, v{a3}, v{Lr}
v_cvt_pk_bf16_f32 v2, v4, v5
v_cvt_pk_bf16_f32 v3, v6, v7
v_lshl_or_b32 v4, v2, 16, v60
v_and_or_b32 v5, v2, s63, v61
v_lshl_or_b32 v6, v3, 16, v62
v_and_or_b32 v7, v3, s63, v63
{st}
s_barrier""".format(st=('s_cbranch_scc1 L_oloc\nbuffer_store_dwordx4 v[4:7], v%d, s[48:51], s57 offen sc1\ns_branch L_odone\nL_oloc:\nbuffer_store_dwordx4 v[4:7], v%d, s[48:51], s57 offen\nL_odone:' % (vAddr, vAddr))
                 if loc & 1 else 'buffer_store_dwordx4 v[4:7], v%d, s[48:51], s57 offen %s' % (vAddr, 'sc1' if dbl < 0 else ''), a0=vAcc, a1=vAcc + 1, a2=vAcc + 2, a3=vAcc + 3, Ad=vAddr, Lr=vL))
    if diag:
        A('s_mov_b64 exec, -1')
        stamp(3)
        if diag == 7: A('s_mov_b64 exec, 1\nv_mov_b32 v244, s94\nv_mov_b32 v245, s96\nv_mov_b32 v246, s98\nv_mov_b32 v247, s100\nbuffer_store_dwordx4 v[244:247], v252, s[80:83], 0 offen offset:64\ns_mov_b64 exec, -1')
        A('s_mov_b32 exec_hi, 0')
    if dbl >= 0:
        A('s_waitcnt vmcnt(0)')
        if dbl: A('s_sleep %d' % dbl)
        A('buffer_store_dwordx4 v[4:7], v%d, s[48:51], s57 offen sc1' % vAddr)
    A('s_endpgm')
    A('L_midB:' + ('\ns_memrealtime s[94:95]' if diag == 5 else '') + '\ns_barrier\ns_lshr_b32 s75, s75, 8\ns_and_b32 s74, s75, 0xff\ns_branch L_midBback')
    A('L_midC:' + ('\ns_memrealtime s[100:101]' if diag == 7 else '') + '\ns_barrier\ns_branch L_midCback')

    XF = 72
    AC = 16
    AC2 = 32
    FR = 144
    PUB = 64
    def ha_setup1():
        srd(36, 4, 9216)
        A("""v_and_b32 v5, 7, v0
v_mul_u32_u24 v9, 1152, v5
v_lshrrev_b32 v8, 4, v0
v_lshl_add_u32 v9, v8, 4, v9""")
    def ha_setup2():
        trbase(6, 128, 16, 10)
        A("""v_and_b32 v10, 8, v0
v_lshlrev_b32 v12, 1, v10
v_lshl_add_u32 v12, v8, 5, v12
v_cmp_ne_u32 s[66:67], 0, v10""")
        epoch()
    def wdma(ldsoff, step, sr='s[32:35]', so='s54'):
        A('s_mov_b32 m0, %d\ns_nop 0\nbuffer_load_dwordx4 v4, %s, %s offen nt lds\ns_add_u32 %s, %s, %s' % (ldsoff, sr, so, so, so, step))
    def w_reads(ks, base, koff, hfs=512):
        b = FR + (ks % 2) * 16
        for nt in range(4):
            for hf in range(2):
                off = koff * 4096 + hf * hfs + (nt >> 1) * 64 + (nt & 1) * 8
                r = b + nt * 4 + hf * 2
                A('ds_read_b64_tr_b16 v[%d:%d], v%d offset:%d' % (r, r + 1, base, off))
    def w_mfma(ks, acc, xreg, first):
        b = FR + (ks % 2) * 16
        for nt in range(4):
            A('v_mfma_f32_16x16x32_bf16 v[%d:%d], v[%d:%d], v[%d:%d], %s' % (acc + nt * 4, acc + nt * 4 + 3, b + nt * 4, b + 3 + nt * 4, xreg, xreg + 3,
              '0' if first else 'v[%d:%d]' % (acc + nt * 4, acc + nt * 4 + 3)))
    def select8(dst, acc):
        for i in range(2):
            for e in range(4):
                A('v_cndmask_b32 v%d, v%d, v%d, s[66:67]' % (dst + 4 * i + e, acc + 8 * i + e, acc + 8 * i + 4 + e))
    def publish(linestride, local=False):
        if local:
            l1, l2 = newlab('L_ploc'), newlab('L_pdn')
            A('s_cmp_eq_u32 s64, 1\ns_cbranch_scc1 %s' % l1)
        for i in range(2):
            A('buffer_store_dwordx4 v[%d:%d], v11, s[48:51], s57 offen offset:%d sc1%s' % (PUB + 4 * i, PUB + 3 + 4 * i, i * linestride, ' nt' if snt & 1 else ''))
        if local:
            A('s_branch %s\n%s:' % (l2, l1))
            for i in range(2):
                A('buffer_store_dwordx4 v[%d:%d], v11, s[48:51], s57 offen offset:%d%s' % (PUB + 4 * i, PUB + 3 + 4 * i, i * linestride, ' nt' if snt & 4 else ''))
            A(l2 + ':')
    def publish_f32(linestride, local=False):
        A('s_nop 6')
        select8(PUB, AC)
        for i in range(8): A('v_bfi_b32 v%d, s59, v%d, v%d' % (PUB + i, PUB + i, TAG + i % 4))
        publish(linestride, local)

    sec('haq')
    A('L_HA:')
    if prio: A('s_setprio %d' % prio)
    if early:
        A('s_sub_u32 s52, s2, 16\ns_cmp_lt_u32 s52, 128\ns_cbranch_scc0 L_HA_q')
        if b0: A('s_barrier')
        A('s_branch L_HA_noq\nL_HA_q:\ns_waitcnt lgkmcnt(0)')
        common()
    else:
        A('s_sub_u32 s52, s2, 16\ns_cmp_lt_u32 s52, 128\ns_cbranch_scc1 L_HA_noq')
    srd(32, 10, 576 * 8192)
    ha_setup1()
    A("""s_lshr_b32 s52, s2, 3
s_and_b32 s52, s52, 15
s_and_b32 s53, s52, 1
s_bfe_u32 s54, s52, 0x10001
s_lshr_b32 s52, s52, 2
s_lshl_b32 s52, s52, 3
s_and_b32 s55, s2, 7
s_add_u32 s52, s52, s55
s_lshl_b32 s52, s52, 1
s_add_u32 s52, s52, s54
s_mul_i32 s54, s53, 2359296
s_lshl_b32 s55, s52, 7
s_add_u32 s54, s54, s55
s_mul_i32 s56, s53, 576
v_lshrrev_b32 v4, 3, v0
v_lshlrev_b32 v4, 13, v4
v_lshl_add_u32 v4, v5, 4, v4""")
    for ks in range(9):
        A('buffer_load_dwordx4 v[%d:%d], v9, s[36:39], s56 offen offset:%d%s' % (XF + 4 * ks, XF + 4 * ks + 3, ks * 64, ' nt' if xnt else ''))
    for i in range(36):
        wdma(L_QW + i * 1024, '65536')
        if b0 and i == b0q: A('s_barrier')
    ha_setup2()
    A("""v_lshlrev_b32 v11, 15, v5
v_add_u32 v11, v11, v12
s_lshl_b32 s57, s52, 1
s_add_u32 s57, s57, s53
s_lshl_b32 s57, s57, 8
s_add_u32 s57, s57, %d""" % QP)
    xq = 1 if loc & 2 else 0
    if xq: class_load(58, 59)
    A('s_waitcnt vmcnt(%d)' % (32 + xq))
    w_reads(0, 6, 0)
    for ks in range(9):
        if ks + 1 < 9:
            A('s_waitcnt vmcnt(%d)' % (28 - 4 * ks + xq))
            w_reads(ks + 1, 6, ks + 1)
            A('s_waitcnt lgkmcnt(8)')
        else:
            A('s_waitcnt lgkmcnt(0)')
        w_mfma(ks, AC, XF + 4 * ks, ks == 0)
    if xq:
        A('s_waitcnt vmcnt(0)')
        class_test(58, 's64')
    publish_f32(128, bool(xq))
    if qgate: A('v_mov_b32 v2, %d\nv_mov_b32 v3, 1\nds_write_b32 v2, v3' % (L_CTL + 4))
    stamp(5)
    if diag == 6: A('s_mov_b64 exec, 1\nv_mov_b32 v3, s64\nbuffer_store_dword v3, v252, s[80:83], 0 offen offset:60\ns_mov_b64 exec, -1')
    A('s_branch L_HA2')

    sec('ha2')
    def xloads():
        for ks in range(18):
            if ks >= wa: A('s_waitcnt vmcnt(%d)' % (wa - 1))
            A('buffer_load_dwordx4 v[%d:%d], v9, s[36:39], 0 offen offset:%d%s' % (XF + 4 * ks, XF + 4 * ks + 3, ks * 64, ' nt' if xnt else ''))
    A('L_HA_noq:')
    if early:
        A('s_waitcnt lgkmcnt(0)')
        common()
    ha_setup1()
    if b0 and not early: A('s_barrier')
    if hwo and sm & 2:
        srd(44, 12, 4096 * 1152)
        A("""v_lshrrev_b32 v4, 3, v0
v_mul_u32_u24 v4, 1152, v4
v_lshl_add_u32 v4, v5, 4, v4
s_and_b32 s68, s2, 7
s_bfe_u32 s69, s2, 0x10003
s_lshl_b32 s69, s69, 4
s_add_u32 s68, s68, s69
s_mul_i32 s75, s68, 147456
s_lshr_b32 s69, s2, 4
s_lshl_b32 s69, s69, 7
s_add_u32 s75, s75, s69
s_add_u32 s77, s75, 1179648
s_cmp_lt_u32 s2, 40
s_cselect_b32 s78, %d, %d""" % (L_W, L_QW))
        for i in range(32):
            so = 's75' if i < 16 else 's77'
            A('s_add_u32 m0, s78, %d\ns_waitcnt vmcnt(%d)\nbuffer_load_dwordx4 v4, s[44:47], %s offen nt lds\ns_add_u32 %s, %s, 9216' % (i * 1024, hwo - 1, so, so, so))
    ha_setup2()
    A("""s_waitcnt vmcnt(0)
s_branch L_HA2
L_HA_fin:
s_barrier
s_branch L_FIN
L_HA2:
s_setprio 0
s_barrier""")
    if not sm & 8: A('s_endpgm')
    A("""s_cmp_ge_u32 s2, 184
s_cbranch_scc1 L_FFN2
s_cmp_lt_u32 s2, 40
s_cbranch_scc1 """ + ('L_HA_fin' if f0 else 'L_end'))
    xloads()
    A('L_FFN1x:')
    A("""v_add_u32 v6, {lw}, v6
v_add_u32 v7, 36864, v6
v_mul_u32_u24 v11, 18432, v5
v_add_u32 v11, v11, v12
s_cmp_lt_u32 s2, 112
s_cselect_b32 s52, 40, 112
s_sub_u32 s52, s2, s52
s_lshr_b32 s52, s52, 3
s_and_b32 s53, s2, 7
s_mul_i32 s53, s53, 9
s_add_u32 s52, s52, s53
s_lshl_b32 s52, s52, 8
s_add_u32 s57, s52, {preg}
v_mov_b32 v13, {lf}
s_waitcnt vmcnt(0)""".format(lw=L_W, preg=PREG, lf=L_CTL + 8))
    w_reads(0, 6, 0)
    for ks in range(18):
        if ks + 1 < 18:
            w_reads(ks + 1, 6 if ks + 1 < 9 else 7, (ks + 1) % 9)
            A('s_waitcnt lgkmcnt(8)')
        else:
            A('s_waitcnt lgkmcnt(0)')
        w_mfma(ks, AC, XF + 4 * ks, ks == 0)
    A('s_cmp_ge_u32 s2, 112\ns_cbranch_scc1 L_UP')
    A('ds_read_b32 v3, v13\ns_waitcnt lgkmcnt(0)\nv_readfirstlane_b32 s64, v3')
    publish_f32(128, bool(loc & 4))
    stamp(9)
    A('s_barrier\ns_branch L_FIN')
    A("""L_UP:
s_mov_b32 s58, {nl}
s_mov_b32 s63, 0xffff0000
s_nop 3""".format(nl=hex(NLOG2E)))
    select8(PUB, AC)
    for i in range(2): round4([PUB + 4 * i + e for e in range(4)], 56)
    A('s_barrier')
    poll_tag(['buffer_load_dwordx4 v[%d:%d], v11, s[48:51], s57 offen offset:%d %s' % (48 + 4 * i, 51 + 4 * i, i * 128, MF) for i in range(2)],
             range(48, 56), slp, 1 << 19, masked=False)
    for e in range(8): A('v_and_b32 v%d, s59, v%d' % (48 + e, 48 + e))
    for i in range(2): round4([48 + 4 * i + e for e in range(4)], 56)
    for e in range(8): A('v_mul_f32 v%d, s58, v%d' % (16 + e, 48 + e))
    for e in range(8): A('v_exp_f32 v%d, v%d' % (16 + e, 16 + e))
    for e in range(8): A('v_add_f32 v%d, 1.0, v%d' % (16 + e, 16 + e))
    for e in range(8): A('v_rcp_f32 v%d, v%d' % (16 + e, 16 + e))
    for e in range(8): A('v_mul_f32 v%d, v%d, v%d' % (48 + e, 48 + e, 16 + e))
    for i in range(2): round4([48 + 4 * i + e for e in range(4)], 56)
    for e in range(8): A('v_mul_f32 v%d, v%d, v%d' % (PUB + e, PUB + e, 48 + e))
    for i in range(2): round4([PUB + 4 * i + e for e in range(4)], 56)
    for e in range(8): A('v_or_b32 v%d, v%d, v%d' % (PUB + e, PUB + e, TAG + e % 4))
    A('ds_read_b32 v3, v13\ns_add_u32 s57, s52, %d\ns_waitcnt lgkmcnt(0)\nv_readfirstlane_b32 s64, v3' % HM)
    publish(128, bool(loc & 8))
    stamp(9)
    if f0: A('s_cmp_ge_u32 s2, 144\ns_cbranch_scc1 L_end')
    A('s_branch L_FIN')

    A('L_FFN2:')
    trbase(6, 128, 16, 10, 4)
    if rm & 2: A('s_sub_u32 s53, s2, 184\ns_and_b32 s52, s53, 7\ns_lshr_b32 s53, s53, 3')
    else: A('s_sub_u32 s53, s2, 184\ns_mul_i32 s52, s53, 7282\ns_lshr_b32 s52, s52, 16\ns_mul_i32 s54, s52, 9\ns_sub_u32 s53, s53, s54')
    A("""v_add_u32 v6, {lw}, v6
v_add_u32 v7, 36864, v6
v_mul_u32_u24 v9, 18432, v5
v_lshl_add_u32 v9, v8, 4, v9
v_and_b32 v10, 8, v0
v_lshl_add_u32 v9, v10, 3, v9
s_mul_i32 s56, s52, 2304
s_add_u32 s56, s56, {hm}
s_mov_b32 s58, 0x07060302
v_mul_u32_u24 v11, 18432, v5
v_add_u32 v11, v11, v12
s_lshl_b32 s57, s53, 11
s_lshl_b32 s63, s52, 7
s_add_u32 s57, s57, s63
s_add_u32 s57, s57, {fin}
s_barrier
s_barrier""".format(lw=L_W, hm=HM, fin=FIN))
    def pack_frags(raw, cnt, sel):
        for k in range(cnt):
            r = raw + 4 * k
            A('v_perm_b32 v%d, v%d, v%d, %s\nv_perm_b32 v%d, v%d, v%d, %s' % (r, r + 1, r, sel, r + 1, r + 3, r + 2, sel))
        for k in range(cnt):
            r = raw + 4 * k
            for t in range(2):
                A('v_mov_b32_dpp v%d, v%d row_ror:8 row_mask:0xf bank_mask:0xf' % (r + 2 + t, r + t))
    def spread8(acc):
        for i in range(2):
            for e in range(4):
                A('v_mov_b32_dpp v%d, v%d row_ror:8 row_mask:0xf bank_mask:0xc' % (acc + 8 * i + e, acc + 8 * i + 4 + e))
    poll_tag(['buffer_load_dwordx4 v[%d:%d], v9, s[48:51], s56 offen offset:%d %s' % (XF + 4 * k, XF + 4 * k + 3, k * 128, MF) for k in range(18)],
             range(XF, XF + 72), slp, 1 << 19)
    pack_frags(XF, 18, 's58')
    w_reads(0, 6, 0, 2048)
    for k in range(18):
        if k + 1 < 18:
            w_reads(k + 1, 6 if k + 1 < 9 else 7, (k + 1) % 9, 2048)
            A('s_waitcnt lgkmcnt(8)')
        else:
            A('s_waitcnt lgkmcnt(0)')
        w_mfma(k, AC, XF + 4 * k, k == 0)
    A('s_nop 7')
    spread8(AC)
    for i in range(2):
        for e in range(4): A('v_bfi_b32 v%d, s59, v%d, v%d' % (PUB + 4 * i + e, AC + 8 * i + e, TAG + e))
    publish(1024)
    stamp(9)
    A('s_endpgm')

    sec('hbq')
    A('L_HB:')
    if prio: A('s_setprio %d' % prio)
    if early:
        if qgate: A('v_mov_b32 v2, %d\nv_mov_b32 v3, 0\nds_write_b32 v2, v3' % (L_CTL + 4))
        A('s_waitcnt lgkmcnt(0)')
        if b0: A('s_sub_u32 s60, s2, 16\ns_cmp_lt_u32 s60, 128\ns_cbranch_scc0 L_HB_a\ns_barrier\nL_HB_a:')
        common()
    A("""v_bfe_u32 v6, v0, 3, 1
v_lshlrev_b32 v6, 9, v6
v_bfe_u32 v7, v0, 4, 1
v_lshl_add_u32 v6, v7, 8, v6
v_and_b32 v5, 7, v0
v_lshl_add_u32 v6, v5, 5, v6
v_lshrrev_b32 v7, 5, v0
v_lshl_add_u32 v6, v7, 4, v6
s_lshl_b32 s56, s30, 6
s_lshl_b32 s57, s31, 1
s_add_u32 s56, s56, s57
s_lshl_b32 s56, s56, 9
s_add_u32 s56, s56, {qp}
v_and_b32 v5, 15, v0
v_lshlrev_b32 v5, 4, v5
v_lshl_add_u32 v5, v7, 3, v5
v_add_u32 v4, {lq}, v5""".format(qp=QP, lq=L_Q))
    if qgate and not early: A('v_mov_b32 v2, %d\nv_mov_b32 v3, 0\nds_write_b32 v2, v3' % (L_CTL + 4))
    epoch()
    if loc:
        A("""s_getreg_b32 s65, hwreg(HW_REG_XCC_ID)
s_and_b32 s65, s65, 15
s_add_u32 s65, s65, s89
s_and_b32 s64, s2, 7
s_mul_i32 s64, s64, 1280
s_lshr_b32 s63, s2, 3
s_lshl_b32 s63, s63, 2
s_add_u32 s64, s64, s63
s_add_u32 s64, s64, {xl}
v_mov_b32 v12, 0
v_mov_b32 v13, s65
s_mov_b64 exec, 1
buffer_store_dword v13, v12, s[48:51], s64 offen {fl}
s_mov_b64 exec, -1""".format(xl=XL, fl='' if xp else 'sc1'))
    if b0 and not early: A('s_barrier')
    if b0 and early: A('s_cmp_lt_u32 s60, 128\ns_cbranch_scc1 L_HB_b\ns_barrier\nL_HB_b:')
    if qgate:
        A("""s_sub_u32 s62, s2, 16
s_cmp_lt_u32 s62, 128
s_cbranch_scc1 L_qg3
s_mov_b32 s61, 4096
L_qg:
s_sub_u32 s61, s61, 1
s_cbranch_scc1 L_qg3
s_sleep 1
ds_read_b32 v3, v2
s_waitcnt lgkmcnt(0)
v_readfirstlane_b32 s62, v3
s_cmp_eq_u32 s62, 0
s_cbranch_scc1 L_qg
L_qg3:""")
    poll_tag(['buffer_load_dwordx4 v[16:19], v6, s[48:51], s56 offen %s' % QF], range(16, 20), qslp, 1 << 21, masked=False)
    stamp(12)
    A('v_mov_b32 v2, %d\nv_mov_b32 v3, 0\nds_write_b32 v2, v3' % (L_CTL + 8))
    for i in range(4): A('v_and_b32 v%d, s59, v%d' % (32 + i, 16 + i))
    for i in range(4): A('v_mov_b32 v%d, v%d' % (40 + i, 32 + i))
    for i in range(4): A('v_permlane16_swap_b32 v%d, v%d' % (32 + i, 40 + i))
    for i in range(4): A('v_add_f32 v%d, v%d, v%d' % (32 + i, 32 + i, 40 + i))
    for i in range(2): A('v_cvt_pk_bf16_f32 v%d, v%d, v%d' % (8 + i, 32 + 2 * i, 33 + 2 * i))
    if ctl: A('v_mov_b32 v2, %d\nv_mov_b32 v3, 0\nds_write_b32 v2, v3' % L_CTL)
    A("""ds_write_b64 v4, v[8:9]
s_waitcnt lgkmcnt(0)
s_barrier
s_branch L_HB2""")
    sec('hb2')
    A('L_HB2:\ns_setprio 0')
    if probe:
        A('''s_mov_b32 s84, s28
s_mov_b32 s85, s29
s_mov_b32 s86, 0x80000000
s_mov_b32 s87, 0x20000
s_mul_i32 s40, s2, %d
s_add_u32 s40, s40, 0x300000
buffer_load_dwordx4 v[16:19], v1, s[84:87], s40 offen nt
s_load_dword s41, s[28:29], 0xF8000
s_waitcnt vmcnt(0) lgkmcnt(0)
v_xor_b32 v20, v16, v17
v_xor_b32 v21, v16, v18
v_xor_b32 v22, v16, v19
%s
v_and_b32 v20, 0xff, v20
v_cmp_eq_u32 s[42:43], 0, v20
v_xor_b32 v21, s41, v16
v_and_b32 v21, 0xff, v21
v_cmp_ne_u32 vcc, 0, v21
s_nop 1
s_and_b64 s[42:43], s[42:43], vcc
s_bcnt1_i32_b64 s94, s[42:43]''' % (0x7f0000 if probe & 1 else 4096, 'v_or3_b32 v20, v20, v21, v22' if probe & 2 else ''))
    stamp(2)
    if loc:
        class_load(14, 15)
        A('s_waitcnt vmcnt(0)')
        class_test(14, 's64')
        A('v_mov_b32 v2, %d\nv_mov_b32 v3, s64\nds_write_b32 v2, v3' % (L_CTL + 8))
        if diag == 6: A('s_mov_b64 exec, 1\nbuffer_store_dword v3, v252, s[80:83], 0 offen offset:56\ns_mov_b64 exec, -1')
    if ck == 1:
        A('''s_cmp_ge_u32 s2, 32
s_cbranch_scc1 L_nozero
s_mul_i32 s40, s2, %d
s_add_u32 s40, s40, %d
v_mov_b32 v2, 0
s_mov_b64 exec, 1
buffer_store_dword v2, v2, s[48:51], s40 offen sc1
s_mov_b64 exec, -1
L_nozero:''' % (rks, RK))
    WF = 64
    OF = 192
    FB = 164
    YA = 44
    A("""v_lshrrev_b32 v8, 4, v0
v_and_b32 v11, 8, v0
v_lshlrev_b32 v11, 3, v11
v_lshl_add_u32 v11, v8, 4, v11
v_and_b32 v10, 7, v0
v_lshl_add_u32 v12, v10, 9, v11
v_mul_u32_u24 v14, {bs}, v10
v_add_u32 v14, v14, v11
s_and_b32 s68, s2, 7
s_bfe_u32 s69, s2, 0x10003
s_lshl_b32 s69, s69, 4
s_add_u32 s68, s68, s69
s_lshl_b32 s72, s68, 12
s_add_u32 s72, s72, {orec}
s_add_u32 s73, s72, 32768
s_lshr_b32 s74, s2, 4
s_lshl_b32 s74, s74, {csh}
s_and_b32 s75, s2, 15
s_mul_i32 s75, s75, {hps}
s_add_u32 s74, s74, s75
s_add_u32 s74, s74, {yin}
s_mov_b32 s71, 0x07060302
""".format(orec=OREC, bs=18 * (128 if ysp else 2048), yin=YIN, csh=8 if ysp else 12, hps=ysp or 128))
    A("""s_cmp_ge_u32 s2, 144
s_cbranch_scc1 L_HB3
s_cmp_lt_u32 s2, 40
s_cselect_b32 s65, {lw}, {lqw}""".format(lw=L_W, lqw=L_QW).replace(', 0', ', 0'))
    trbase(6, 128, 8, 7, 4)
    A('v_add_u32 v6, s65, v6')
    for nt in range(4):
        for ks in range(8):
            for hf in range(2):
                r = WF + (nt * 8 + ks) * 4 + hf * 2
                A('ds_read_b64_tr_b16 v[%d:%d], v6 offset:%d' % (r, r + 1, ks * 4096 + hf * 2048 + nt * 32))
            if ks % 4 == 3: A('s_waitcnt lgkmcnt(0)')
    A('L_HB3:\ns_barrier')
    def checkpoint(k, cnt, gf, gs):
        if not ctl or gf < 0: return
        lab_ = newlab('L_nock')
        core = '''s_and_b32 s41, s2, 7
s_lshr_b32 s42, s2, 6
s_lshl_b32 s42, s42, 3
s_add_u32 s41, s41, s42
v_lshlrev_b32 v2, 2, v0
v_mov_b32 v3, s89
s_lshl_b64 s[42:43], 1, s41
s_mov_b32 exec_hi, 0
buffer_load_dword v4, v2, s[48:51], s40 offen sc1
s_mov_b64 exec, s[42:43]
buffer_store_dword v3, v2, s[48:51], s40 offen sc1
s_mov_b32 exec_lo, -1
s_waitcnt vmcnt(1)
v_cmp_eq_u32 vcc, s89, v4
s_mov_b64 exec, -1
s_mov_b32 s41, {gf}
s_mov_b32 s42, {gs}
s_bcnt1_i32_b32 s40, vcc_lo
''' if ck == 0 else '''s_add_u32 s42, s28, s40
s_addc_u32 s43, s29, 0
s_mov_b32 s40, 1
s_atomic_add s40, s[42:43], 0 glc
s_waitcnt lgkmcnt(0)''' + ('''
s_mov_b32 s41, 1
s_atomic_add s41, s[42:43], 256 glc
s_waitcnt lgkmcnt(0)''' if dum else '') + '''
s_min_u32 s40, s40, 31
s_mov_b32 s41, {gf}
s_mov_b32 s42, {gs}
''' if ck == 1 else '''s_mov_b32 s40, 16
s_mov_b32 s41, {gf}
s_mov_b32 s42, {gs}
'''
        A("""s_bfe_u32 s40, s2, 0x30003
s_mul_i32 s40, s40, {rs}
s_add_u32 s40, s40, {rk}
{core}v_cvt_f32_u32 v2, s40
v_mul_f32 v2, {r16}, v2
v_add_f32 v2, {b0}, v2
v_mul_f32 v3, v2, v2
v_mul_f32 v4, v3, v3
v_mul_f32 v4, v4, v4
v_mul_f32 v4, {c9}, v4
v_fmac_f32 v4, 0.5, v3
v_add_f32 v4, {c1}, v4
v_mul_f32 v2, v2, v4
s_cmp_ge_u32 s40, 16
s_cselect_b32 s41, s41, s42
s_cselect_b32 s43, 1, 2
v_fma_f32 v2, abs(v2), s41, 0.5
v_cvt_u32_f32 v2, v2
s_nop 0
v_readfirstlane_b32 s44, v2
s_sub_u32 s45, {c0}, s44
s_max_i32 s45, s45, 0
s_lshl_b32 s45, s45, 2
s_or_b32 s45, s45, s43
s_cmp_eq_u32 s44, 0
s_cselect_b32 s45, 0, s45
v_mov_b32 v2, {lctl}
v_mov_b32 v3, s45
ds_write_b32 v2, v3
{lab}:""".format(core=core.format(gf=hex(f2u(gf / 10)), gs=hex(f2u(gs / 10))), lab=lab_, rk=RK + k * 8 * rks, rs=rks, gf=hex(f2u(gf / 10)), gs=hex(f2u(gs / 10)), r16=hex(f2u(1 / 16)), b0=hex(f2u(-15.5 / 16)),
           c9=hex(f2u(0.6)), c1=hex(f2u(1.2)), c0=cnt - 2, lctl=L_CTL))
    checkpoint(3, info['cntK'], gK, gKs)
    A('s_barrier')
    checkpoint(0, info['cntA'], gA, gAs)
    stamp(14)
    for k, (g1, g2) in enumerate(((gB, gBs), (gC, gCs), (gD, gDs))[:len(info['cps'])]):
        A('s_barrier')
        if k == 0: stamp(15)
        checkpoint(1 + k, info['cps'][k], g1, g2)
    A('s_cmp_ge_u32 s2, 144\ns_cbranch_scc1 ' + ('L_hbend' if hs != 4 else 'L_end'))
    if prio: A('s_setprio %d' % prio)
    A('s_barrier')
    if not sm & 64: A('s_endpgm')
    poll_tag(['buffer_load_dwordx4 v[%d:%d], v12, s[48:51], %s offen offset:%d %s' % (OF + 4 * ks, OF + 4 * ks + 3, 's72' if ks < 4 else 's73', (ks % 4) * 128, 'sc1 nt' if h1nt else 'sc1') for ks in range(8)],
             range(OF, OF + 32), tslp, 1 << 22)
    if b3 == 2: A('s_barrier')
    if diag == 1: A('s_memrealtime s[94:95]')
    if not ilv:
        for half in range(2):
            pack_frags(OF + 16 * half, 4, 's71')
            for ks in range(4 * half, 4 * half + 4):
                for nt in range(4):
                    r = WF + (nt * 8 + ks) * 4
                    A('v_mfma_f32_16x16x32_bf16 v[%d:%d], v[%d:%d], v[%d:%d], %s' % (YA + nt * 4, YA + nt * 4 + 3, r, r + 3, OF + ks * 4, OF + 3 + ks * 4, '0' if ks == 0 else 'v[%d:%d]' % (YA + nt * 4, YA + nt * 4 + 3)))
    else:
        def pk_perm(k):
            r = OF + 4 * k
            A('v_perm_b32 v%d, v%d, v%d, s71\nv_perm_b32 v%d, v%d, v%d, s71' % (r, r + 1, r, r + 1, r + 3, r + 2))
        def pk_dpp(k):
            r = OF + 4 * k
            for t in range(2): A('v_mov_b32_dpp v%d, v%d row_ror:8 row_mask:0xf bank_mask:0xf' % (r + 2 + t, r + t))
        pk_perm(0); pk_perm(1); pk_dpp(0); pk_dpp(1)
        for ks in range(8):
            for nt in range(4):
                r = WF + (nt * 8 + ks) * 4
                A('v_mfma_f32_16x16x32_bf16 v[%d:%d], v[%d:%d], v[%d:%d], %s' % (YA + nt * 4, YA + nt * 4 + 3, r, r + 3, OF + ks * 4, OF + 3 + ks * 4, '0' if ks == 0 else 'v[%d:%d]' % (YA + nt * 4, YA + nt * 4 + 3)))
                if ks + 2 < 8 and nt == 0: pk_perm(ks + 2)
                if ks + 2 < 8 and nt == 2: pk_dpp(ks + 2)
    A('s_nop 5')
    for i in range(2):
        for e in range(4):
            A('v_mov_b32_dpp v%d, v%d row_ror:8 row_mask:0xf bank_mask:0xc' % (YA + 8 * i + e, YA + 8 * i + 4 + e))
        for e in range(4):
            A('v_bfi_b32 v%d, s59, v%d, v%d' % (YA + 8 * i + e, YA + 8 * i + e, TAG + e))
        A('buffer_store_dwordx4 v[%d:%d], v14, s[48:51], s74 offen offset:%d sc1%s' % (YA + 8 * i, YA + 8 * i + 3, i * (128 if ysp else 2048), ' nt' if snt & 2 else '')).replace(' sc1', ' sc0 sc1' if ysc & 1 else ' sc1') if False else A(('buffer_store_dwordx4 v[%d:%d], v14, s[48:51], s74 offen offset:%d sc1' % (YA + 8 * i, YA + 8 * i + 3, i * (128 if ysp else 2048))).replace(' sc1', ' sc0 sc1' if ysc & 1 else ' sc1'))
    if b3 == 1: A('s_barrier')
    stamp(4)
    if diag == 1: A('s_mov_b64 exec, 1\nv_mov_b32 v246, s94\nv_mov_b32 v247, s95\nbuffer_store_dwordx2 v[246:247], v252, s[80:83], 0 offen offset:80\ns_mov_b64 exec, -1')
    A('L_hbend:')
    if probe:
        A('''s_cmp_lt_u32 s94, %d
s_cbranch_scc1 L_end
s_mov_b32 s40, 200
L_prb:
s_sleep 64
s_sub_u32 s40, s40, 1
s_cbranch_scc0 L_prb
s_mov_b32 s84, s24
s_mov_b32 s85, s25
s_mov_b32 s86, 9216
v_mov_b32 v2, 0x7fc07fc0
buffer_store_dword v2, v1, s[84:87], 0 offen''' % (1 if probe & 2 else 8))
    stamp(99)
    A('s_endpgm')

    A("""L_FIN:
s_sub_u32 s64, s2, """ + ('0' if f0 else '40') + """
s_mul_i32 s76, s64, 3641
s_lshr_b32 s76, s76, 16
s_mul_i32 s77, s76, 18
s_sub_u32 s77, s64, s77
s_mul_i32 s56, s76, 1152
s_add_u32 s57, s56, 1152
s_mov_b32 s63, 0xffff0000""")
    if not sm & 32: A('s_endpgm')
    srd(32, 4, 's57')
    srd(36, 22, 1152)
    A("""v_lshlrev_b32 v5, 5, v0
v_lshlrev_b32 v15, 3, v0
buffer_load_dwordx4 v[16:19], v5, s[32:35], s56 offen{f}
buffer_load_dwordx4 v[20:23], v5, s[32:35], s56 offen offset:16{f}
buffer_load_dwordx4 v[24:27], v5, s[36:39], 0 offen{f}
buffer_load_dwordx4 v[28:31], v5, s[36:39], 0 offen offset:16{f}
s_mov_b32 s58, 0x3f803f80
v_mov_b32 v32, 0
s_waitcnt vmcnt(0)""".format(f=' nt' if xnt else ''))
    for r in range(8):
        A("""v_lshlrev_b32 v34, 16, v{x}
v_and_b32 v35, s63, v{x}
v_lshlrev_b32 v36, 16, v{w}
v_and_b32 v37, s63, v{w}
v_mul_f32 v34, v34, v36
v_mul_f32 v35, v35, v37
v_cvt_pk_bf16_f32 v34, v34, v35
v_dot2_f32_bf16 v32, v34, s58, v32""".format(x=16 + r, w=24 + r))
    A("""s_nop 2
v_add_f32_dpp v32, v32, v32 quad_perm:[1,0,3,2] row_mask:0xf bank_mask:0xf
s_nop 1
v_add_f32_dpp v32, v32, v32 quad_perm:[2,3,0,1] row_mask:0xf bank_mask:0xf
s_nop 1
v_add_f32_dpp v32, v32, v32 row_half_mirror row_mask:0xf bank_mask:0xf
s_nop 1""")
    xsum([32], 34)
    A("""v_cvt_pk_bf16_f32 v32, v32, v32
v_and_b32 v32, s63, v32
v_mul_f32 v32, {nl2e}, v32
v_exp_f32 v32, v32
s_nop 0
v_add_f32 v32, 1.0, v32
v_rcp_f32 v32, v32
s_nop 0
v_cvt_pk_bf16_f32 v32, v32, v32
v_and_b32 v{g}, s63, v32
v_sub_f32 v33, 1.0, v{g}
v_cvt_pk_bf16_f32 v33, v33, v33
v_and_b32 v33, s63, v33
s_lshl_b32 s56, s64, 10
s_add_u32 s56, s56, {fin}
s_barrier
s_barrier""".format(nl2e=hex(NLOG2E), fin=FIN, g=FB + 4))
    poll_tag(['buffer_load_dwordx4 v[%d:%d], v1, s[48:51], s56 offen %s' % (FB, FB + 3, MF)], range(FB, FB + 4), slp, 1 << 19, masked=False)
    stamp(13)
    for r in range(FB, FB + 4): A('v_and_b32 v%d, s59, v%d' % (r, r))
    xsum(list(range(FB, FB + 4)), 40)
    round4(range(FB, FB + 4), 40)
    for r in range(FB, FB + 4): A('v_mul_f32 v%d, v33, v%d' % (r, r))
    round4(range(FB, FB + 4), 40)
    A('s_lshl_b32 s56, s77, 6')
    if ysp: A('v_lshrrev_b32 v13, 3, v0\nv_mul_u32_u24 v13, %d, v13\nv_and_b32 v14, 7, v0\nv_lshl_add_u32 v13, v14, 4, v13' % ysp)
    else: A('v_mov_b32 v13, v1')
    A("""s_lshl_b32 s78, s64, {fsh}
s_add_u32 s78, s78, {yin}
s_add_u32 s77, s78, {half}
s_mul_i32 s79, s76, 1152
s_add_u32 s79, s79, s56""".format(yin=YIN, fsh=7 if ysp else 11, half=8 * ysp if ysp else 1024))
    srd(32, 24, 8 * 1152)
    for _ in range(len(info['cps']) - 1): A('s_barrier')
    if pt == 2:
        for i in range(2): A('buffer_load_dwordx4 v[%d:%d], v1, s[48:51], s78 offen offset:%d sc1' % (16 + 4 * i, 19 + 4 * i, i * 1024))
    if prio: A('s_setprio %d' % prio)
    A('s_barrier')
    if not sm & 64:
        stamp(1)
        A('s_endpgm')
    if pt == 1:
        for i in range(2): A('buffer_load_dwordx4 v[%d:%d], v1, s[48:51], s78 offen offset:%d sc1' % (16 + 4 * i, 19 + 4 * i, i * 1024))
    if b3: A('s_barrier')
    poll_tag(['buffer_load_dwordx4 v[%d:%d], v13, s[48:51], %s offen %s' % (16 + 4 * i, 19 + 4 * i, ('s78', 's77')[i], 'sc0 sc1' if ysc & 2 else TF) for i in range(2)],
             range(16, 24), fslp2, 1 << 21)
    if diag == 1: A('s_memrealtime s[94:95]')
    for r in range(16, 24): A('v_and_b32 v%d, s59, v%d' % (r, r))
    for c in range(4): A('v_add_f32 v%d, v%d, v%d' % (16 + c, 16 + c, 20 + c))
    xsum([16, 17, 18, 19], 20)
    round4([16, 17, 18, 19], 20)
    for c in range(4): A('v_mul_f32 v%d, v%d, v%d' % (16 + c, FB + 4, 16 + c))
    round4([16, 17, 18, 19], 20)
    for c in range(4): A('v_add_f32 v%d, v%d, v%d' % (16 + c, 16 + c, FB + c))
    A("""v_cvt_pk_bf16_f32 v20, v16, v17
v_cvt_pk_bf16_f32 v21, v18, v19
s_mov_b64 exec, 0xff
buffer_store_dwordx2 v[20:21], v15, s[32:35], s79 offen
s_cmp_lg_u32 s64, 0
s_cbranch_scc1 L_noepoch
s_mov_b64 exec, 1
v_mov_b32 v2, s88
v_mov_b32 v3, %d
buffer_store_dword v2, v3, s[48:51], 0 offen sc1
L_noepoch:
s_mov_b64 exec, -1""" % EPOCH)
    if diag == 1: A('s_memrealtime s[96:97]')
    if diag:
        A('s_waitcnt vmcnt(0)')
        stamp(1)
    if diag == 1: A('s_mov_b64 exec, 1\nv_mov_b32 v244, s94\nv_mov_b32 v245, s95\nv_mov_b32 v246, s96\nv_mov_b32 v247, s97\nbuffer_store_dwordx2 v[244:245], v252, s[80:83], 0 offen offset:88\nbuffer_store_dwordx2 v[246:247], v252, s[80:83], 0 offen offset:64\ns_mov_b64 exec, -1')
    A('L_end:\ns_endpgm')

    nacc = 0
    nv = max(RING + D * 4, 224)
    if diag: nv = 256
    assert nv <= 256
    out = HEADER + '; @launch grid=(256,1,1) block=(192,1,1) lds=%d\n' % lds
    out += DOC
    out += '.amdgcn_target "amdgcn-amd-amdhsa--gfx950"\n.text\n.globl %s\n.p2align 8\n.type %s,@function\n' % (KN, KN)
    L = []
    titles = {'entry': 'entry: kernel arguments, role dispatch', 'haq': 'HA: partial q (64 columns x 288 rows of wq, 8 batches)',
              'hbq': 'HB: gather q of this (batch, head) into LDS', 'stream': 'S: side loads, K phase, V phase, publish o',
              'stream2': 'S: V loop bodies with a wider / narrower load window', 'ha2': 'HA: FFN gate / up / down slices',
              'hb2': 'HB: window control, out-projection slice ; HA: final sum'}
    for nm in ('entry', 'haq', 'hbq', 'stream', 'stream2', 'ha2', 'hb2'):
        if nm in secs:
            if nm != 'entry': L.append('; ======== ' + titles[nm] + ' ========')
            L += secs[nm]
    out += '\n'.join(('' if x.endswith(':') or x.startswith(';') else '    ') + x for x in L) + '\n'
    out += '''.section .rodata,"a"
.p2align 6
.amdhsa_kernel %s
  .amdhsa_next_free_vgpr %d
  .amdhsa_next_free_sgpr 102
  .amdhsa_accum_offset %d
  .amdhsa_group_segment_fixed_size 0
  .amdhsa_kernarg_size 104
  .amdhsa_user_sgpr_count 2
  .amdhsa_user_sgpr_kernarg_segment_ptr 1
  .amdhsa_system_sgpr_workgroup_id_x 1
.end_amdhsa_kernel
''' % (KN, nv + nacc, nv)
    return out


if __name__ == '__main__':
    names = []
    for spec in sys.argv[1:]:
        kw = {}
        for p in spec.split(','):
            if not p: continue
            k, v = p.split('=')
            kw[k] = int(v)
        nm = 'k_' + (spec.replace(',', '_').replace('=', '') or 'def') + '.s'
        open(nm, 'w').write(gen(**kw))
        names.append(nm)
    print(' '.join(names))
```

```python
import sys, math, struct

KN = 'gated_mix__mha_block_cached__swiglu_ffn__decode_kernel'

HEADER = '''; Kernarg layout for this problem (104 bytes, ptrs only, base s[0:1]):
'''

DOC = "; ---------------------------------------------------------------------------------------------\n; ---------------------------------------------------------------------------------------------\n"

EPOCH = 0x0
RK = 0x1000
XL = 0xB000
QP = 0x10000
HM = 0x70000
FIN = 0xA0000
PREG = 0xD0000
OREC = 0x100000
YIN = 0x140000
WS_SIZE = 0x200000
L_QW = 0
L_W = 36864
L_SC = 110592
L_Q = 143360
L_CTL = 143616
LDS_BYTES = 143680

def f2u(x):
    return struct.unpack('<I', struct.pack('<f', x))[0]

CSC = f2u(math.log2(math.e) / math.sqrt(128.0))
NLOG2E = f2u(-math.log2(math.e))


def gen(hs=0, n=20, q=2, D=32, w0=24, na=28, nend=0, kend=0, ctl=1, nf=24, ns=18, gA=125, gAs=100, gB=65, gBs=55, pB=45, pC=72, gC=50, gCs=40, pD=90, gD=30, gDs=25, rks=1280, pt=0, ck=1, b0q=35, fslp2=2, b3=2, loc=15, xp=1, dbl=-1, gK=-1, gKs=0, pK=25, qgate=1, dum=0, probe=0, rnd=2, ysp=0, ysc=0, f0=1, early=1, hwo=10, ilv=1, h1nt=1, xnt=0, cnt_=0, snt=0, rm=3, Z=64, zg=4, wa=4, diag=0, spin=1, prio=3, vacc=0, slp=64, qslp=2, b0=0, fb=0,
        sm=127, noproc=0, tslp=0, mnt=1, qnt=1, tnt=0, lds=LDS_BYTES, ww=2, wa2=0, n1=0, n1it=0):
    secs = {}
    cur = [None]
    def sec(name):
        cur[0] = secs.setdefault(name, [])
    def A(s):
        for x in s.split('\n'):
            x = x.strip()
            if x: cur[0].append(x)
    lab = [0]
    def newlab(p):
        lab[0] += 1
        return '%s_%d' % (p, lab[0])
    MF = 'sc1 nt' if mnt else 'sc1'
    QF = 'sc1 nt' if qnt else 'sc1'
    TF = 'sc1 nt' if tnt else 'sc1'
    TAG = 60

    sec('entry')
    A(KN + ':')
    A('s_cmp_ge_u32 s2, 256\ns_cbranch_scc1 L_end')
    if diag: A('s_memrealtime s[90:91]')
    A("""s_load_dwordx16 s[4:19], s[0:1], 0
s_load_dwordx8 s[20:27], s[0:1], 64
s_load_dwordx2 s[28:29], s[0:1], 96
v_lshrrev_b32 v1, 6, v0
v_and_b32 v0, 63, v0
v_readfirstlane_b32 s3, v1
v_lshlrev_b32 v1, 4, v0
s_lshr_b32 s30, s2, 5
s_and_b32 s31, s2, 31
""")
    def common():
        A("""s_load_dword s88, s[28:29], %d
s_mov_b32 s48, s28
s_mov_b32 s49, s29
s_mov_b32 s50, %d
s_mov_b32 s51, 0x20000""" % (EPOCH, WS_SIZE))
    if not early:
        A('s_waitcnt lgkmcnt(0)')
        common()
    A("""s_cmp_eq_u32 s3, 0
s_cbranch_scc1 L_S
s_cmp_eq_u32 s3, 2
s_cbranch_scc1 L_HB""")

    def stamp(slot):
        if not diag: return
        if diag in (4, 5) and slot not in (1, 3): return
        if diag == 6 and slot not in (1, 3, 2, 14, 5, 15): return
        if diag == 7 and slot not in (1, 3): return
        if diag in (1, 6) and slot == 99: return
        if diag == 1 and slot == 15: return
        if diag == 3:
            if hs and slot == hs: A('s_memrealtime s[90:91]\ns_waitcnt lgkmcnt(0)')
            if (slot == 1 and hs in (0, 1)) or (slot == 3 and hs == 3) or (slot == 99 and hs in (2, 12, 14, 4)):
                lp = newlab('L_hold')
                A('%s:\ns_memrealtime s[92:93]\ns_waitcnt lgkmcnt(0)\ns_sub_u32 s92, s92, s90\ns_cmp_lt_u32 s92, 25000\ns_cbranch_scc1 %s' % (lp, lp))
            return
        A("""s_memrealtime s[92:93]
s_add_u32 s80, s28, 0x40000000
s_addc_u32 s81, s29, 0
s_mov_b32 s82, 0x20000
s_mov_b32 s83, 0x20000
s_lshl_b32 s84, s2, 7
s_mov_b64 s[86:87], exec
s_mov_b64 exec, 1
s_waitcnt lgkmcnt(0)
v_mov_b32 v250, s92
v_mov_b32 v251, s93
v_mov_b32 v252, s84
buffer_store_dwordx2 v[250:251], v252, s[80:83], 0 offen offset:%d""" % (slot * 8))
        if slot == 3:
            A("""s_sub_u32 s85, s2, """ + ('0' if f0 else '40') + """
s_cmp_lt_u32 s85, 144
s_cbranch_scc1 L_st3
buffer_store_dwordx2 v[250:251], v252, s[80:83], 0 offen offset:8
L_st3:
s_getreg_b32 s85, hwreg(HW_REG_XCC_ID)
v_mov_b32 v250, s90
v_mov_b32 v251, s91
buffer_store_dwordx2 v[250:251], v252, s[80:83], 0 offen
s_nop 1
v_mov_b32 v250, s85
v_mov_b32 v251, 0
buffer_store_dwordx2 v[250:251], v252, s[80:83], 0 offen offset:48""")
        A('s_mov_b64 exec, s[86:87]')

    def epoch():
        A("""s_waitcnt lgkmcnt(0)
s_mul_i32 s89, s88, 0x9E3779B1
s_add_u32 s89, s89, 0x7F4A7C15
s_add_u32 s88, s88, 1""")
        for e, c in enumerate((0, 0x55, 0xAA, 0x33)):
            A('s_add_u32 s63, s88, %d\ns_and_b32 s63, s63, 0xff\nv_mov_b32 v%d, s63' % (c, TAG + e))
        A('s_mov_b32 s59, 0xffffff00')
    def poll_tag(loads, regs, sleep, bound, masked=True, full=()):
        lp, ld = newlab('L_poll'), newlab('L_pdone')
        A('s_mov_b32 s62, %d\n%s:' % (bound if spin else 1 << 12, lp))
        for x in loads: A(x)
        A('s_waitcnt vmcnt(0)')
        rs = list(regs)
        assert rs[0] % 4 == 0 and rs == list(range(rs[0], rs[0] + len(rs))) and len(rs) % 4 == 0
        A('v_xor_b32 v2, v%d, v60\nv_xor_b32 v3, v%d, v61' % (rs[0], rs[1]))
        for i, r in enumerate(rs[2:]):
            A('v_bitop3_b32 v%d, v%d, v%d, v%d bitop3:0xf6' % (2 + (i & 1), 2 + (i & 1), r, TAG + r % 4))
        A('v_or_b32 v2, v2, v3\nv_and_b32 v2, 0xff, v2')
        for r in full:
            A('v_bitop3_b32 v2, v2, v%d, s89 bitop3:0xf6' % r)
        A("""v_cmp_ne_u32 vcc, 0, v2
s_cbranch_vccz {ld}
{mk}
{sl}
s_sub_u32 s62, s62, 1
s_cbranch_scc0 {lp}
{ld}:
s_mov_b64 exec, -1""".format(lp=lp, ld=ld, sl='s_sleep %d' % sleep if sleep else '', mk='s_mov_b64 exec, vcc' if masked else ''))
    def class_load(vd, va):
        A('''s_getreg_b32 s65, hwreg(HW_REG_XCC_ID)
s_and_b32 s65, s65, 15
s_add_u32 s65, s65, s89
s_and_b32 s64, s2, 7
s_mul_i32 s64, s64, 1280
s_add_u32 s64, s64, {xl}
v_and_b32 v{a}, 31, v0
v_lshlrev_b32 v{a}, 2, v{a}
buffer_load_dword v{d}, v{a}, s[48:51], s64 offen sc1{f}'''.format(xl=XL, a=va, d=vd, f=' nt' if cnt_ else ''))
    def class_test(vd, sd):
        A('v_cmp_ne_u32 vcc, s65, v%d\ns_nop 0\ns_cmp_eq_u64 vcc, 0\ns_cselect_b32 %s, 1, 0' % (vd, sd))
    def srd(sn, ptr, size):
        A('s_mov_b32 s%d, s%d\ns_mov_b32 s%d, s%d\ns_mov_b32 s%d, %s\ns_mov_b32 s%d, 0x20000' % (sn, ptr, sn + 1, ptr + 1, sn + 2, size, sn + 3))
    def trbase(dst, rowstride, colmul, tmp, gm=8):
        A("""v_lshrrev_b32 v{d}, 4, v0
v_mul_u32_u24 v{d}, {gm}, v{d}
v_bfe_u32 v{t}, v0, 2, 2
v_add_u32 v{d}, v{d}, v{t}
v_mul_u32_u24 v{d}, {rs}, v{d}
v_and_b32 v{t}, 3, v0
v_mul_u32_u24 v{t}, {cm}, v{t}
v_add_u32 v{d}, v{d}, v{t}""".format(d=dst, t=tmp, rs=rowstride, cm=colmul, gm=gm))
    def xsum(regs, tmp):
        for r in regs: A('v_add_f32_dpp v%d, v%d, v%d row_ror:8 row_mask:0xf bank_mask:0xf' % (r, r, r))
        for sw in ('v_permlane16_swap_b32', 'v_permlane32_swap_b32'):
            for i, r in enumerate(regs): A('v_mov_b32 v%d, v%d' % (tmp + i, r))
            if len(regs) < 3: A('s_nop 1')
            for i, r in enumerate(regs): A('%s v%d, v%d' % (sw, r, tmp + i))
            for i, r in enumerate(regs): A('v_add_f32 v%d, v%d, v%d' % (r, r, tmp + i))
    def round4(regs, tmp):
        a, b, c, d = regs
        A("""v_cvt_pk_bf16_f32 v{t0}, v{a}, v{b}
v_cvt_pk_bf16_f32 v{t1}, v{c}, v{d}
v_lshlrev_b32 v{a}, 16, v{t0}
v_and_b32 v{b}, s63, v{t0}
v_lshlrev_b32 v{c}, 16, v{t1}
v_and_b32 v{d}, s63, v{t1}""".format(a=a, b=b, c=c, d=d, t0=tmp, t1=tmp + 1))

    vQ = 4
    vMask = 8
    vT0, vU0, vX0 = 12, 14, 2
    vA = 16
    vAcc = 24
    vS0, vS1, vR, vT, vT2, vPK, vM, vMC, vL = 28, 29, 30, 31, 32, 33, 34, 35, 36
    vAddr, vSA = 37, 38
    vKA, vKB, vVA, vVB = 40, 41, 42, 43
    vQM = 44
    RING = 64
    assert zg == 4
    assert D % 16 == 0 and n + q <= D and D % q == 0
    def rr(t):
        b = RING + (t % D) * 4
        return 'v[%d:%d]' % (b, b + 3)
    HALF = 2048
    TOT = 2 * HALF
    sec('stream')
    A('L_S:')
    if early:
        A('s_waitcnt lgkmcnt(0)')
        common()
    A("""s_lshl_b32 s52, s2, 21
s_lshr_b32 s53, s2, 11
s_add_u32 s32, s6, s52
s_addc_u32 s33, s7, s53
s_mov_b32 s34, 0x200000
s_mov_b32 s35, 0x20000
s_add_u32 s36, s8, s52
s_addc_u32 s37, s9, s53
s_mov_b32 s38, 0x200000
s_mov_b32 s39, 0x20000
s_mov_b32 s54, 0
s_mov_b32 s53, 0
v_lshrrev_b32 v2, 4, v0
v_and_b32 v3, 3, v0
v_lshlrev_b32 v3, 4, v3
v_lshl_add_u32 v{QA}, v2, 6, v3
v_bfe_u32 v3, v0, 2, 2
v_lshl_add_u32 v{KA}, v3, 8, v{QA}
v_add_u32 v{KB}, {z}, v{KA}
v_and_b32 v3, 15, v0
v_lshlrev_b32 v3, 4, v3
v_lshl_add_u32 v{VA}, v2, 10, v3
v_add_u32 v{VB}, {z}, v{VA}
v_add_u32 v{QA}, {lq}, v{QA}""".format(QA=vS0, KA=vKA, KB=vKB, VA=vVA, VB=vVB, z=Z * 1024, lq=L_Q))
    st = {'issued': 0, 'landed': -1}
    info = {}
    def issue(t):
        sr, so = ('s[32:35]', 's54') if t < HALF else ('s[36:39]', 's53')
        r = t % (2 * zg)
        if t < HALF: A('buffer_load_dwordx4 %s, v%d, %s, %s offen offset:%d nt' % (rr(t), vKA if r < zg else vKB, sr, so, (r % zg) * 1024))
        else: A('buffer_load_dwordx4 %s, v%d, %s, %s offen offset:%d nt' % (rr(t), vVA if r < zg else vVB, sr, so, (r % zg) * 256))
        if r == 2 * zg - 1:
            A('s_add_u32 s68, %s, %d\ns_xor_b32 s69, s68, %s\ns_and_b32 s69, s69, %d\ns_add_u32 %s, s68, s69' % (so, zg * 1024, so, Z * 1024, so))
        st['issued'] = t + 1
    def wait_landed(t):
        c = st['issued'] - 1 - t
        assert 0 <= c < 63
        if t > st['landed']:
            A('s_waitcnt vmcnt(%d)' % c)
            st['landed'] = t
    def dpp(op, d, a, ctl, bank=0xf):
        A('%s_dpp v%d, v%d, v%d %s row_mask:0xf bank_mask:%s' % (op, d, a, a, ctl, hex(bank)))
    lane_of = lambda j: 4 * (j & 3) + (j >> 2)
    GPB = D // 16
    def sc_off(grp):
        return (grp % GPB) * 256
    def score_round(d, a):
        A("""v_cvt_pk_bf16_f32 v{d}, v{a}, v{a}
v_and_b32 v{d}, s63, v{d}
v_mul_f32 v{d}, s56, v{d}
v_cvt_pk_bf16_f32 v{d}, v{d}, v{d}
v_and_b32 v{d}, s63, v{d}""".format(d=d, a=a))
    def prepA(u):
        a = u % 8
        grp = u // 8
        if a == 0:
            A('s_waitcnt lgkmcnt(0)')
            if rnd == 1:
                score_round(vT, vR)
                A('v_fma_f32 v{T}, v{T}, s55, -v{MC}'.format(T=vT, MC=vMC))
            else:
                A('v_fma_f32 v{T}, v{R}, s55, -v{MC}'.format(T=vT, R=vR, MC=vMC))
            A('v_exp_f32 v{T}, v{T}'.format(T=vT))
            if grp + 1 < HALF // 16:
                if (grp + 1) % GPB == 0: A('v_add_u32 v%d, %d, v%d' % (vSA, GPB * 256, vSA))
                A('ds_read_b32 v%d, v%d offset:%d' % (vR, vSA, sc_off(grp + 1)))
            else:
                A('s_nop 0')
            A("""v_cvt_pk_bf16_f32 v{PK}, v{T}, v{T}
v_add_f32 v{Lr}, v{Lr}, v{T}
s_nop 0""".format(T=vT, PK=vPK, Lr=vL))
        for i in range(2):
            for k in range(4):
                A('v_and_b32_dpp v%d, v%d, v%d row_newbcast:%d row_mask:0xf bank_mask:0xf' % (vA + 4 * i + k, vPK, vMask + k, lane_of(2 * a + i)))
    def finish_l():
        for ctl in ('row_ror:8', 'row_ror:4', 'row_ror:2', 'row_ror:1'):
            dpp('v_add_f32', vL, vL, ctl); A('s_nop 1')
        A("""v_mov_b32 v{T}, v{Lr}
s_nop 1
v_permlane16_swap_b32 v{Lr}, v{T}
v_add_f32 v{Lr}, v{Lr}, v{T}
v_mov_b32 v{T}, v{Lr}
s_nop 1
v_permlane32_swap_b32 v{Lr}, v{T}
v_add_f32 v{Lr}, v{Lr}, v{T}
v_rcp_f32 v{Lr}, v{Lr}""".format(T=vT, Lr=vL))
        if loc & 1: A('ds_read_b32 v%d, v%d offset:8\ns_waitcnt lgkmcnt(0)\nv_readfirstlane_b32 s60, v%d' % (vT2, vT0 + 1, vT2))
    def pad_after_mfma(acc, need=8):
        have = 0
        for x in reversed(cur[0]):
            if x.startswith('v_mfma') and x.split()[1].startswith('v[%d:' % acc): break
            if x.endswith(':'):
                have += 1; break
            have += int(x.split()[1]) + 1 if x.startswith('s_nop') else 1
        if have < need: A('s_nop %d' % (need - have - 1))
    def post(c):
        acc = vA + 4 * (c & 1); a = c % 4
        x = vU0 + (a & 1)
        pad_after_mfma(acc)
        A('v_cndmask_b32 v%d, v%d, v%d, s[70:71]' % (vT0, acc, acc + 1))
        A('v_cndmask_b32 v%d, v%d, v%d, s[70:71]' % (vT0 + 1, acc + 2, acc + 3))
        A('v_cndmask_b32 v%d, v%d, v%d, s[72:73]' % (x, vT0, vT0 + 1))
        if a & 1:
            cc = a >> 1
            dpp('v_add_f32', vU0, vU0, 'quad_perm:[1,0,3,2]')
            A('s_nop 0')
            dpp('v_add_f32', vU0 + 1, vU0 + 1, 'quad_perm:[1,0,3,2]')
            A('v_cndmask_b32 v%d, v%d, v%d, s[70:71]' % (vX0 + cc, vU0, vU0 + 1))
            if cc:
                dpp('v_add_f32', vX0, vX0, 'quad_perm:[2,3,0,1]')
                A('s_nop 0')
                dpp('v_add_f32', vX0 + 1, vX0 + 1, 'quad_perm:[2,3,0,1]')
                grp = c // 4
                A('v_cndmask_b32 v%d, v%d, v%d, s[72:73]' % (vR, vX0, vX0 + 1))
                if rnd == 2: score_round(vR, vR)
                A('v_max_f32 v%d, v%d, v%d' % (vM, vM, vR))
                A('ds_write_b32 v%d, v%d offset:%d' % (vSA, vR, sc_off(grp)))
                if (grp + 1) % GPB == 0 and grp + 1 < HALF // 16: A('v_add_u32 v%d, %d, v%d' % (vSA, GPB * 256, vSA))
    def proc(u):
        t = 2 * u
        if t < HALF:
            if noproc & 1: return
            c = t // 4
            acc = vA + 4 * (c & 1)
            for i in range(2):
                j = (t + i) % 4
                A('v_mfma_f32_16x16x32_bf16 v[%d:%d], v[%d:%d], %s, %s' % (acc, acc + 3, vQM + 4 * j, vQM + 4 * j + 3, rr(t + i), '0' if j == 0 else 'v[%d:%d]' % (acc, acc + 3)))
            if t % 4 == 0 and c > 0: post(c - 1)
            if t + 2 == HALF: post(c)
            if t + 2 == HALF:
                A('v_subrev_u32 v%d, %d, v%d' % (vSA, ((HALF // 16 - 1) // GPB) * GPB * 256, vSA))
                A('ds_read_b32 v%d, v%d' % (vR, vSA))
                A('v_mov_b32 v%d, %d' % (vT0 + 1, L_CTL))
                for ctl in ('row_ror:8', 'row_ror:4', 'row_ror:2', 'row_ror:1'):
                    dpp('v_max_f32', vM, vM, ctl); A('s_nop 1')
                for sw in ('v_permlane16_swap_b32', 'v_permlane32_swap_b32'):
                    A('v_mov_b32 v{T}, v{M}\ns_nop 1\n{sw} v{M}, v{T}\nv_max_f32 v{M}, v{M}, v{T}'.format(T=vT, M=vM, sw=sw))
                if rnd == 1: score_round(vM, vM)
                A('v_mul_f32 v%d, s55, v%d\ns_barrier' % (vMC, vM))
                prepA(0)
        else:
            if noproc & 2: return
            if cur[0][-1].startswith('v_and'): A('s_nop 0')
            A('v_mfma_f32_16x16x32_bf16 v[%d:%d], v[%d:%d], %s, v[%d:%d]' % (vAcc, vAcc + 3, vA, vA + 3, rr(t), vAcc, vAcc + 3))
            A('v_mfma_f32_16x16x32_bf16 v[%d:%d], v[%d:%d], %s, v[%d:%d]' % (vAcc, vAcc + 3, vA + 4, vA + 7, rr(t + 1), vAcc, vAcc + 3))
            uu = u - HALF // 2
            if uu + 1 < HALF // 2: prepA(uu + 1)
            if uu + 1 == HALF // 2 - 8:
                pass
    win = [n]
    def paced_issue(cnt):
        for _ in range(cnt // q):
            t = st['issued']
            if t + q - 1 - win[0] >= 0:
                wait_landed(t + q - 1 - win[0])
            for i in range(q): issue(t + i)
    n0 = (n // q) * q
    def job_off(dst, jreg, rowbytes, bits=0):
        if bits:
            A('''s_and_b32 s68, {j}, {m}
s_lshr_b32 s69, {j}, {b}
s_mul_i32 {d}, s68, {rb}
s_lshl_b32 s69, s69, 7
s_add_u32 {d}, {d}, s69'''.format(j=jreg, d=dst, rb=rowbytes, m=(1 << bits) - 1, b=bits))
            return
        A('''s_mul_i32 s68, {j}, 7282
s_lshr_b32 s68, s68, 16
s_mul_i32 s69, s68, 9
s_sub_u32 s69, {j}, s69
s_mul_i32 {d}, s68, {rb}
s_lshl_b32 s69, s69, 7
s_add_u32 {d}, {d}, s69'''.format(j=jreg, d=dst, rb=rowbytes))
    def side_dma(cnt, sr, so, step, ldsreg, vreg):
        for i in range(cnt):
            A('s_mov_b32 m0, %d\ns_waitcnt vmcnt(%d)\nbuffer_load_dwordx4 %s, %s, %s offen nt lds\ns_add_u32 %s, %s, %s' % (ldsreg + i * 1024, w0 - 1, vreg, sr, so, so, so, step))
    A('''v_lshrrev_b32 v4, 3, v0
v_and_b32 v5, 7, v0
v_lshlrev_b32 v5, 4, v5
v_mul_u32_u24 v6, 1152, v4
v_add_u32 v6, v6, v5
v_mul_u32_u24 v7, 9216, v4
v_add_u32 v7, v7, v5''')
    srd(44, 12, 4096 * 1152)
    A('''s_and_b32 s68, s2, 7
s_bfe_u32 s69, s2, 0x10003
s_lshl_b32 s69, s69, 4
s_add_u32 s68, s68, s69
s_mul_i32 s75, s68, 147456
s_lshr_b32 s69, s2, 4
s_lshl_b32 s69, s69, 7
s_add_u32 s75, s75, s69
s_add_u32 s77, s75, 1179648
s_mov_b32 s78, %d''' % L_QW)
    A('''s_cmp_ge_u32 s2, 184
s_cbranch_scc1 L_S_down
s_cmp_lt_u32 s2, 40
s_cbranch_scc1 L_S_light
s_cmp_lt_u32 s2, 112
s_cselect_b32 s40, s16, s18
s_cselect_b32 s41, s17, s19
s_cselect_b32 s74, 40, 112
s_mov_b32 s42, 5308416
s_mov_b32 s43, 0x20000
s_sub_u32 s74, s2, s74
s_lshr_b32 s74, s74, 3
s_and_b32 s76, s2, 7
s_mul_i32 s76, s76, 9
s_add_u32 s74, s74, s76
s_lshl_b32 s74, s74, 7
s_mov_b32 s76, 73728
s_branch L_S_big
L_S_down:
s_sub_u32 s74, s2, 184''')
    job_off('s74', 's74', 663552, 3 if rm & 2 else 0)
    srd(40, 20, 4608 * 1152)
    A('''s_mov_b32 s76, 9216
v_mov_b32 v7, v6
L_S_big:''')
    if b0: A('s_barrier')
    if sm & 4: side_dma(72, 's[40:43]', 's74', 's76', L_W, 'v7')
    if hwo: A('s_branch L_S_k')
    else: A('s_cmp_ge_u32 s2, 144\ns_cbranch_scc1 L_S_k\ns_branch L_S_wo')
    A('L_S_light:\ns_mov_b32 s78, %d' % L_W)
    if b0: A('s_barrier')
    if hwo: A('s_cmp_ge_u32 s2, 16\ns_cbranch_scc1 L_S_k')
    A('L_S_wo:')
    if sm & 2:
        for i in range(32):
            so = 's75' if i < 16 else 's77'
            A('s_add_u32 m0, s78, %d\ns_waitcnt vmcnt(%d)\nbuffer_load_dwordx4 v6, s[44:47], %s offen nt lds\ns_add_u32 %s, %s, 9216' % (i * 1024, w0 - 1, so, so, so))
    A('L_S_k:')
    if diag == 7: A('s_memrealtime s[94:95]')
    for t in range(n0):
        A('s_waitcnt vmcnt(%d)' % (max(w0, n0) - 1))
        issue(t)
    A("""v_and_b32 v{T}, 1, v0
v_lshlrev_b32 v{T}, 4, v{T}
v_mov_b32 v{T2}, 0xffff
v_lshlrev_b32 v{T2}, v{T}, v{T2}
v_bfe_u32 v{T}, v0, 1, 3""".format(T=vT, T2=vT2))
    for j in range(4):
        A('v_cmp_eq_u32 vcc, %d, v%d\ns_nop 1\nv_cndmask_b32 v%d, 0, v%d, vcc' % (j, vT, vMask + j, vT2))
    epoch()
    A("""v_mov_b32 v{M}, 0xff800000
v_mov_b32 v{Lr}, 0
v_mov_b32 v{a0}, 0
v_mov_b32 v{a1}, 0
v_mov_b32 v{a2}, 0
v_mov_b32 v{a3}, 0
s_mov_b32 s55, {csc}
s_mov_b32 s56, {scl}
s_mov_b32 s70, 0xaaaaaaaa
s_mov_b32 s71, 0xaaaaaaaa
s_mov_b32 s72, 0xcccccccc
s_mov_b32 s73, 0xcccccccc
v_and_b32 v{T}, 15, v0
v_lshlrev_b32 v{T}, 4, v{T}
v_and_b32 v{T2}, 16, v0
v_lshl_add_u32 v{Ad}, v{T}, 1, v{T2}
s_lshl_b32 s57, s31, 3
s_add_u32 s57, s57, s30
s_lshl_b32 s57, s57, 9
s_add_u32 s57, s57, {orec}
s_mov_b32 s63, 0xffff0000
s_mov_b32 s58, {lsc}
v_lshl_add_u32 v{SA}, v0, 2, s58""".format(M=vM, Lr=vL, a0=vAcc, a1=vAcc + 1, a2=vAcc + 2, a3=vAcc + 3, csc=hex(f2u(math.log2(math.e)) if rnd else CSC), scl=hex(f2u(128.0 ** -0.5)), T=vT, T2=vT2,
                              Ad=vAddr, SA=vSA, lsc=L_SC, orec=OREC))
    paced_issue(D - n0 - ((D - n0) & 1))
    if diag == 7: A('s_memrealtime s[96:97]')
    A('s_barrier')
    if diag == 7: A('s_memrealtime s[98:99]')
    A('ds_read_b128 v[%d:%d], v%d\nv_bfe_u32 v%d, v0, 2, 2' % (vQ, vQ + 3, vS0, vT))
    for j in range(4): A('v_cmp_eq_u32 s[%d:%d], %d, v%d' % (76 + 2 * j, 77 + 2 * j, j, vT))
    A('s_waitcnt lgkmcnt(0)')
    for j in range(4):
        for i in range(4): A('v_cndmask_b32 v%d, 0, v%d, s[%d:%d]' % (vQM + 4 * j + i, vQ + i, 76 + 2 * j, 77 + 2 * j))
    A('s_nop 0')
    done = [0]
    extra = [0]
    def do_proc():
        u = done[0]
        wait_landed(2 * u + 1)
        proc(u)
        done[0] += 1
    if not na: na = n0
    assert na >= n0 and (na - n0) % 2 == 0 and na + 2 <= D and nend <= na
    target_ahead = 2 + na
    k1 = n0 // 2 if D > target_ahead else 0
    for _ in range(k1):
        do_proc(); paced_issue(2)
    while st['issued'] - 2 * done[0] > target_ahead - 2:
        if st['issued'] - 2 * done[0] >= target_ahead + 2:
            do_proc(); do_proc(); paced_issue(2)
        else:
            do_proc()
    def steady():
        paced_issue(2); do_proc()
    def loop(name, limit):
        while (2 * done[0]) % D != 0: steady()
        niter = (limit - st['issued']) // D
        assert niter >= 2
        kc = ctl and gK >= 0
        info['cntK'] = niter - niter * pK // 100
        info['nK'] = niter
        A('s_mov_b32 s58, %d' % niter)
        if kc: A('v_mov_b32 v%d, %d' % (vS1, L_CTL))
        snap = (dict(st), done[0])
        for vi, (nm, w) in enumerate([(name, n)] + ([(name + 'f', nf), (name + 's', ns)] if kc else [])):
            st.update(snap[0]); done[0] = snap[1]
            st['landed'] = 2 * done[0] - 1
            win[0] = w
            if vi: sec('stream2')
            A(nm + ':')
            if kc: A('ds_read_b32 v%d, v%d' % (vT2, vS1))
            for _ in range(D // 2): steady()
            if vi: A('s_branch L_Kdisp')
        win[0] = n
        sec('stream')
        A("""L_Kdisp:
s_sub_u32 s58, s58, 1
s_cmp_eq_u32 s58, %d
s_cbranch_scc1 L_midC
L_midCback:""" % info['cntK'])
        if kc:
            A("""s_waitcnt lgkmcnt(0)
v_readfirstlane_b32 s60, v{c}
s_cmp_eq_u32 s58, 0
s_cbranch_scc1 L_Kexit
s_lshr_b32 s61, s60, 2
s_cmp_gt_u32 s58, s61
s_cselect_b32 s60, s60, 0
s_bitcmp1_b32 s60, 0
s_cbranch_scc1 {nm}f
s_bitcmp1_b32 s60, 1
s_cbranch_scc1 {nm}s
s_branch {nm}
L_Kexit:
v_mov_b32 v{c}, 0
ds_write_b32 v{a}, v{c}""".format(c=vT2, nm=name, a=vS1))
        else:
            A('s_cmp_lg_u32 s58, 0\ns_cbranch_scc1 %s' % name)
        st['issued'] += (niter - 1) * D
        done[0] += (niter - 1) * (D // 2)
        st['landed'] = 2 * done[0] - 1
    loop('L_loopK', HALF)
    while 2 * done[0] < HALF or (2 * done[0] - HALF) % D != 0: steady()
    assert HALF % D == 0 or True
    loop2_base = done[0]
    niter = (TOT - D - st['issued']) // D
    nit2 = kend // D if nend else 0
    niter -= nit2
    cps = [niter - niter * p // 100 for p in (pB, pC, pD) if p]
    info['cntA'], info['cps'] = niter, cps
    A('s_mov_b32 s58, %d\ns_mov_b32 s75, %d\ns_and_b32 s74, s75, 0xff' % (niter, sum(c << (8 * i) for i, c in enumerate(cps)) | (0xff << (8 * len(cps))) & 0xffffffff))
    variants = [('L_loopV', n)] + ([('L_loopVf', nf), ('L_loopVs', ns)] if ctl else [])
    assert not ctl or nf <= na
    snap = (dict(st), done[0])
    for vi, (name, w) in enumerate(variants):
        st.update(snap[0]); done[0] = snap[1]
        st['landed'] = 2 * done[0] - 1
        win[0] = w
        if vi: sec('stream2')
        A(name + ':')
        if ctl: A('ds_read_b32 v%d, v%d' % (vT2, vT0 + 1))
        for _ in range(D // 2): steady()
        if vi: A('s_branch L_Vdisp')
    win[0] = n
    sec('stream')
    A("""L_Vdisp:
s_sub_u32 s58, s58, 1
s_cmp_eq_u32 s58, s74
s_cbranch_scc1 L_midB
L_midBback:""")
    if ctl:
        A("""v_readfirstlane_b32 s60, v{c}
s_cmp_eq_u32 s58, 0
s_cbranch_scc1 L_Vexit
s_lshr_b32 s61, s60, 2
s_cmp_gt_u32 s58, s61
s_cselect_b32 s60, s60, 0
s_bitcmp1_b32 s60, 0
s_cbranch_scc1 L_loopVf
s_bitcmp1_b32 s60, 1
s_cbranch_scc1 L_loopVs
s_branch L_loopV
L_Vexit:""".format(c=vT2))
    else:
        A('s_cmp_lg_u32 s58, 0\ns_cbranch_scc1 L_loopV')
    st['issued'] += (niter - 1) * D
    st['landed'] += (niter - 1) * D
    done[0] += (niter - 1) * (D // 2)
    st['landed'] = 2 * done[0] - 1
    if nend: win[0] = nend
    if nit2:
        st['landed'] = 2 * done[0] - 1
        A('s_mov_b32 s58, %d\nL_loopV2:' % nit2)
        for _ in range(D // 2): steady()
        A('s_sub_u32 s58, s58, 1\ns_cmp_lg_u32 s58, 0\ns_cbranch_scc1 L_loopV2')
        st['issued'] += (nit2 - 1) * D
        st['landed'] += (nit2 - 1) * D
        done[0] += (nit2 - 1) * (D // 2)
    while st['issued'] < TOT: steady()
    ml_done = False
    while done[0] < TOT // 2:
        if not ml_done and done[0] + 1 >= TOT // 2 - 8 + 1:
            finish_l(); ml_done = True
        do_proc()
    A("""s_mov_b32 exec_hi, 0
s_cmp_eq_u32 s60, 1
s_nop 5
v_mul_f32 v4, v{a0}, v{Lr}
v_mul_f32 v5, v{a1}, v{Lr}
v_mul_f32 v6, v{a2}, v{Lr}
v_mul_f32 v7, v{a3}, v{Lr}
v_cvt_pk_bf16_f32 v2, v4, v5
v_cvt_pk_bf16_f32 v3, v6, v7
v_lshl_or_b32 v4, v2, 16, v60
v_and_or_b32 v5, v2, s63, v61
v_lshl_or_b32 v6, v3, 16, v62
v_and_or_b32 v7, v3, s63, v63
{st}
s_barrier""".format(st=('s_cbranch_scc1 L_oloc\nbuffer_store_dwordx4 v[4:7], v%d, s[48:51], s57 offen sc1\ns_branch L_odone\nL_oloc:\nbuffer_store_dwordx4 v[4:7], v%d, s[48:51], s57 offen\nL_odone:' % (vAddr, vAddr))
                 if loc & 1 else 'buffer_store_dwordx4 v[4:7], v%d, s[48:51], s57 offen %s' % (vAddr, 'sc1' if dbl < 0 else ''), a0=vAcc, a1=vAcc + 1, a2=vAcc + 2, a3=vAcc + 3, Ad=vAddr, Lr=vL))
    if diag:
        A('s_mov_b64 exec, -1')
        stamp(3)
        if diag == 7: A('s_mov_b64 exec, 1\nv_mov_b32 v244, s94\nv_mov_b32 v245, s96\nv_mov_b32 v246, s98\nv_mov_b32 v247, s100\nbuffer_store_dwordx4 v[244:247], v252, s[80:83], 0 offen offset:64\ns_mov_b64 exec, -1')
        A('s_mov_b32 exec_hi, 0')
    if dbl >= 0:
        A('s_waitcnt vmcnt(0)')
        if dbl: A('s_sleep %d' % dbl)
        A('buffer_store_dwordx4 v[4:7], v%d, s[48:51], s57 offen sc1' % vAddr)
    A('s_endpgm')
    A('L_midB:' + ('\ns_memrealtime s[94:95]' if diag == 5 else '') + '\ns_barrier\ns_lshr_b32 s75, s75, 8\ns_and_b32 s74, s75, 0xff\ns_branch L_midBback')
    A('L_midC:' + ('\ns_memrealtime s[100:101]' if diag == 7 else '') + '\ns_barrier\ns_branch L_midCback')

    XF = 72
    AC = 16
    AC2 = 32
    FR = 144
    PUB = 64
    def ha_setup1():
        srd(36, 4, 9216)
        A("""v_and_b32 v5, 7, v0
v_mul_u32_u24 v9, 1152, v5
v_lshrrev_b32 v8, 4, v0
v_lshl_add_u32 v9, v8, 4, v9""")
    def ha_setup2():
        trbase(6, 128, 16, 10)
        A("""v_and_b32 v10, 8, v0
v_lshlrev_b32 v12, 1, v10
v_lshl_add_u32 v12, v8, 5, v12
v_cmp_ne_u32 s[66:67], 0, v10""")
        epoch()
    def wdma(ldsoff, step, sr='s[32:35]', so='s54'):
        A('s_mov_b32 m0, %d\ns_nop 0\nbuffer_load_dwordx4 v4, %s, %s offen nt lds\ns_add_u32 %s, %s, %s' % (ldsoff, sr, so, so, so, step))
    def w_reads(ks, base, koff, hfs=512):
        b = FR + (ks % 2) * 16
        for nt in range(4):
            for hf in range(2):
                off = koff * 4096 + hf * hfs + (nt >> 1) * 64 + (nt & 1) * 8
                r = b + nt * 4 + hf * 2
                A('ds_read_b64_tr_b16 v[%d:%d], v%d offset:%d' % (r, r + 1, base, off))
    def w_mfma(ks, acc, xreg, first):
        b = FR + (ks % 2) * 16
        for nt in range(4):
            A('v_mfma_f32_16x16x32_bf16 v[%d:%d], v[%d:%d], v[%d:%d], %s' % (acc + nt * 4, acc + nt * 4 + 3, b + nt * 4, b + 3 + nt * 4, xreg, xreg + 3,
              '0' if first else 'v[%d:%d]' % (acc + nt * 4, acc + nt * 4 + 3)))
    def select8(dst, acc):
        for i in range(2):
            for e in range(4):
                A('v_cndmask_b32 v%d, v%d, v%d, s[66:67]' % (dst + 4 * i + e, acc + 8 * i + e, acc + 8 * i + 4 + e))
    def publish(linestride, local=False):
        if local:
            l1, l2 = newlab('L_ploc'), newlab('L_pdn')
            A('s_cmp_eq_u32 s64, 1\ns_cbranch_scc1 %s' % l1)
        for i in range(2):
            A('buffer_store_dwordx4 v[%d:%d], v11, s[48:51], s57 offen offset:%d sc1%s' % (PUB + 4 * i, PUB + 3 + 4 * i, i * linestride, ' nt' if snt & 1 else ''))
        if local:
            A('s_branch %s\n%s:' % (l2, l1))
            for i in range(2):
                A('buffer_store_dwordx4 v[%d:%d], v11, s[48:51], s57 offen offset:%d%s' % (PUB + 4 * i, PUB + 3 + 4 * i, i * linestride, ' nt' if snt & 4 else ''))
            A(l2 + ':')
    def publish_f32(linestride, local=False):
        A('s_nop 6')
        select8(PUB, AC)
        for i in range(8): A('v_bfi_b32 v%d, s59, v%d, v%d' % (PUB + i, PUB + i, TAG + i % 4))
        publish(linestride, local)

    sec('haq')
    A('L_HA:')
    if prio: A('s_setprio %d' % prio)
    if early:
        A('s_sub_u32 s52, s2, 16\ns_cmp_lt_u32 s52, 128\ns_cbranch_scc0 L_HA_q')
        if b0: A('s_barrier')
        A('s_branch L_HA_noq\nL_HA_q:\ns_waitcnt lgkmcnt(0)')
        common()
    else:
        A('s_sub_u32 s52, s2, 16\ns_cmp_lt_u32 s52, 128\ns_cbranch_scc1 L_HA_noq')
    srd(32, 10, 576 * 8192)
    ha_setup1()
    A("""s_lshr_b32 s52, s2, 3
s_and_b32 s52, s52, 15
s_and_b32 s53, s52, 1
s_bfe_u32 s54, s52, 0x10001
s_lshr_b32 s52, s52, 2
s_lshl_b32 s52, s52, 3
s_and_b32 s55, s2, 7
s_add_u32 s52, s52, s55
s_lshl_b32 s52, s52, 1
s_add_u32 s52, s52, s54
s_mul_i32 s54, s53, 2359296
s_lshl_b32 s55, s52, 7
s_add_u32 s54, s54, s55
s_mul_i32 s56, s53, 576
v_lshrrev_b32 v4, 3, v0
v_lshlrev_b32 v4, 13, v4
v_lshl_add_u32 v4, v5, 4, v4""")
    for ks in range(9):
        A('buffer_load_dwordx4 v[%d:%d], v9, s[36:39], s56 offen offset:%d%s' % (XF + 4 * ks, XF + 4 * ks + 3, ks * 64, ' nt' if xnt else ''))
    for i in range(36):
        wdma(L_QW + i * 1024, '65536')
        if b0 and i == b0q: A('s_barrier')
    ha_setup2()
    A("""v_lshlrev_b32 v11, 15, v5
v_add_u32 v11, v11, v12
s_lshl_b32 s57, s52, 1
s_add_u32 s57, s57, s53
s_lshl_b32 s57, s57, 8
s_add_u32 s57, s57, %d""" % QP)
    xq = 1 if loc & 2 else 0
    if xq: class_load(58, 59)
    A('s_waitcnt vmcnt(%d)' % (32 + xq))
    w_reads(0, 6, 0)
    for ks in range(9):
        if ks + 1 < 9:
            A('s_waitcnt vmcnt(%d)' % (28 - 4 * ks + xq))
            w_reads(ks + 1, 6, ks + 1)
            A('s_waitcnt lgkmcnt(8)')
        else:
            A('s_waitcnt lgkmcnt(0)')
        w_mfma(ks, AC, XF + 4 * ks, ks == 0)
    if xq:
        A('s_waitcnt vmcnt(0)')
        class_test(58, 's64')
    publish_f32(128, bool(xq))
    if qgate: A('v_mov_b32 v2, %d\nv_mov_b32 v3, 1\nds_write_b32 v2, v3' % (L_CTL + 4))
    stamp(5)
    if diag == 6: A('s_mov_b64 exec, 1\nv_mov_b32 v3, s64\nbuffer_store_dword v3, v252, s[80:83], 0 offen offset:60\ns_mov_b64 exec, -1')
    A('s_branch L_HA2')

    sec('ha2')
    def xloads():
        for ks in range(18):
            if ks >= wa: A('s_waitcnt vmcnt(%d)' % (wa - 1))
            A('buffer_load_dwordx4 v[%d:%d], v9, s[36:39], 0 offen offset:%d%s' % (XF + 4 * ks, XF + 4 * ks + 3, ks * 64, ' nt' if xnt else ''))
    A('L_HA_noq:')
    if early:
        A('s_waitcnt lgkmcnt(0)')
        common()
    ha_setup1()
    if b0 and not early: A('s_barrier')
    if hwo and sm & 2:
        srd(44, 12, 4096 * 1152)
        A("""v_lshrrev_b32 v4, 3, v0
v_mul_u32_u24 v4, 1152, v4
v_lshl_add_u32 v4, v5, 4, v4
s_and_b32 s68, s2, 7
s_bfe_u32 s69, s2, 0x10003
s_lshl_b32 s69, s69, 4
s_add_u32 s68, s68, s69
s_mul_i32 s75, s68, 147456
s_lshr_b32 s69, s2, 4
s_lshl_b32 s69, s69, 7
s_add_u32 s75, s75, s69
s_add_u32 s77, s75, 1179648
s_cmp_lt_u32 s2, 40
s_cselect_b32 s78, %d, %d""" % (L_W, L_QW))
        for i in range(32):
            so = 's75' if i < 16 else 's77'
            A('s_add_u32 m0, s78, %d\ns_waitcnt vmcnt(%d)\nbuffer_load_dwordx4 v4, s[44:47], %s offen nt lds\ns_add_u32 %s, %s, 9216' % (i * 1024, hwo - 1, so, so, so))
    ha_setup2()
    A("""s_waitcnt vmcnt(0)
s_branch L_HA2
L_HA_fin:
s_barrier
s_branch L_FIN
L_HA2:
s_setprio 0
s_barrier""")
    if not sm & 8: A('s_endpgm')
    A("""s_cmp_ge_u32 s2, 184
s_cbranch_scc1 L_FFN2
s_cmp_lt_u32 s2, 40
s_cbranch_scc1 """ + ('L_HA_fin' if f0 else 'L_end'))
    xloads()
    A('L_FFN1x:')
    A("""v_add_u32 v6, {lw}, v6
v_add_u32 v7, 36864, v6
v_mul_u32_u24 v11, 18432, v5
v_add_u32 v11, v11, v12
s_cmp_lt_u32 s2, 112
s_cselect_b32 s52, 40, 112
s_sub_u32 s52, s2, s52
s_lshr_b32 s52, s52, 3
s_and_b32 s53, s2, 7
s_mul_i32 s53, s53, 9
s_add_u32 s52, s52, s53
s_lshl_b32 s52, s52, 8
s_add_u32 s57, s52, {preg}
v_mov_b32 v13, {lf}
s_waitcnt vmcnt(0)""".format(lw=L_W, preg=PREG, lf=L_CTL + 8))
    w_reads(0, 6, 0)
    for ks in range(18):
        if ks + 1 < 18:
            w_reads(ks + 1, 6 if ks + 1 < 9 else 7, (ks + 1) % 9)
            A('s_waitcnt lgkmcnt(8)')
        else:
            A('s_waitcnt lgkmcnt(0)')
        w_mfma(ks, AC, XF + 4 * ks, ks == 0)
    A('s_cmp_ge_u32 s2, 112\ns_cbranch_scc1 L_UP')
    A('ds_read_b32 v3, v13\ns_waitcnt lgkmcnt(0)\nv_readfirstlane_b32 s64, v3')
    publish_f32(128, bool(loc & 4))
    stamp(9)
    A('s_barrier\ns_branch L_FIN')
    A("""L_UP:
s_mov_b32 s58, {nl}
s_mov_b32 s63, 0xffff0000
s_nop 3""".format(nl=hex(NLOG2E)))
    select8(PUB, AC)
    for i in range(2): round4([PUB + 4 * i + e for e in range(4)], 56)
    A('s_barrier')
    poll_tag(['buffer_load_dwordx4 v[%d:%d], v11, s[48:51], s57 offen offset:%d %s' % (48 + 4 * i, 51 + 4 * i, i * 128, MF) for i in range(2)],
             range(48, 56), slp, 1 << 19, masked=False)
    for e in range(8): A('v_and_b32 v%d, s59, v%d' % (48 + e, 48 + e))
    for i in range(2): round4([48 + 4 * i + e for e in range(4)], 56)
    for e in range(8): A('v_mul_f32 v%d, s58, v%d' % (16 + e, 48 + e))
    for e in range(8): A('v_exp_f32 v%d, v%d' % (16 + e, 16 + e))
    for e in range(8): A('v_add_f32 v%d, 1.0, v%d' % (16 + e, 16 + e))
    for e in range(8): A('v_rcp_f32 v%d, v%d' % (16 + e, 16 + e))
    for e in range(8): A('v_mul_f32 v%d, v%d, v%d' % (48 + e, 48 + e, 16 + e))
    for i in range(2): round4([48 + 4 * i + e for e in range(4)], 56)
    for e in range(8): A('v_mul_f32 v%d, v%d, v%d' % (PUB + e, PUB + e, 48 + e))
    for i in range(2): round4([PUB + 4 * i + e for e in range(4)], 56)
    for e in range(8): A('v_or_b32 v%d, v%d, v%d' % (PUB + e, PUB + e, TAG + e % 4))
    A('ds_read_b32 v3, v13\ns_add_u32 s57, s52, %d\ns_waitcnt lgkmcnt(0)\nv_readfirstlane_b32 s64, v3' % HM)
    publish(128, bool(loc & 8))
    stamp(9)
    if f0: A('s_cmp_ge_u32 s2, 144\ns_cbranch_scc1 L_end')
    A('s_branch L_FIN')

    A('L_FFN2:')
    trbase(6, 128, 16, 10, 4)
    if rm & 2: A('s_sub_u32 s53, s2, 184\ns_and_b32 s52, s53, 7\ns_lshr_b32 s53, s53, 3')
    else: A('s_sub_u32 s53, s2, 184\ns_mul_i32 s52, s53, 7282\ns_lshr_b32 s52, s52, 16\ns_mul_i32 s54, s52, 9\ns_sub_u32 s53, s53, s54')
    A("""v_add_u32 v6, {lw}, v6
v_add_u32 v7, 36864, v6
v_mul_u32_u24 v9, 18432, v5
v_lshl_add_u32 v9, v8, 4, v9
v_and_b32 v10, 8, v0
v_lshl_add_u32 v9, v10, 3, v9
s_mul_i32 s56, s52, 2304
s_add_u32 s56, s56, {hm}
s_mov_b32 s58, 0x07060302
v_mul_u32_u24 v11, 18432, v5
v_add_u32 v11, v11, v12
s_lshl_b32 s57, s53, 11
s_lshl_b32 s63, s52, 7
s_add_u32 s57, s57, s63
s_add_u32 s57, s57, {fin}
s_barrier
s_barrier""".format(lw=L_W, hm=HM, fin=FIN))
    def pack_frags(raw, cnt, sel):
        for k in range(cnt):
            r = raw + 4 * k
            A('v_perm_b32 v%d, v%d, v%d, %s\nv_perm_b32 v%d, v%d, v%d, %s' % (r, r + 1, r, sel, r + 1, r + 3, r + 2, sel))
        for k in range(cnt):
            r = raw + 4 * k
            for t in range(2):
                A('v_mov_b32_dpp v%d, v%d row_ror:8 row_mask:0xf bank_mask:0xf' % (r + 2 + t, r + t))
    def spread8(acc):
        for i in range(2):
            for e in range(4):
                A('v_mov_b32_dpp v%d, v%d row_ror:8 row_mask:0xf bank_mask:0xc' % (acc + 8 * i + e, acc + 8 * i + 4 + e))
    poll_tag(['buffer_load_dwordx4 v[%d:%d], v9, s[48:51], s56 offen offset:%d %s' % (XF + 4 * k, XF + 4 * k + 3, k * 128, MF) for k in range(18)],
             range(XF, XF + 72), slp, 1 << 19)
    pack_frags(XF, 18, 's58')
    w_reads(0, 6, 0, 2048)
    for k in range(18):
        if k + 1 < 18:
            w_reads(k + 1, 6 if k + 1 < 9 else 7, (k + 1) % 9, 2048)
            A('s_waitcnt lgkmcnt(8)')
        else:
            A('s_waitcnt lgkmcnt(0)')
        w_mfma(k, AC, XF + 4 * k, k == 0)
    A('s_nop 7')
    spread8(AC)
    for i in range(2):
        for e in range(4): A('v_bfi_b32 v%d, s59, v%d, v%d' % (PUB + 4 * i + e, AC + 8 * i + e, TAG + e))
    publish(1024)
    stamp(9)
    A('s_endpgm')

    sec('hbq')
    A('L_HB:')
    if prio: A('s_setprio %d' % prio)
    if early:
        if qgate: A('v_mov_b32 v2, %d\nv_mov_b32 v3, 0\nds_write_b32 v2, v3' % (L_CTL + 4))
        A('s_waitcnt lgkmcnt(0)')
        if b0: A('s_sub_u32 s60, s2, 16\ns_cmp_lt_u32 s60, 128\ns_cbranch_scc0 L_HB_a\ns_barrier\nL_HB_a:')
        common()
    A("""v_bfe_u32 v6, v0, 3, 1
v_lshlrev_b32 v6, 9, v6
v_bfe_u32 v7, v0, 4, 1
v_lshl_add_u32 v6, v7, 8, v6
v_and_b32 v5, 7, v0
v_lshl_add_u32 v6, v5, 5, v6
v_lshrrev_b32 v7, 5, v0
v_lshl_add_u32 v6, v7, 4, v6
s_lshl_b32 s56, s30, 6
s_lshl_b32 s57, s31, 1
s_add_u32 s56, s56, s57
s_lshl_b32 s56, s56, 9
s_add_u32 s56, s56, {qp}
v_and_b32 v5, 15, v0
v_lshlrev_b32 v5, 4, v5
v_lshl_add_u32 v5, v7, 3, v5
v_add_u32 v4, {lq}, v5""".format(qp=QP, lq=L_Q))
    if qgate and not early: A('v_mov_b32 v2, %d\nv_mov_b32 v3, 0\nds_write_b32 v2, v3' % (L_CTL + 4))
    epoch()
    if loc:
        A("""s_getreg_b32 s65, hwreg(HW_REG_XCC_ID)
s_and_b32 s65, s65, 15
s_add_u32 s65, s65, s89
s_and_b32 s64, s2, 7
s_mul_i32 s64, s64, 1280
s_lshr_b32 s63, s2, 3
s_lshl_b32 s63, s63, 2
s_add_u32 s64, s64, s63
s_add_u32 s64, s64, {xl}
v_mov_b32 v12, 0
v_mov_b32 v13, s65
s_mov_b64 exec, 1
buffer_store_dword v13, v12, s[48:51], s64 offen {fl}
s_mov_b64 exec, -1""".format(xl=XL, fl='' if xp else 'sc1'))
    if b0 and not early: A('s_barrier')
    if b0 and early: A('s_cmp_lt_u32 s60, 128\ns_cbranch_scc1 L_HB_b\ns_barrier\nL_HB_b:')
    if qgate:
        A("""s_sub_u32 s62, s2, 16
s_cmp_lt_u32 s62, 128
s_cbranch_scc1 L_qg3
s_mov_b32 s61, 4096
L_qg:
s_sub_u32 s61, s61, 1
s_cbranch_scc1 L_qg3
s_sleep 1
ds_read_b32 v3, v2
s_waitcnt lgkmcnt(0)
v_readfirstlane_b32 s62, v3
s_cmp_eq_u32 s62, 0
s_cbranch_scc1 L_qg
L_qg3:""")
    poll_tag(['buffer_load_dwordx4 v[16:19], v6, s[48:51], s56 offen %s' % QF], range(16, 20), qslp, 1 << 21, masked=False)
    stamp(12)
    A('v_mov_b32 v2, %d\nv_mov_b32 v3, 0\nds_write_b32 v2, v3' % (L_CTL + 8))
    for i in range(4): A('v_and_b32 v%d, s59, v%d' % (32 + i, 16 + i))
    for i in range(4): A('v_mov_b32 v%d, v%d' % (40 + i, 32 + i))
    for i in range(4): A('v_permlane16_swap_b32 v%d, v%d' % (32 + i, 40 + i))
    for i in range(4): A('v_add_f32 v%d, v%d, v%d' % (32 + i, 32 + i, 40 + i))
    for i in range(2): A('v_cvt_pk_bf16_f32 v%d, v%d, v%d' % (8 + i, 32 + 2 * i, 33 + 2 * i))
    if ctl: A('v_mov_b32 v2, %d\nv_mov_b32 v3, 0\nds_write_b32 v2, v3' % L_CTL)
    A("""ds_write_b64 v4, v[8:9]
s_waitcnt lgkmcnt(0)
s_barrier
s_branch L_HB2""")
    sec('hb2')
    A('L_HB2:\ns_setprio 0')
    if probe:
        A('''s_mov_b32 s84, s28
s_mov_b32 s85, s29
s_mov_b32 s86, 0x80000000
s_mov_b32 s87, 0x20000
s_mul_i32 s40, s2, %d
s_add_u32 s40, s40, 0x300000
buffer_load_dwordx4 v[16:19], v1, s[84:87], s40 offen nt
s_load_dword s41, s[28:29], 0xF8000
s_waitcnt vmcnt(0) lgkmcnt(0)
v_xor_b32 v20, v16, v17
v_xor_b32 v21, v16, v18
v_xor_b32 v22, v16, v19
%s
v_and_b32 v20, 0xff, v20
v_cmp_eq_u32 s[42:43], 0, v20
v_xor_b32 v21, s41, v16
v_and_b32 v21, 0xff, v21
v_cmp_ne_u32 vcc, 0, v21
s_nop 1
s_and_b64 s[42:43], s[42:43], vcc
s_bcnt1_i32_b64 s94, s[42:43]''' % (0x7f0000 if probe & 1 else 4096, 'v_or3_b32 v20, v20, v21, v22' if probe & 2 else ''))
    stamp(2)
    if loc:
        class_load(14, 15)
        A('s_waitcnt vmcnt(0)')
        class_test(14, 's64')
        A('v_mov_b32 v2, %d\nv_mov_b32 v3, s64\nds_write_b32 v2, v3' % (L_CTL + 8))
        if diag == 6: A('s_mov_b64 exec, 1\nbuffer_store_dword v3, v252, s[80:83], 0 offen offset:56\ns_mov_b64 exec, -1')
    if ck == 1:
        A('''s_cmp_ge_u32 s2, 32
s_cbranch_scc1 L_nozero
s_mul_i32 s40, s2, %d
s_add_u32 s40, s40, %d
v_mov_b32 v2, 0
s_mov_b64 exec, 1
buffer_store_dword v2, v2, s[48:51], s40 offen sc1
s_mov_b64 exec, -1
L_nozero:''' % (rks, RK))
    WF = 64
    OF = 192
    FB = 164
    YA = 44
    A("""v_lshrrev_b32 v8, 4, v0
v_and_b32 v11, 8, v0
v_lshlrev_b32 v11, 3, v11
v_lshl_add_u32 v11, v8, 4, v11
v_and_b32 v10, 7, v0
v_lshl_add_u32 v12, v10, 9, v11
v_mul_u32_u24 v14, {bs}, v10
v_add_u32 v14, v14, v11
s_and_b32 s68, s2, 7
s_bfe_u32 s69, s2, 0x10003
s_lshl_b32 s69, s69, 4
s_add_u32 s68, s68, s69
s_lshl_b32 s72, s68, 12
s_add_u32 s72, s72, {orec}
s_add_u32 s73, s72, 32768
s_lshr_b32 s74, s2, 4
s_lshl_b32 s74, s74, {csh}
s_and_b32 s75, s2, 15
s_mul_i32 s75, s75, {hps}
s_add_u32 s74, s74, s75
s_add_u32 s74, s74, {yin}
s_mov_b32 s71, 0x07060302
""".format(orec=OREC, bs=18 * (128 if ysp else 2048), yin=YIN, csh=8 if ysp else 12, hps=ysp or 128))
    A("""s_cmp_ge_u32 s2, 144
s_cbranch_scc1 L_HB3
s_cmp_lt_u32 s2, 40
s_cselect_b32 s65, {lw}, {lqw}""".format(lw=L_W, lqw=L_QW).replace(', 0', ', 0'))
    trbase(6, 128, 8, 7, 4)
    A('v_add_u32 v6, s65, v6')
    for nt in range(4):
        for ks in range(8):
            for hf in range(2):
                r = WF + (nt * 8 + ks) * 4 + hf * 2
                A('ds_read_b64_tr_b16 v[%d:%d], v6 offset:%d' % (r, r + 1, ks * 4096 + hf * 2048 + nt * 32))
            if ks % 4 == 3: A('s_waitcnt lgkmcnt(0)')
    A('L_HB3:\ns_barrier')
    def checkpoint(k, cnt, gf, gs):
        if not ctl or gf < 0: return
        lab_ = newlab('L_nock')
        core = '''s_and_b32 s41, s2, 7
s_lshr_b32 s42, s2, 6
s_lshl_b32 s42, s42, 3
s_add_u32 s41, s41, s42
v_lshlrev_b32 v2, 2, v0
v_mov_b32 v3, s89
s_lshl_b64 s[42:43], 1, s41
s_mov_b32 exec_hi, 0
buffer_load_dword v4, v2, s[48:51], s40 offen sc1
s_mov_b64 exec, s[42:43]
buffer_store_dword v3, v2, s[48:51], s40 offen sc1
s_mov_b32 exec_lo, -1
s_waitcnt vmcnt(1)
v_cmp_eq_u32 vcc, s89, v4
s_mov_b64 exec, -1
s_mov_b32 s41, {gf}
s_mov_b32 s42, {gs}
s_bcnt1_i32_b32 s40, vcc_lo
''' if ck == 0 else '''s_add_u32 s42, s28, s40
s_addc_u32 s43, s29, 0
s_mov_b32 s40, 1
s_atomic_add s40, s[42:43], 0 glc
s_waitcnt lgkmcnt(0)''' + ('''
s_mov_b32 s41, 1
s_atomic_add s41, s[42:43], 256 glc
s_waitcnt lgkmcnt(0)''' if dum else '') + '''
s_min_u32 s40, s40, 31
s_mov_b32 s41, {gf}
s_mov_b32 s42, {gs}
''' if ck == 1 else '''s_mov_b32 s40, 16
s_mov_b32 s41, {gf}
s_mov_b32 s42, {gs}
'''
        A("""s_bfe_u32 s40, s2, 0x30003
s_mul_i32 s40, s40, {rs}
s_add_u32 s40, s40, {rk}
{core}v_cvt_f32_u32 v2, s40
v_mul_f32 v2, {r16}, v2
v_add_f32 v2, {b0}, v2
v_mul_f32 v3, v2, v2
v_mul_f32 v4, v3, v3
v_mul_f32 v4, v4, v4
v_mul_f32 v4, {c9}, v4
v_fmac_f32 v4, 0.5, v3
v_add_f32 v4, {c1}, v4
v_mul_f32 v2, v2, v4
s_cmp_ge_u32 s40, 16
s_cselect_b32 s41, s41, s42
s_cselect_b32 s43, 1, 2
v_fma_f32 v2, abs(v2), s41, 0.5
v_cvt_u32_f32 v2, v2
s_nop 0
v_readfirstlane_b32 s44, v2
s_sub_u32 s45, {c0}, s44
s_max_i32 s45, s45, 0
s_lshl_b32 s45, s45, 2
s_or_b32 s45, s45, s43
s_cmp_eq_u32 s44, 0
s_cselect_b32 s45, 0, s45
v_mov_b32 v2, {lctl}
v_mov_b32 v3, s45
ds_write_b32 v2, v3
{lab}:""".format(core=core.format(gf=hex(f2u(gf / 10)), gs=hex(f2u(gs / 10))), lab=lab_, rk=RK + k * 8 * rks, rs=rks, gf=hex(f2u(gf / 10)), gs=hex(f2u(gs / 10)), r16=hex(f2u(1 / 16)), b0=hex(f2u(-15.5 / 16)),
           c9=hex(f2u(0.6)), c1=hex(f2u(1.2)), c0=cnt - 2, lctl=L_CTL))
    checkpoint(3, info['cntK'], gK, gKs)
    A('s_barrier')
    checkpoint(0, info['cntA'], gA, gAs)
    stamp(14)
    for k, (g1, g2) in enumerate(((gB, gBs), (gC, gCs), (gD, gDs))[:len(info['cps'])]):
        A('s_barrier')
        if k == 0: stamp(15)
        checkpoint(1 + k, info['cps'][k], g1, g2)
    A('s_cmp_ge_u32 s2, 144\ns_cbranch_scc1 ' + ('L_hbend' if hs != 4 else 'L_end'))
    if prio: A('s_setprio %d' % prio)
    A('s_barrier')
    if not sm & 64: A('s_endpgm')
    poll_tag(['buffer_load_dwordx4 v[%d:%d], v12, s[48:51], %s offen offset:%d %s' % (OF + 4 * ks, OF + 4 * ks + 3, 's72' if ks < 4 else 's73', (ks % 4) * 128, 'sc1 nt' if h1nt else 'sc1') for ks in range(8)],
             range(OF, OF + 32), tslp, 1 << 22)
    if b3 == 2: A('s_barrier')
    if diag == 1: A('s_memrealtime s[94:95]')
    if not ilv:
        for half in range(2):
            pack_frags(OF + 16 * half, 4, 's71')
            for ks in range(4 * half, 4 * half + 4):
                for nt in range(4):
                    r = WF + (nt * 8 + ks) * 4
                    A('v_mfma_f32_16x16x32_bf16 v[%d:%d], v[%d:%d], v[%d:%d], %s' % (YA + nt * 4, YA + nt * 4 + 3, r, r + 3, OF + ks * 4, OF + 3 + ks * 4, '0' if ks == 0 else 'v[%d:%d]' % (YA + nt * 4, YA + nt * 4 + 3)))
    else:
        def pk_perm(k):
            r = OF + 4 * k
            A('v_perm_b32 v%d, v%d, v%d, s71\nv_perm_b32 v%d, v%d, v%d, s71' % (r, r + 1, r, r + 1, r + 3, r + 2))
        def pk_dpp(k):
            r = OF + 4 * k
            for t in range(2): A('v_mov_b32_dpp v%d, v%d row_ror:8 row_mask:0xf bank_mask:0xf' % (r + 2 + t, r + t))
        pk_perm(0); pk_perm(1); pk_dpp(0); pk_dpp(1)
        for ks in range(8):
            for nt in range(4):
                r = WF + (nt * 8 + ks) * 4
                A('v_mfma_f32_16x16x32_bf16 v[%d:%d], v[%d:%d], v[%d:%d], %s' % (YA + nt * 4, YA + nt * 4 + 3, r, r + 3, OF + ks * 4, OF + 3 + ks * 4, '0' if ks == 0 else 'v[%d:%d]' % (YA + nt * 4, YA + nt * 4 + 3)))
                if ks + 2 < 8 and nt == 0: pk_perm(ks + 2)
                if ks + 2 < 8 and nt == 2: pk_dpp(ks + 2)
    A('s_nop 5')
    for i in range(2):
        for e in range(4):
            A('v_mov_b32_dpp v%d, v%d row_ror:8 row_mask:0xf bank_mask:0xc' % (YA + 8 * i + e, YA + 8 * i + 4 + e))
        for e in range(4):
            A('v_bfi_b32 v%d, s59, v%d, v%d' % (YA + 8 * i + e, YA + 8 * i + e, TAG + e))
        A('buffer_store_dwordx4 v[%d:%d], v14, s[48:51], s74 offen offset:%d sc1%s' % (YA + 8 * i, YA + 8 * i + 3, i * (128 if ysp else 2048), ' nt' if snt & 2 else '')).replace(' sc1', ' sc0 sc1' if ysc & 1 else ' sc1') if False else A(('buffer_store_dwordx4 v[%d:%d], v14, s[48:51], s74 offen offset:%d sc1' % (YA + 8 * i, YA + 8 * i + 3, i * (128 if ysp else 2048))).replace(' sc1', ' sc0 sc1' if ysc & 1 else ' sc1'))
    if b3 == 1: A('s_barrier')
    stamp(4)
    if diag == 1: A('s_mov_b64 exec, 1\nv_mov_b32 v246, s94\nv_mov_b32 v247, s95\nbuffer_store_dwordx2 v[246:247], v252, s[80:83], 0 offen offset:80\ns_mov_b64 exec, -1')
    A('L_hbend:')
    if probe:
        A('''s_cmp_lt_u32 s94, %d
s_cbranch_scc1 L_end
s_mov_b32 s40, 200
L_prb:
s_sleep 64
s_sub_u32 s40, s40, 1
s_cbranch_scc0 L_prb
s_mov_b32 s84, s24
s_mov_b32 s85, s25
s_mov_b32 s86, 9216
v_mov_b32 v2, 0x7fc07fc0
buffer_store_dword v2, v1, s[84:87], 0 offen''' % (1 if probe & 2 else 8))
    stamp(99)
    A('s_endpgm')

    A("""L_FIN:
s_sub_u32 s64, s2, """ + ('0' if f0 else '40') + """
s_mul_i32 s76, s64, 3641
s_lshr_b32 s76, s76, 16
s_mul_i32 s77, s76, 18
s_sub_u32 s77, s64, s77
s_mul_i32 s56, s76, 1152
s_add_u32 s57, s56, 1152
s_mov_b32 s63, 0xffff0000""")
    if not sm & 32: A('s_endpgm')
    srd(32, 4, 's57')
    srd(36, 22, 1152)
    A("""v_lshlrev_b32 v5, 5, v0
v_lshlrev_b32 v15, 3, v0
buffer_load_dwordx4 v[16:19], v5, s[32:35], s56 offen{f}
buffer_load_dwordx4 v[20:23], v5, s[32:35], s56 offen offset:16{f}
buffer_load_dwordx4 v[24:27], v5, s[36:39], 0 offen{f}
buffer_load_dwordx4 v[28:31], v5, s[36:39], 0 offen offset:16{f}
s_mov_b32 s58, 0x3f803f80
v_mov_b32 v32, 0
s_waitcnt vmcnt(0)""".format(f=' nt' if xnt else ''))
    for r in range(8):
        A("""v_lshlrev_b32 v34, 16, v{x}
v_and_b32 v35, s63, v{x}
v_lshlrev_b32 v36, 16, v{w}
v_and_b32 v37, s63, v{w}
v_mul_f32 v34, v34, v36
v_mul_f32 v35, v35, v37
v_cvt_pk_bf16_f32 v34, v34, v35
v_dot2_f32_bf16 v32, v34, s58, v32""".format(x=16 + r, w=24 + r))
    A("""s_nop 2
v_add_f32_dpp v32, v32, v32 quad_perm:[1,0,3,2] row_mask:0xf bank_mask:0xf
s_nop 1
v_add_f32_dpp v32, v32, v32 quad_perm:[2,3,0,1] row_mask:0xf bank_mask:0xf
s_nop 1
v_add_f32_dpp v32, v32, v32 row_half_mirror row_mask:0xf bank_mask:0xf
s_nop 1""")
    xsum([32], 34)
    A("""v_cvt_pk_bf16_f32 v32, v32, v32
v_and_b32 v32, s63, v32
v_mul_f32 v32, {nl2e}, v32
v_exp_f32 v32, v32
s_nop 0
v_add_f32 v32, 1.0, v32
v_rcp_f32 v32, v32
s_nop 0
v_cvt_pk_bf16_f32 v32, v32, v32
v_and_b32 v{g}, s63, v32
v_sub_f32 v33, 1.0, v{g}
v_cvt_pk_bf16_f32 v33, v33, v33
v_and_b32 v33, s63, v33
s_lshl_b32 s56, s64, 10
s_add_u32 s56, s56, {fin}
s_barrier
s_barrier""".format(nl2e=hex(NLOG2E), fin=FIN, g=FB + 4))
    poll_tag(['buffer_load_dwordx4 v[%d:%d], v1, s[48:51], s56 offen %s' % (FB, FB + 3, MF)], range(FB, FB + 4), slp, 1 << 19, masked=False)
    stamp(13)
    for r in range(FB, FB + 4): A('v_and_b32 v%d, s59, v%d' % (r, r))
    xsum(list(range(FB, FB + 4)), 40)
    round4(range(FB, FB + 4), 40)
    for r in range(FB, FB + 4): A('v_mul_f32 v%d, v33, v%d' % (r, r))
    round4(range(FB, FB + 4), 40)
    A('s_lshl_b32 s56, s77, 6')
    if ysp: A('v_lshrrev_b32 v13, 3, v0\nv_mul_u32_u24 v13, %d, v13\nv_and_b32 v14, 7, v0\nv_lshl_add_u32 v13, v14, 4, v13' % ysp)
    else: A('v_mov_b32 v13, v1')
    A("""s_lshl_b32 s78, s64, {fsh}
s_add_u32 s78, s78, {yin}
s_add_u32 s77, s78, {half}
s_mul_i32 s79, s76, 1152
s_add_u32 s79, s79, s56""".format(yin=YIN, fsh=7 if ysp else 11, half=8 * ysp if ysp else 1024))
    srd(32, 24, 8 * 1152)
    for _ in range(len(info['cps']) - 1): A('s_barrier')
    if pt == 2:
        for i in range(2): A('buffer_load_dwordx4 v[%d:%d], v1, s[48:51], s78 offen offset:%d sc1' % (16 + 4 * i, 19 + 4 * i, i * 1024))
    if prio: A('s_setprio %d' % prio)
    A('s_barrier')
    if not sm & 64:
        stamp(1)
        A('s_endpgm')
    if pt == 1:
        for i in range(2): A('buffer_load_dwordx4 v[%d:%d], v1, s[48:51], s78 offen offset:%d sc1' % (16 + 4 * i, 19 + 4 * i, i * 1024))
    if b3: A('s_barrier')
    poll_tag(['buffer_load_dwordx4 v[%d:%d], v13, s[48:51], %s offen %s' % (16 + 4 * i, 19 + 4 * i, ('s78', 's77')[i], 'sc0 sc1' if ysc & 2 else TF) for i in range(2)],
             range(16, 24), fslp2, 1 << 21)
    if diag == 1: A('s_memrealtime s[94:95]')
    for r in range(16, 24): A('v_and_b32 v%d, s59, v%d' % (r, r))
    for c in range(4): A('v_add_f32 v%d, v%d, v%d' % (16 + c, 16 + c, 20 + c))
    xsum([16, 17, 18, 19], 20)
    round4([16, 17, 18, 19], 20)
    for c in range(4): A('v_mul_f32 v%d, v%d, v%d' % (16 + c, FB + 4, 16 + c))
    round4([16, 17, 18, 19], 20)
    for c in range(4): A('v_add_f32 v%d, v%d, v%d' % (16 + c, 16 + c, FB + c))
    A("""v_cvt_pk_bf16_f32 v20, v16, v17
v_cvt_pk_bf16_f32 v21, v18, v19
s_mov_b64 exec, 0xff
buffer_store_dwordx2 v[20:21], v15, s[32:35], s79 offen
s_cmp_lg_u32 s64, 0
s_cbranch_scc1 L_noepoch
s_mov_b64 exec, 1
v_mov_b32 v2, s88
v_mov_b32 v3, %d
buffer_store_dword v2, v3, s[48:51], 0 offen sc1
L_noepoch:
s_mov_b64 exec, -1""" % EPOCH)
    if diag == 1: A('s_memrealtime s[96:97]')
    if diag:
        A('s_waitcnt vmcnt(0)')
        stamp(1)
    if diag == 1: A('s_mov_b64 exec, 1\nv_mov_b32 v244, s94\nv_mov_b32 v245, s95\nv_mov_b32 v246, s96\nv_mov_b32 v247, s97\nbuffer_store_dwordx2 v[244:245], v252, s[80:83], 0 offen offset:88\nbuffer_store_dwordx2 v[246:247], v252, s[80:83], 0 offen offset:64\ns_mov_b64 exec, -1')
    A('L_end:\ns_endpgm')

    nacc = 0
    nv = max(RING + D * 4, 224)
    if diag: nv = 256
    assert nv <= 256
    out = HEADER + '; @launch grid=(256,1,1) block=(192,1,1) lds=%d\n' % lds
    out += DOC
    out += '.amdgcn_target "amdgcn-amd-amdhsa--gfx950"\n.text\n.globl %s\n.p2align 8\n.type %s,@function\n' % (KN, KN)
    L = []
    titles = {'entry': 'entry: kernel arguments, role dispatch', 'haq': 'HA: partial q (64 columns x 288 rows of wq, 8 batches)',
              'hbq': 'HB: gather q of this (batch, head) into LDS', 'stream': 'S: side loads, K phase, V phase, publish o',
              'stream2': 'S: V loop bodies with a wider / narrower load window', 'ha2': 'HA: FFN gate / up / down slices',
              'hb2': 'HB: window control, out-projection slice ; HA: final sum'}
    for nm in ('entry', 'haq', 'hbq', 'stream', 'stream2', 'ha2', 'hb2'):
        if nm in secs:
            if nm != 'entry': L.append('; ======== ' + titles[nm] + ' ========')
            L += secs[nm]
    out += '\n'.join(('' if x.endswith(':') or x.startswith(';') else '    ') + x for x in L) + '\n'
    out += '''.section .rodata,"a"
.p2align 6
.amdhsa_kernel %s
  .amdhsa_next_free_vgpr %d
  .amdhsa_next_free_sgpr 102
  .amdhsa_accum_offset %d
  .amdhsa_group_segment_fixed_size 0
  .amdhsa_kernarg_size 104
  .amdhsa_user_sgpr_count 2
  .amdhsa_user_sgpr_kernarg_segment_ptr 1
  .amdhsa_system_sgpr_workgroup_id_x 1
.end_amdhsa_kernel
''' % (KN, nv + nacc, nv)
    return out


if __name__ == '__main__':
    names = []
    for spec in sys.argv[1:]:
        kw = {}
        for p in spec.split(','):
            if not p: continue
            k, v = p.split('=')
            kw[k] = int(v)
        nm = 'k_' + (spec.replace(',', '_').replace('=', '') or 'def') + '.s'
        open(nm, 'w').write(gen(**kw))
        names.append(nm)
    print(' '.join(names))
```

```python
import sys, math, struct

KN = 'gated_mix__mha_block_cached__swiglu_ffn__decode_kernel'

HEADER = '''; Kernarg layout for this problem (104 bytes, ptrs only, base s[0:1]):
'''

DOC = "; ---------------------------------------------------------------------------------------------\n; ---------------------------------------------------------------------------------------------\n"

EPOCH = 0x0
RK = 0x1000
XL = 0xB000
QP = 0x10000
HM = 0x70000
FIN = 0xA0000
PREG = 0xD0000
OREC = 0x100000
YIN = 0x140000
WS_SIZE = 0x200000
L_QW = 0
L_W = 36864
L_SC = 110592
L_Q = 143360
L_CTL = 143616
LDS_BYTES = 143680

def f2u(x):
    return struct.unpack('<I', struct.pack('<f', x))[0]

CSC = f2u(math.log2(math.e) / math.sqrt(128.0))
NLOG2E = f2u(-math.log2(math.e))


def gen(hs=0, n=20, q=2, D=32, w0=24, na=28, nend=0, kend=0, ctl=1, nf=24, ns=18, gA=125, gAs=100, gB=65, gBs=55, pB=45, pC=72, gC=55, gCs=45, pD=90, gD=42, gDs=28, rks=1280, pt=0, ck=1, b0q=35, fslp2=2, b3=2, loc=15, xp=1, dbl=-1, gK=-1, gKs=0, pK=25, qgate=1, dum=0, probe=0, gb=2, rnd=2, ysp=0, ysc=0, f0=1, early=1, hwo=10, ilv=1, h1nt=1, xnt=0, cnt_=0, snt=0, rm=3, Z=64, zg=4, wa=4, diag=0, spin=1, prio=3, vacc=0, slp=64, qslp=2, b0=0, fb=0,
        sm=127, noproc=0, tslp=0, mnt=1, qnt=1, tnt=0, lds=LDS_BYTES, ww=2, wa2=0, n1=0, n1it=0):
    secs = {}
    cur = [None]
    def sec(name):
        cur[0] = secs.setdefault(name, [])
    def A(s):
        for x in s.split('\n'):
            x = x.strip()
            if x: cur[0].append(x)
    lab = [0]
    def newlab(p):
        lab[0] += 1
        return '%s_%d' % (p, lab[0])
    MF = 'sc1 nt' if mnt else 'sc1'
    QF = 'sc1 nt' if qnt else 'sc1'
    TF = 'sc1 nt' if tnt else 'sc1'
    TAG = 60

    sec('entry')
    A(KN + ':')
    A('s_cmp_ge_u32 s2, 256\ns_cbranch_scc1 L_end')
    if diag: A('s_memrealtime s[90:91]')
    A("""s_load_dwordx16 s[4:19], s[0:1], 0
s_load_dwordx8 s[20:27], s[0:1], 64
s_load_dwordx2 s[28:29], s[0:1], 96
v_lshrrev_b32 v1, 6, v0
v_and_b32 v0, 63, v0
v_readfirstlane_b32 s3, v1
v_lshlrev_b32 v1, 4, v0
s_lshr_b32 s30, s2, 5
s_and_b32 s31, s2, 31
""")
    def common():
        A("""s_load_dword s88, s[28:29], %d
s_mov_b32 s48, s28
s_mov_b32 s49, s29
s_mov_b32 s50, %d
s_mov_b32 s51, 0x20000""" % (EPOCH, WS_SIZE))
    if not early:
        A('s_waitcnt lgkmcnt(0)')
        common()
    A("""s_cmp_eq_u32 s3, 0
s_cbranch_scc1 L_S
s_cmp_eq_u32 s3, 2
s_cbranch_scc1 L_HB""")

    def stamp(slot):
        if not diag: return
        if diag in (4, 5) and slot not in (1, 3): return
        if diag == 6 and slot not in (1, 3, 2, 14, 5, 15): return
        if diag == 7 and slot not in (1, 3): return
        if diag in (1, 6) and slot == 99: return
        if diag == 1 and slot == 15: return
        if diag == 3:
            if hs and slot == hs: A('s_memrealtime s[90:91]\ns_waitcnt lgkmcnt(0)')
            if (slot == 1 and hs in (0, 1)) or (slot == 3 and hs == 3) or (slot == 99 and hs in (2, 12, 14, 4)):
                lp = newlab('L_hold')
                A('%s:\ns_memrealtime s[92:93]\ns_waitcnt lgkmcnt(0)\ns_sub_u32 s92, s92, s90\ns_cmp_lt_u32 s92, 25000\ns_cbranch_scc1 %s' % (lp, lp))
            return
        A("""s_memrealtime s[92:93]
s_add_u32 s80, s28, 0x40000000
s_addc_u32 s81, s29, 0
s_mov_b32 s82, 0x20000
s_mov_b32 s83, 0x20000
s_lshl_b32 s84, s2, 7
s_mov_b64 s[86:87], exec
s_mov_b64 exec, 1
s_waitcnt lgkmcnt(0)
v_mov_b32 v250, s92
v_mov_b32 v251, s93
v_mov_b32 v252, s84
buffer_store_dwordx2 v[250:251], v252, s[80:83], 0 offen offset:%d""" % (slot * 8))
        if slot == 3:
            A("""s_sub_u32 s85, s2, """ + ('0' if f0 else '40') + """
s_cmp_lt_u32 s85, 144
s_cbranch_scc1 L_st3
buffer_store_dwordx2 v[250:251], v252, s[80:83], 0 offen offset:8
L_st3:
s_getreg_b32 s85, hwreg(HW_REG_XCC_ID)
v_mov_b32 v250, s90
v_mov_b32 v251, s91
buffer_store_dwordx2 v[250:251], v252, s[80:83], 0 offen
s_nop 1
v_mov_b32 v250, s85
v_mov_b32 v251, 0
buffer_store_dwordx2 v[250:251], v252, s[80:83], 0 offen offset:48""")
        A('s_mov_b64 exec, s[86:87]')

    def epoch():
        A("""s_waitcnt lgkmcnt(0)
s_mul_i32 s89, s88, 0x9E3779B1
s_add_u32 s89, s89, 0x7F4A7C15
s_add_u32 s88, s88, 1""")
        for e, c in enumerate((0, 0x55, 0xAA, 0x33)):
            A('s_add_u32 s63, s88, %d\ns_and_b32 s63, s63, 0xff\nv_mov_b32 v%d, s63' % (c, TAG + e))
        A('s_mov_b32 s59, 0xffffff00')
    def poll_tag(loads, regs, sleep, bound, masked=True, full=()):
        lp, ld = newlab('L_poll'), newlab('L_pdone')
        A('s_mov_b32 s62, %d\n%s:' % (bound if spin else 1 << 12, lp))
        for x in loads: A(x)
        A('s_waitcnt vmcnt(0)')
        rs = list(regs)
        assert rs[0] % 4 == 0 and rs == list(range(rs[0], rs[0] + len(rs))) and len(rs) % 4 == 0
        A('v_xor_b32 v2, v%d, v60\nv_xor_b32 v3, v%d, v61' % (rs[0], rs[1]))
        for i, r in enumerate(rs[2:]):
            A('v_bitop3_b32 v%d, v%d, v%d, v%d bitop3:0xf6' % (2 + (i & 1), 2 + (i & 1), r, TAG + r % 4))
        A('v_or_b32 v2, v2, v3\nv_and_b32 v2, 0xff, v2')
        for r in full:
            A('v_bitop3_b32 v2, v2, v%d, s89 bitop3:0xf6' % r)
        A("""v_cmp_ne_u32 vcc, 0, v2
s_cbranch_vccz {ld}
{mk}
{sl}
s_sub_u32 s62, s62, 1
s_cbranch_scc0 {lp}
{ld}:
s_mov_b64 exec, -1""".format(lp=lp, ld=ld, sl='s_sleep %d' % sleep if sleep else '', mk='s_mov_b64 exec, vcc' if masked else ''))
    def class_load(vd, va):
        A('''s_getreg_b32 s65, hwreg(HW_REG_XCC_ID)
s_and_b32 s65, s65, 15
s_add_u32 s65, s65, s89
s_and_b32 s64, s2, 7
s_mul_i32 s64, s64, 1280
s_add_u32 s64, s64, {xl}
v_and_b32 v{a}, 31, v0
v_lshlrev_b32 v{a}, 2, v{a}
buffer_load_dword v{d}, v{a}, s[48:51], s64 offen sc1{f}'''.format(xl=XL, a=va, d=vd, f=' nt' if cnt_ else ''))
    def class_test(vd, sd):
        A('v_cmp_ne_u32 vcc, s65, v%d\ns_nop 0\ns_cmp_eq_u64 vcc, 0\ns_cselect_b32 %s, 1, 0' % (vd, sd))
    def srd(sn, ptr, size):
        A('s_mov_b32 s%d, s%d\ns_mov_b32 s%d, s%d\ns_mov_b32 s%d, %s\ns_mov_b32 s%d, 0x20000' % (sn, ptr, sn + 1, ptr + 1, sn + 2, size, sn + 3))
    def trbase(dst, rowstride, colmul, tmp, gm=8):
        A("""v_lshrrev_b32 v{d}, 4, v0
v_mul_u32_u24 v{d}, {gm}, v{d}
v_bfe_u32 v{t}, v0, 2, 2
v_add_u32 v{d}, v{d}, v{t}
v_mul_u32_u24 v{d}, {rs}, v{d}
v_and_b32 v{t}, 3, v0
v_mul_u32_u24 v{t}, {cm}, v{t}
v_add_u32 v{d}, v{d}, v{t}""".format(d=dst, t=tmp, rs=rowstride, cm=colmul, gm=gm))
    def xsum(regs, tmp):
        for r in regs: A('v_add_f32_dpp v%d, v%d, v%d row_ror:8 row_mask:0xf bank_mask:0xf' % (r, r, r))
        for sw in ('v_permlane16_swap_b32', 'v_permlane32_swap_b32'):
            for i, r in enumerate(regs): A('v_mov_b32 v%d, v%d' % (tmp + i, r))
            if len(regs) < 3: A('s_nop 1')
            for i, r in enumerate(regs): A('%s v%d, v%d' % (sw, r, tmp + i))
            for i, r in enumerate(regs): A('v_add_f32 v%d, v%d, v%d' % (r, r, tmp + i))
    def round4(regs, tmp):
        a, b, c, d = regs
        A("""v_cvt_pk_bf16_f32 v{t0}, v{a}, v{b}
v_cvt_pk_bf16_f32 v{t1}, v{c}, v{d}
v_lshlrev_b32 v{a}, 16, v{t0}
v_and_b32 v{b}, s63, v{t0}
v_lshlrev_b32 v{c}, 16, v{t1}
v_and_b32 v{d}, s63, v{t1}""".format(a=a, b=b, c=c, d=d, t0=tmp, t1=tmp + 1))

    vQ = 4
    vMask = 8
    vT0, vU0, vX0 = 12, 14, 2
    vA = 16
    vAcc = 24
    vS0, vS1, vR, vT, vT2, vPK, vM, vMC, vL = 28, 29, 30, 31, 32, 33, 34, 35, 36
    vAddr, vSA = 37, 38
    vKA, vKB, vVA, vVB = 40, 41, 42, 43
    vQM = 44
    RING = 64
    assert zg == 4
    assert D % 16 == 0 and n + q <= D and D % q == 0
    def rr(t):
        b = RING + (t % D) * 4
        return 'v[%d:%d]' % (b, b + 3)
    HALF = 2048
    TOT = 2 * HALF
    sec('stream')
    A('L_S:')
    if early:
        A('s_waitcnt lgkmcnt(0)')
        common()
    A("""s_lshl_b32 s52, s2, 21
s_lshr_b32 s53, s2, 11
s_add_u32 s32, s6, s52
s_addc_u32 s33, s7, s53
s_mov_b32 s34, 0x200000
s_mov_b32 s35, 0x20000
s_add_u32 s36, s8, s52
s_addc_u32 s37, s9, s53
s_mov_b32 s38, 0x200000
s_mov_b32 s39, 0x20000
s_mov_b32 s54, 0
s_mov_b32 s53, 0
v_lshrrev_b32 v2, 4, v0
v_and_b32 v3, 3, v0
v_lshlrev_b32 v3, 4, v3
v_lshl_add_u32 v{QA}, v2, 6, v3
v_bfe_u32 v3, v0, 2, 2
v_lshl_add_u32 v{KA}, v3, 8, v{QA}
v_add_u32 v{KB}, {z}, v{KA}
v_and_b32 v3, 15, v0
v_lshlrev_b32 v3, 4, v3
v_lshl_add_u32 v{VA}, v2, 10, v3
v_add_u32 v{VB}, {z}, v{VA}
v_add_u32 v{QA}, {lq}, v{QA}""".format(QA=vS0, KA=vKA, KB=vKB, VA=vVA, VB=vVB, z=Z * 1024, lq=L_Q))
    st = {'issued': 0, 'landed': -1}
    info = {}
    def issue(t):
        sr, so = ('s[32:35]', 's54') if t < HALF else ('s[36:39]', 's53')
        r = t % (2 * zg)
        if t < HALF: A('buffer_load_dwordx4 %s, v%d, %s, %s offen offset:%d nt' % (rr(t), vKA if r < zg else vKB, sr, so, (r % zg) * 1024))
        else: A('buffer_load_dwordx4 %s, v%d, %s, %s offen offset:%d nt' % (rr(t), vVA if r < zg else vVB, sr, so, (r % zg) * 256))
        if r == 2 * zg - 1:
            A('s_add_u32 s68, %s, %d\ns_xor_b32 s69, s68, %s\ns_and_b32 s69, s69, %d\ns_add_u32 %s, s68, s69' % (so, zg * 1024, so, Z * 1024, so))
        st['issued'] = t + 1
    def wait_landed(t):
        c = st['issued'] - 1 - t
        assert 0 <= c < 63
        if t > st['landed']:
            A('s_waitcnt vmcnt(%d)' % c)
            st['landed'] = t
    def dpp(op, d, a, ctl, bank=0xf):
        A('%s_dpp v%d, v%d, v%d %s row_mask:0xf bank_mask:%s' % (op, d, a, a, ctl, hex(bank)))
    lane_of = lambda j: 4 * (j & 3) + (j >> 2)
    GPB = D // 16
    def sc_off(grp):
        return (grp % GPB) * 256
    def score_round(d, a):
        A("""v_cvt_pk_bf16_f32 v{d}, v{a}, v{a}
v_and_b32 v{d}, s63, v{d}
v_mul_f32 v{d}, s56, v{d}
v_cvt_pk_bf16_f32 v{d}, v{d}, v{d}
v_and_b32 v{d}, s63, v{d}""".format(d=d, a=a))
    def prepA(u):
        a = u % 8
        grp = u // 8
        if a == 0:
            A('s_waitcnt lgkmcnt(0)')
            if rnd == 1:
                score_round(vT, vR)
                A('v_fma_f32 v{T}, v{T}, s55, -v{MC}'.format(T=vT, MC=vMC))
            else:
                A('v_fma_f32 v{T}, v{R}, s55, -v{MC}'.format(T=vT, R=vR, MC=vMC))
            A('v_exp_f32 v{T}, v{T}'.format(T=vT))
            if grp + 1 < HALF // 16:
                if (grp + 1) % GPB == 0: A('v_add_u32 v%d, %d, v%d' % (vSA, GPB * 256, vSA))
                A('ds_read_b32 v%d, v%d offset:%d' % (vR, vSA, sc_off(grp + 1)))
            else:
                A('s_nop 0')
            A("""v_cvt_pk_bf16_f32 v{PK}, v{T}, v{T}
v_add_f32 v{Lr}, v{Lr}, v{T}
s_nop 0""".format(T=vT, PK=vPK, Lr=vL))
        for i in range(2):
            for k in range(4):
                A('v_and_b32_dpp v%d, v%d, v%d row_newbcast:%d row_mask:0xf bank_mask:0xf' % (vA + 4 * i + k, vPK, vMask + k, lane_of(2 * a + i)))
    def finish_l():
        for ctl in ('row_ror:8', 'row_ror:4', 'row_ror:2', 'row_ror:1'):
            dpp('v_add_f32', vL, vL, ctl); A('s_nop 1')
        A("""v_mov_b32 v{T}, v{Lr}
s_nop 1
v_permlane16_swap_b32 v{Lr}, v{T}
v_add_f32 v{Lr}, v{Lr}, v{T}
v_mov_b32 v{T}, v{Lr}
s_nop 1
v_permlane32_swap_b32 v{Lr}, v{T}
v_add_f32 v{Lr}, v{Lr}, v{T}
v_rcp_f32 v{Lr}, v{Lr}""".format(T=vT, Lr=vL))
        if loc & 1: A('ds_read_b32 v%d, v%d offset:8\ns_waitcnt lgkmcnt(0)\nv_readfirstlane_b32 s60, v%d' % (vT2, vT0 + 1, vT2))
    def pad_after_mfma(acc, need=8):
        have = 0
        for x in reversed(cur[0]):
            if x.startswith('v_mfma') and x.split()[1].startswith('v[%d:' % acc): break
            if x.endswith(':'):
                have += 1; break
            have += int(x.split()[1]) + 1 if x.startswith('s_nop') else 1
        if have < need: A('s_nop %d' % (need - have - 1))
    def post(c):
        acc = vA + 4 * (c & 1); a = c % 4
        x = vU0 + (a & 1)
        pad_after_mfma(acc)
        A('v_cndmask_b32 v%d, v%d, v%d, s[70:71]' % (vT0, acc, acc + 1))
        A('v_cndmask_b32 v%d, v%d, v%d, s[70:71]' % (vT0 + 1, acc + 2, acc + 3))
        A('v_cndmask_b32 v%d, v%d, v%d, s[72:73]' % (x, vT0, vT0 + 1))
        if a & 1:
            cc = a >> 1
            dpp('v_add_f32', vU0, vU0, 'quad_perm:[1,0,3,2]')
            A('s_nop 0')
            dpp('v_add_f32', vU0 + 1, vU0 + 1, 'quad_perm:[1,0,3,2]')
            A('v_cndmask_b32 v%d, v%d, v%d, s[70:71]' % (vX0 + cc, vU0, vU0 + 1))
            if cc:
                dpp('v_add_f32', vX0, vX0, 'quad_perm:[2,3,0,1]')
                A('s_nop 0')
                dpp('v_add_f32', vX0 + 1, vX0 + 1, 'quad_perm:[2,3,0,1]')
                grp = c // 4
                A('v_cndmask_b32 v%d, v%d, v%d, s[72:73]' % (vR, vX0, vX0 + 1))
                if rnd == 2: score_round(vR, vR)
                A('v_max_f32 v%d, v%d, v%d' % (vM, vM, vR))
                A('ds_write_b32 v%d, v%d offset:%d' % (vSA, vR, sc_off(grp)))
                if (grp + 1) % GPB == 0 and grp + 1 < HALF // 16: A('v_add_u32 v%d, %d, v%d' % (vSA, GPB * 256, vSA))
    def proc(u):
        t = 2 * u
        if t < HALF:
            if noproc & 1: return
            c = t // 4
            acc = vA + 4 * (c & 1)
            for i in range(2):
                j = (t + i) % 4
                A('v_mfma_f32_16x16x32_bf16 v[%d:%d], v[%d:%d], %s, %s' % (acc, acc + 3, vQM + 4 * j, vQM + 4 * j + 3, rr(t + i), '0' if j == 0 else 'v[%d:%d]' % (acc, acc + 3)))
            if t % 4 == 0 and c > 0: post(c - 1)
            if t + 2 == HALF: post(c)
            if t + 2 == HALF:
                A('v_subrev_u32 v%d, %d, v%d' % (vSA, ((HALF // 16 - 1) // GPB) * GPB * 256, vSA))
                A('ds_read_b32 v%d, v%d' % (vR, vSA))
                A('v_mov_b32 v%d, %d' % (vT0 + 1, L_CTL))
                for ctl in ('row_ror:8', 'row_ror:4', 'row_ror:2', 'row_ror:1'):
                    dpp('v_max_f32', vM, vM, ctl); A('s_nop 1')
                for sw in ('v_permlane16_swap_b32', 'v_permlane32_swap_b32'):
                    A('v_mov_b32 v{T}, v{M}\ns_nop 1\n{sw} v{M}, v{T}\nv_max_f32 v{M}, v{M}, v{T}'.format(T=vT, M=vM, sw=sw))
                if rnd == 1: score_round(vM, vM)
                A('v_mul_f32 v%d, s55, v%d\ns_barrier' % (vMC, vM))
                prepA(0)
        else:
            if noproc & 2: return
            if cur[0][-1].startswith('v_and'): A('s_nop 0')
            A('v_mfma_f32_16x16x32_bf16 v[%d:%d], v[%d:%d], %s, v[%d:%d]' % (vAcc, vAcc + 3, vA, vA + 3, rr(t), vAcc, vAcc + 3))
            A('v_mfma_f32_16x16x32_bf16 v[%d:%d], v[%d:%d], %s, v[%d:%d]' % (vAcc, vAcc + 3, vA + 4, vA + 7, rr(t + 1), vAcc, vAcc + 3))
            uu = u - HALF // 2
            if uu + 1 < HALF // 2: prepA(uu + 1)
            if uu + 1 == HALF // 2 - 8:
                pass
    win = [n]
    def paced_issue(cnt):
        for _ in range(cnt // q):
            t = st['issued']
            if t + q - 1 - win[0] >= 0:
                wait_landed(t + q - 1 - win[0])
            for i in range(q): issue(t + i)
    n0 = (n // q) * q
    def job_off(dst, jreg, rowbytes, bits=0):
        if bits:
            A('''s_and_b32 s68, {j}, {m}
s_lshr_b32 s69, {j}, {b}
s_mul_i32 {d}, s68, {rb}
s_lshl_b32 s69, s69, 7
s_add_u32 {d}, {d}, s69'''.format(j=jreg, d=dst, rb=rowbytes, m=(1 << bits) - 1, b=bits))
            return
        A('''s_mul_i32 s68, {j}, 7282
s_lshr_b32 s68, s68, 16
s_mul_i32 s69, s68, 9
s_sub_u32 s69, {j}, s69
s_mul_i32 {d}, s68, {rb}
s_lshl_b32 s69, s69, 7
s_add_u32 {d}, {d}, s69'''.format(j=jreg, d=dst, rb=rowbytes))
    def side_dma(cnt, sr, so, step, ldsreg, vreg):
        for i in range(cnt):
            A('s_mov_b32 m0, %d\ns_waitcnt vmcnt(%d)\nbuffer_load_dwordx4 %s, %s, %s offen nt lds\ns_add_u32 %s, %s, %s' % (ldsreg + i * 1024, w0 - 1, vreg, sr, so, so, so, step))
    A('''v_lshrrev_b32 v4, 3, v0
v_and_b32 v5, 7, v0
v_lshlrev_b32 v5, 4, v5
v_mul_u32_u24 v6, 1152, v4
v_add_u32 v6, v6, v5
v_mul_u32_u24 v7, 9216, v4
v_add_u32 v7, v7, v5''')
    srd(44, 12, 4096 * 1152)
    A('''s_and_b32 s68, s2, 7
s_bfe_u32 s69, s2, 0x10003
s_lshl_b32 s69, s69, 4
s_add_u32 s68, s68, s69
s_mul_i32 s75, s68, 147456
s_lshr_b32 s69, s2, 4
s_lshl_b32 s69, s69, 7
s_add_u32 s75, s75, s69
s_add_u32 s77, s75, 1179648
s_mov_b32 s78, %d''' % L_QW)
    A('''s_cmp_ge_u32 s2, 184
s_cbranch_scc1 L_S_down
s_cmp_lt_u32 s2, 40
s_cbranch_scc1 L_S_light
s_cmp_lt_u32 s2, 112
s_cselect_b32 s40, s16, s18
s_cselect_b32 s41, s17, s19
s_cselect_b32 s74, 40, 112
s_mov_b32 s42, 5308416
s_mov_b32 s43, 0x20000
s_sub_u32 s74, s2, s74
s_lshr_b32 s74, s74, 3
s_and_b32 s76, s2, 7
s_mul_i32 s76, s76, 9
s_add_u32 s74, s74, s76
s_lshl_b32 s74, s74, 7
s_mov_b32 s76, 73728
s_branch L_S_big
L_S_down:
s_sub_u32 s74, s2, 184''')
    job_off('s74', 's74', 663552, 3 if rm & 2 else 0)
    srd(40, 20, 4608 * 1152)
    A('''s_mov_b32 s76, 9216
v_mov_b32 v7, v6
L_S_big:''')
    if b0: A('s_barrier')
    if sm & 4: side_dma(72, 's[40:43]', 's74', 's76', L_W, 'v7')
    if hwo: A('s_branch L_S_k')
    else: A('s_cmp_ge_u32 s2, 144\ns_cbranch_scc1 L_S_k\ns_branch L_S_wo')
    A('L_S_light:\ns_mov_b32 s78, %d' % L_W)
    if b0: A('s_barrier')
    if hwo: A('s_cmp_ge_u32 s2, 16\ns_cbranch_scc1 L_S_k')
    A('L_S_wo:')
    if sm & 2:
        for i in range(32):
            so = 's75' if i < 16 else 's77'
            A('s_add_u32 m0, s78, %d\ns_waitcnt vmcnt(%d)\nbuffer_load_dwordx4 v6, s[44:47], %s offen nt lds\ns_add_u32 %s, %s, 9216' % (i * 1024, w0 - 1, so, so, so))
    A('L_S_k:')
    if diag == 7: A('s_memrealtime s[94:95]')
    for t in range(n0):
        A('s_waitcnt vmcnt(%d)' % (max(w0, n0) - 1))
        issue(t)
    A("""v_and_b32 v{T}, 1, v0
v_lshlrev_b32 v{T}, 4, v{T}
v_mov_b32 v{T2}, 0xffff
v_lshlrev_b32 v{T2}, v{T}, v{T2}
v_bfe_u32 v{T}, v0, 1, 3""".format(T=vT, T2=vT2))
    for j in range(4):
        A('v_cmp_eq_u32 vcc, %d, v%d\ns_nop 1\nv_cndmask_b32 v%d, 0, v%d, vcc' % (j, vT, vMask + j, vT2))
    epoch()
    A("""v_mov_b32 v{M}, 0xff800000
v_mov_b32 v{Lr}, 0
v_mov_b32 v{a0}, 0
v_mov_b32 v{a1}, 0
v_mov_b32 v{a2}, 0
v_mov_b32 v{a3}, 0
s_mov_b32 s55, {csc}
s_mov_b32 s56, {scl}
s_mov_b32 s70, 0xaaaaaaaa
s_mov_b32 s71, 0xaaaaaaaa
s_mov_b32 s72, 0xcccccccc
s_mov_b32 s73, 0xcccccccc
v_and_b32 v{T}, 15, v0
v_lshlrev_b32 v{T}, 4, v{T}
v_and_b32 v{T2}, 16, v0
v_lshl_add_u32 v{Ad}, v{T}, 1, v{T2}
s_lshl_b32 s57, s31, 3
s_add_u32 s57, s57, s30
s_lshl_b32 s57, s57, 9
s_add_u32 s57, s57, {orec}
s_mov_b32 s63, 0xffff0000
s_mov_b32 s58, {lsc}
v_lshl_add_u32 v{SA}, v0, 2, s58""".format(M=vM, Lr=vL, a0=vAcc, a1=vAcc + 1, a2=vAcc + 2, a3=vAcc + 3, csc=hex(f2u(math.log2(math.e)) if rnd else CSC), scl=hex(f2u(128.0 ** -0.5)), T=vT, T2=vT2,
                              Ad=vAddr, SA=vSA, lsc=L_SC, orec=OREC))
    paced_issue(D - n0 - ((D - n0) & 1))
    if diag == 7: A('s_memrealtime s[96:97]')
    A('s_barrier')
    if diag == 7: A('s_memrealtime s[98:99]')
    A('ds_read_b128 v[%d:%d], v%d\nv_bfe_u32 v%d, v0, 2, 2' % (vQ, vQ + 3, vS0, vT))
    for j in range(4): A('v_cmp_eq_u32 s[%d:%d], %d, v%d' % (76 + 2 * j, 77 + 2 * j, j, vT))
    A('s_waitcnt lgkmcnt(0)')
    for j in range(4):
        for i in range(4): A('v_cndmask_b32 v%d, 0, v%d, s[%d:%d]' % (vQM + 4 * j + i, vQ + i, 76 + 2 * j, 77 + 2 * j))
    A('s_nop 0')
    done = [0]
    extra = [0]
    def do_proc():
        u = done[0]
        wait_landed(2 * u + 1)
        proc(u)
        done[0] += 1
    if not na: na = n0
    assert na >= n0 and (na - n0) % 2 == 0 and na + 2 <= D and nend <= na
    target_ahead = 2 + na
    k1 = n0 // 2 if D > target_ahead else 0
    for _ in range(k1):
        do_proc(); paced_issue(2)
    while st['issued'] - 2 * done[0] > target_ahead - 2:
        if st['issued'] - 2 * done[0] >= target_ahead + 2:
            do_proc(); do_proc(); paced_issue(2)
        else:
            do_proc()
    def steady():
        paced_issue(2); do_proc()
    def loop(name, limit):
        while (2 * done[0]) % D != 0: steady()
        niter = (limit - st['issued']) // D
        assert niter >= 2
        kc = ctl and gK >= 0
        info['cntK'] = niter - niter * pK // 100
        info['nK'] = niter
        A('s_mov_b32 s58, %d' % niter)
        if kc: A('v_mov_b32 v%d, %d' % (vS1, L_CTL))
        snap = (dict(st), done[0])
        for vi, (nm, w) in enumerate([(name, n)] + ([(name + 'f', nf), (name + 's', ns)] if kc else [])):
            st.update(snap[0]); done[0] = snap[1]
            st['landed'] = 2 * done[0] - 1
            win[0] = w
            if vi: sec('stream2')
            A(nm + ':')
            if kc: A('ds_read_b32 v%d, v%d' % (vT2, vS1))
            for _ in range(D // 2): steady()
            if vi: A('s_branch L_Kdisp')
        win[0] = n
        sec('stream')
        A("""L_Kdisp:
s_sub_u32 s58, s58, 1
s_cmp_eq_u32 s58, %d
s_cbranch_scc1 L_midC
L_midCback:""" % info['cntK'])
        if kc:
            A("""s_waitcnt lgkmcnt(0)
v_readfirstlane_b32 s60, v{c}
s_cmp_eq_u32 s58, 0
s_cbranch_scc1 L_Kexit
s_lshr_b32 s61, s60, 2
s_cmp_gt_u32 s58, s61
s_cselect_b32 s60, s60, 0
s_bitcmp1_b32 s60, 0
s_cbranch_scc1 {nm}f
s_bitcmp1_b32 s60, 1
s_cbranch_scc1 {nm}s
s_branch {nm}
L_Kexit:
v_mov_b32 v{c}, 0
ds_write_b32 v{a}, v{c}""".format(c=vT2, nm=name, a=vS1))
        else:
            A('s_cmp_lg_u32 s58, 0\ns_cbranch_scc1 %s' % name)
        st['issued'] += (niter - 1) * D
        done[0] += (niter - 1) * (D // 2)
        st['landed'] = 2 * done[0] - 1
    loop('L_loopK', HALF)
    while 2 * done[0] < HALF or (2 * done[0] - HALF) % D != 0: steady()
    assert HALF % D == 0 or True
    loop2_base = done[0]
    niter = (TOT - D - st['issued']) // D
    nit2 = kend // D if nend else 0
    niter -= nit2
    cps = [niter - niter * p // 100 for p in (pB, pC, pD) if p]
    info['cntA'], info['cps'] = niter, cps
    A('s_mov_b32 s58, %d\ns_mov_b32 s75, %d\ns_and_b32 s74, s75, 0xff' % (niter, sum(c << (8 * i) for i, c in enumerate(cps)) | (0xff << (8 * len(cps))) & 0xffffffff))
    variants = [('L_loopV', n)] + ([('L_loopVf', nf), ('L_loopVs', ns)] if ctl else [])
    assert not ctl or nf <= na
    snap = (dict(st), done[0])
    for vi, (name, w) in enumerate(variants):
        st.update(snap[0]); done[0] = snap[1]
        st['landed'] = 2 * done[0] - 1
        win[0] = w
        if vi: sec('stream2')
        A(name + ':')
        if ctl: A('ds_read_b32 v%d, v%d' % (vT2, vT0 + 1))
        for _ in range(D // 2): steady()
        if vi: A('s_branch L_Vdisp')
    win[0] = n
    sec('stream')
    A("""L_Vdisp:
s_sub_u32 s58, s58, 1
s_cmp_eq_u32 s58, s74
s_cbranch_scc1 L_midB
L_midBback:""")
    if ctl:
        A("""v_readfirstlane_b32 s60, v{c}
s_cmp_eq_u32 s58, 0
s_cbranch_scc1 L_Vexit
s_lshr_b32 s61, s60, 2
s_cmp_gt_u32 s58, s61
s_cselect_b32 s60, s60, 0
s_bitcmp1_b32 s60, 0
s_cbranch_scc1 L_loopVf
s_bitcmp1_b32 s60, 1
s_cbranch_scc1 L_loopVs
s_branch L_loopV
L_Vexit:""".format(c=vT2))
    else:
        A('s_cmp_lg_u32 s58, 0\ns_cbranch_scc1 L_loopV')
    st['issued'] += (niter - 1) * D
    st['landed'] += (niter - 1) * D
    done[0] += (niter - 1) * (D // 2)
    st['landed'] = 2 * done[0] - 1
    if nend: win[0] = nend
    if nit2:
        st['landed'] = 2 * done[0] - 1
        A('s_mov_b32 s58, %d\nL_loopV2:' % nit2)
        for _ in range(D // 2): steady()
        A('s_sub_u32 s58, s58, 1\ns_cmp_lg_u32 s58, 0\ns_cbranch_scc1 L_loopV2')
        st['issued'] += (nit2 - 1) * D
        st['landed'] += (nit2 - 1) * D
        done[0] += (nit2 - 1) * (D // 2)
    while st['issued'] < TOT: steady()
    ml_done = False
    while done[0] < TOT // 2:
        if not ml_done and done[0] + 1 >= TOT // 2 - 8 + 1:
            finish_l(); ml_done = True
        do_proc()
    A("""s_mov_b32 exec_hi, 0
s_cmp_eq_u32 s60, 1
s_nop 5
v_mul_f32 v4, v{a0}, v{Lr}
v_mul_f32 v5, v{a1}, v{Lr}
v_mul_f32 v6, v{a2}, v{Lr}
v_mul_f32 v7, v{a3}, v{Lr}
v_cvt_pk_bf16_f32 v2, v4, v5
v_cvt_pk_bf16_f32 v3, v6, v7
v_lshl_or_b32 v4, v2, 16, v60
v_and_or_b32 v5, v2, s63, v61
v_lshl_or_b32 v6, v3, 16, v62
v_and_or_b32 v7, v3, s63, v63
{st}
s_barrier""".format(st=('s_cbranch_scc1 L_oloc\nbuffer_store_dwordx4 v[4:7], v%d, s[48:51], s57 offen sc1\ns_branch L_odone\nL_oloc:\nbuffer_store_dwordx4 v[4:7], v%d, s[48:51], s57 offen\nL_odone:' % (vAddr, vAddr))
                 if loc & 1 else 'buffer_store_dwordx4 v[4:7], v%d, s[48:51], s57 offen %s' % (vAddr, 'sc1' if dbl < 0 else ''), a0=vAcc, a1=vAcc + 1, a2=vAcc + 2, a3=vAcc + 3, Ad=vAddr, Lr=vL))
    if diag:
        A('s_mov_b64 exec, -1')
        stamp(3)
        if diag == 7: A('s_mov_b64 exec, 1\nv_mov_b32 v244, s94\nv_mov_b32 v245, s96\nv_mov_b32 v246, s98\nv_mov_b32 v247, s100\nbuffer_store_dwordx4 v[244:247], v252, s[80:83], 0 offen offset:64\ns_mov_b64 exec, -1')
        A('s_mov_b32 exec_hi, 0')
    if dbl >= 0:
        A('s_waitcnt vmcnt(0)')
        if dbl: A('s_sleep %d' % dbl)
        A('buffer_store_dwordx4 v[4:7], v%d, s[48:51], s57 offen sc1' % vAddr)
    A('s_endpgm')
    A('L_midB:' + ('\ns_memrealtime s[94:95]' if diag == 5 else '') + '\ns_barrier\ns_lshr_b32 s75, s75, 8\ns_and_b32 s74, s75, 0xff\ns_branch L_midBback')
    A('L_midC:' + ('\ns_memrealtime s[100:101]' if diag == 7 else '') + '\ns_barrier\ns_branch L_midCback')

    XF = 72
    AC = 16
    AC2 = 32
    FR = 144
    PUB = 64
    def ha_setup1():
        srd(36, 4, 9216)
        A("""v_and_b32 v5, 7, v0
v_mul_u32_u24 v9, 1152, v5
v_lshrrev_b32 v8, 4, v0
v_lshl_add_u32 v9, v8, 4, v9""")
    def ha_setup2():
        trbase(6, 128, 16, 10)
        A("""v_and_b32 v10, 8, v0
v_lshlrev_b32 v12, 1, v10
v_lshl_add_u32 v12, v8, 5, v12
v_cmp_ne_u32 s[66:67], 0, v10""")
        epoch()
    def wdma(ldsoff, step, sr='s[32:35]', so='s54'):
        A('s_mov_b32 m0, %d\ns_nop 0\nbuffer_load_dwordx4 v4, %s, %s offen nt lds\ns_add_u32 %s, %s, %s' % (ldsoff, sr, so, so, so, step))
    def w_reads(ks, base, koff, hfs=512):
        b = FR + (ks % 2) * 16
        for nt in range(4):
            for hf in range(2):
                off = koff * 4096 + hf * hfs + (nt >> 1) * 64 + (nt & 1) * 8
                r = b + nt * 4 + hf * 2
                A('ds_read_b64_tr_b16 v[%d:%d], v%d offset:%d' % (r, r + 1, base, off))
    def w_mfma(ks, acc, xreg, first):
        b = FR + (ks % 2) * 16
        for nt in range(4):
            A('v_mfma_f32_16x16x32_bf16 v[%d:%d], v[%d:%d], v[%d:%d], %s' % (acc + nt * 4, acc + nt * 4 + 3, b + nt * 4, b + 3 + nt * 4, xreg, xreg + 3,
              '0' if first else 'v[%d:%d]' % (acc + nt * 4, acc + nt * 4 + 3)))
    def select8(dst, acc):
        for i in range(2):
            for e in range(4):
                A('v_cndmask_b32 v%d, v%d, v%d, s[66:67]' % (dst + 4 * i + e, acc + 8 * i + e, acc + 8 * i + 4 + e))
    def publish(linestride, local=False):
        if local:
            l1, l2 = newlab('L_ploc'), newlab('L_pdn')
            A('s_cmp_eq_u32 s64, 1\ns_cbranch_scc1 %s' % l1)
        for i in range(2):
            A('buffer_store_dwordx4 v[%d:%d], v11, s[48:51], s57 offen offset:%d sc1%s' % (PUB + 4 * i, PUB + 3 + 4 * i, i * linestride, ' nt' if snt & 1 else ''))
        if local:
            A('s_branch %s\n%s:' % (l2, l1))
            for i in range(2):
                A('buffer_store_dwordx4 v[%d:%d], v11, s[48:51], s57 offen offset:%d%s' % (PUB + 4 * i, PUB + 3 + 4 * i, i * linestride, ' nt' if snt & 4 else ''))
            A(l2 + ':')
    def publish_f32(linestride, local=False):
        A('s_nop 6')
        select8(PUB, AC)
        for i in range(8): A('v_bfi_b32 v%d, s59, v%d, v%d' % (PUB + i, PUB + i, TAG + i % 4))
        publish(linestride, local)

    sec('haq')
    A('L_HA:')
    if prio: A('s_setprio %d' % prio)
    if early:
        A('s_sub_u32 s52, s2, 16\ns_cmp_lt_u32 s52, 128\ns_cbranch_scc0 L_HA_q')
        if b0: A('s_barrier')
        A('s_branch L_HA_noq\nL_HA_q:\ns_waitcnt lgkmcnt(0)')
        common()
    else:
        A('s_sub_u32 s52, s2, 16\ns_cmp_lt_u32 s52, 128\ns_cbranch_scc1 L_HA_noq')
    srd(32, 10, 576 * 8192)
    ha_setup1()
    A("""s_lshr_b32 s52, s2, 3
s_and_b32 s52, s52, 15
s_and_b32 s53, s52, 1
s_bfe_u32 s54, s52, 0x10001
s_lshr_b32 s52, s52, 2
s_lshl_b32 s52, s52, 3
s_and_b32 s55, s2, 7
s_add_u32 s52, s52, s55
s_lshl_b32 s52, s52, 1
s_add_u32 s52, s52, s54
s_mul_i32 s54, s53, 2359296
s_lshl_b32 s55, s52, 7
s_add_u32 s54, s54, s55
s_mul_i32 s56, s53, 576
v_lshrrev_b32 v4, 3, v0
v_lshlrev_b32 v4, 13, v4
v_lshl_add_u32 v4, v5, 4, v4""")
    for ks in range(9):
        A('buffer_load_dwordx4 v[%d:%d], v9, s[36:39], s56 offen offset:%d%s' % (XF + 4 * ks, XF + 4 * ks + 3, ks * 64, ' nt' if xnt else ''))
    for i in range(36):
        wdma(L_QW + i * 1024, '65536')
        if b0 and i == b0q: A('s_barrier')
    ha_setup2()
    A("""v_lshlrev_b32 v11, 15, v5
v_add_u32 v11, v11, v12
s_lshl_b32 s57, s52, 1
s_add_u32 s57, s57, s53
s_lshl_b32 s57, s57, 8
s_add_u32 s57, s57, %d""" % QP)
    xq = 1 if loc & 2 else 0
    if xq: class_load(58, 59)
    A('s_waitcnt vmcnt(%d)' % (32 + xq))
    w_reads(0, 6, 0)
    for ks in range(9):
        if ks + 1 < 9:
            A('s_waitcnt vmcnt(%d)' % (28 - 4 * ks + xq))
            w_reads(ks + 1, 6, ks + 1)
            A('s_waitcnt lgkmcnt(8)')
        else:
            A('s_waitcnt lgkmcnt(0)')
        w_mfma(ks, AC, XF + 4 * ks, ks == 0)
    if xq:
        A('s_waitcnt vmcnt(0)')
        class_test(58, 's64')
    publish_f32(128, bool(xq))
    if qgate: A('v_mov_b32 v2, %d\nv_mov_b32 v3, 1\nds_write_b32 v2, v3' % (L_CTL + 4))
    stamp(5)
    if diag == 6: A('s_mov_b64 exec, 1\nv_mov_b32 v3, s64\nbuffer_store_dword v3, v252, s[80:83], 0 offen offset:60\ns_mov_b64 exec, -1')
    A('s_branch L_HA2')

    sec('ha2')
    def xloads():
        for ks in range(18):
            if ks >= wa: A('s_waitcnt vmcnt(%d)' % (wa - 1))
            A('buffer_load_dwordx4 v[%d:%d], v9, s[36:39], 0 offen offset:%d%s' % (XF + 4 * ks, XF + 4 * ks + 3, ks * 64, ' nt' if xnt else ''))
    A('L_HA_noq:')
    if early:
        A('s_waitcnt lgkmcnt(0)')
        common()
    ha_setup1()
    if b0 and not early: A('s_barrier')
    if hwo and sm & 2:
        srd(44, 12, 4096 * 1152)
        A("""v_lshrrev_b32 v4, 3, v0
v_mul_u32_u24 v4, 1152, v4
v_lshl_add_u32 v4, v5, 4, v4
s_and_b32 s68, s2, 7
s_bfe_u32 s69, s2, 0x10003
s_lshl_b32 s69, s69, 4
s_add_u32 s68, s68, s69
s_mul_i32 s75, s68, 147456
s_lshr_b32 s69, s2, 4
s_lshl_b32 s69, s69, 7
s_add_u32 s75, s75, s69
s_add_u32 s77, s75, 1179648
s_cmp_lt_u32 s2, 40
s_cselect_b32 s78, %d, %d""" % (L_W, L_QW))
        for i in range(32):
            so = 's75' if i < 16 else 's77'
            A('s_add_u32 m0, s78, %d\ns_waitcnt vmcnt(%d)\nbuffer_load_dwordx4 v4, s[44:47], %s offen nt lds\ns_add_u32 %s, %s, 9216' % (i * 1024, hwo - 1, so, so, so))
    ha_setup2()
    A("""s_waitcnt vmcnt(0)
s_branch L_HA2
L_HA_fin:
s_barrier
s_branch L_FIN
L_HA2:
s_setprio 0
s_barrier""")
    if not sm & 8: A('s_endpgm')
    A("""s_cmp_ge_u32 s2, 184
s_cbranch_scc1 L_FFN2
s_cmp_lt_u32 s2, 40
s_cbranch_scc1 """ + ('L_HA_fin' if f0 else 'L_end'))
    xloads()
    A('L_FFN1x:')
    A("""v_add_u32 v6, {lw}, v6
v_add_u32 v7, 36864, v6
v_mul_u32_u24 v11, 18432, v5
v_add_u32 v11, v11, v12
s_cmp_lt_u32 s2, 112
s_cselect_b32 s52, 40, 112
s_sub_u32 s52, s2, s52
s_lshr_b32 s52, s52, 3
s_and_b32 s53, s2, 7
s_mul_i32 s53, s53, 9
s_add_u32 s52, s52, s53
s_lshl_b32 s52, s52, 8
s_add_u32 s57, s52, {preg}
v_mov_b32 v13, {lf}
s_waitcnt vmcnt(0)""".format(lw=L_W, preg=PREG, lf=L_CTL + 8))
    w_reads(0, 6, 0)
    for ks in range(18):
        if ks + 1 < 18:
            w_reads(ks + 1, 6 if ks + 1 < 9 else 7, (ks + 1) % 9)
            A('s_waitcnt lgkmcnt(8)')
        else:
            A('s_waitcnt lgkmcnt(0)')
        w_mfma(ks, AC, XF + 4 * ks, ks == 0)
    A('s_cmp_ge_u32 s2, 112\ns_cbranch_scc1 L_UP')
    A('ds_read_b32 v3, v13\ns_waitcnt lgkmcnt(0)\nv_readfirstlane_b32 s64, v3')
    publish_f32(128, bool(loc & 4))
    stamp(9)
    A('s_barrier\ns_branch L_FIN')
    A("""L_UP:
s_mov_b32 s58, {nl}
s_mov_b32 s63, 0xffff0000
s_nop 3""".format(nl=hex(NLOG2E)))
    select8(PUB, AC)
    for i in range(2): round4([PUB + 4 * i + e for e in range(4)], 56)
    A('s_barrier')
    poll_tag(['buffer_load_dwordx4 v[%d:%d], v11, s[48:51], s57 offen offset:%d %s' % (48 + 4 * i, 51 + 4 * i, i * 128, MF) for i in range(2)],
             range(48, 56), slp, 1 << 19, masked=False)
    for e in range(8): A('v_and_b32 v%d, s59, v%d' % (48 + e, 48 + e))
    for i in range(2): round4([48 + 4 * i + e for e in range(4)], 56)
    for e in range(8): A('v_mul_f32 v%d, s58, v%d' % (16 + e, 48 + e))
    for e in range(8): A('v_exp_f32 v%d, v%d' % (16 + e, 16 + e))
    for e in range(8): A('v_add_f32 v%d, 1.0, v%d' % (16 + e, 16 + e))
    for e in range(8): A('v_rcp_f32 v%d, v%d' % (16 + e, 16 + e))
    for e in range(8): A('v_mul_f32 v%d, v%d, v%d' % (48 + e, 48 + e, 16 + e))
    for i in range(2): round4([48 + 4 * i + e for e in range(4)], 56)
    for e in range(8): A('v_mul_f32 v%d, v%d, v%d' % (PUB + e, PUB + e, 48 + e))
    for i in range(2): round4([PUB + 4 * i + e for e in range(4)], 56)
    for e in range(8): A('v_or_b32 v%d, v%d, v%d' % (PUB + e, PUB + e, TAG + e % 4))
    A('ds_read_b32 v3, v13\ns_add_u32 s57, s52, %d\ns_waitcnt lgkmcnt(0)\nv_readfirstlane_b32 s64, v3' % HM)
    publish(128, bool(loc & 8))
    stamp(9)
    if f0: A('s_cmp_ge_u32 s2, 144\ns_cbranch_scc1 L_end')
    A('s_branch L_FIN')

    A('L_FFN2:')
    trbase(6, 128, 16, 10, 4)
    if rm & 2: A('s_sub_u32 s53, s2, 184\ns_and_b32 s52, s53, 7\ns_lshr_b32 s53, s53, 3')
    else: A('s_sub_u32 s53, s2, 184\ns_mul_i32 s52, s53, 7282\ns_lshr_b32 s52, s52, 16\ns_mul_i32 s54, s52, 9\ns_sub_u32 s53, s53, s54')
    A("""v_add_u32 v6, {lw}, v6
v_add_u32 v7, 36864, v6
v_mul_u32_u24 v9, 18432, v5
v_lshl_add_u32 v9, v8, 4, v9
v_and_b32 v10, 8, v0
v_lshl_add_u32 v9, v10, 3, v9
s_mul_i32 s56, s52, 2304
s_add_u32 s56, s56, {hm}
s_mov_b32 s58, 0x07060302
v_mul_u32_u24 v11, 18432, v5
v_add_u32 v11, v11, v12
s_lshl_b32 s57, s53, 11
s_lshl_b32 s63, s52, 7
s_add_u32 s57, s57, s63
s_add_u32 s57, s57, {fin}
s_barrier
s_barrier""".format(lw=L_W, hm=HM, fin=FIN))
    def pack_frags(raw, cnt, sel):
        for k in range(cnt):
            r = raw + 4 * k
            A('v_perm_b32 v%d, v%d, v%d, %s\nv_perm_b32 v%d, v%d, v%d, %s' % (r, r + 1, r, sel, r + 1, r + 3, r + 2, sel))
        for k in range(cnt):
            r = raw + 4 * k
            for t in range(2):
                A('v_mov_b32_dpp v%d, v%d row_ror:8 row_mask:0xf bank_mask:0xf' % (r + 2 + t, r + t))
    def spread8(acc):
        for i in range(2):
            for e in range(4):
                A('v_mov_b32_dpp v%d, v%d row_ror:8 row_mask:0xf bank_mask:0xc' % (acc + 8 * i + e, acc + 8 * i + 4 + e))
    poll_tag(['buffer_load_dwordx4 v[%d:%d], v9, s[48:51], s56 offen offset:%d %s' % (XF + 4 * k, XF + 4 * k + 3, k * 128, MF) for k in range(18)],
             range(XF, XF + 72), slp, 1 << 19)
    pack_frags(XF, 18, 's58')
    w_reads(0, 6, 0, 2048)
    for k in range(18):
        if k + 1 < 18:
            w_reads(k + 1, 6 if k + 1 < 9 else 7, (k + 1) % 9, 2048)
            A('s_waitcnt lgkmcnt(8)')
        else:
            A('s_waitcnt lgkmcnt(0)')
        w_mfma(k, AC, XF + 4 * k, k == 0)
    A('s_nop 7')
    spread8(AC)
    for i in range(2):
        for e in range(4): A('v_bfi_b32 v%d, s59, v%d, v%d' % (PUB + 4 * i + e, AC + 8 * i + e, TAG + e))
    publish(1024)
    stamp(9)
    A('s_endpgm')

    sec('hbq')
    A('L_HB:')
    if prio: A('s_setprio %d' % prio)
    if early:
        if qgate: A('v_mov_b32 v2, %d\nv_mov_b32 v3, 0\nds_write_b32 v2, v3' % (L_CTL + 4))
        A('s_waitcnt lgkmcnt(0)')
        if b0: A('s_sub_u32 s60, s2, 16\ns_cmp_lt_u32 s60, 128\ns_cbranch_scc0 L_HB_a\ns_barrier\nL_HB_a:')
        common()
    A("""v_bfe_u32 v6, v0, 3, 1
v_lshlrev_b32 v6, 9, v6
v_bfe_u32 v7, v0, 4, 1
v_lshl_add_u32 v6, v7, 8, v6
v_and_b32 v5, 7, v0
v_lshl_add_u32 v6, v5, 5, v6
v_lshrrev_b32 v7, 5, v0
v_lshl_add_u32 v6, v7, 4, v6
s_lshl_b32 s56, s30, 6
s_lshl_b32 s57, s31, 1
s_add_u32 s56, s56, s57
s_lshl_b32 s56, s56, 9
s_add_u32 s56, s56, {qp}
v_and_b32 v5, 15, v0
v_lshlrev_b32 v5, 4, v5
v_lshl_add_u32 v5, v7, 3, v5
v_add_u32 v4, {lq}, v5""".format(qp=QP, lq=L_Q))
    if qgate and not early: A('v_mov_b32 v2, %d\nv_mov_b32 v3, 0\nds_write_b32 v2, v3' % (L_CTL + 4))
    epoch()
    if loc:
        A("""s_getreg_b32 s65, hwreg(HW_REG_XCC_ID)
s_and_b32 s65, s65, 15
s_add_u32 s65, s65, s89
s_and_b32 s64, s2, 7
s_mul_i32 s64, s64, 1280
s_lshr_b32 s63, s2, 3
s_lshl_b32 s63, s63, 2
s_add_u32 s64, s64, s63
s_add_u32 s64, s64, {xl}
v_mov_b32 v12, 0
v_mov_b32 v13, s65
s_mov_b64 exec, 1
buffer_store_dword v13, v12, s[48:51], s64 offen {fl}
s_mov_b64 exec, -1""".format(xl=XL, fl='' if xp else 'sc1'))
    if b0 and not early: A('s_barrier')
    if b0 and early: A('s_cmp_lt_u32 s60, 128\ns_cbranch_scc1 L_HB_b\ns_barrier\nL_HB_b:')
    if qgate:
        A("""s_sub_u32 s62, s2, 16
s_cmp_lt_u32 s62, 128
s_cbranch_scc1 L_qg3
s_mov_b32 s61, 4096
L_qg:
s_sub_u32 s61, s61, 1
s_cbranch_scc1 L_qg3
s_sleep 1
ds_read_b32 v3, v2
s_waitcnt lgkmcnt(0)
v_readfirstlane_b32 s62, v3
s_cmp_eq_u32 s62, 0
s_cbranch_scc1 L_qg
L_qg3:""")
    poll_tag(['buffer_load_dwordx4 v[16:19], v6, s[48:51], s56 offen %s' % QF], range(16, 20), qslp, 1 << 21, masked=False)
    stamp(12)
    A('v_mov_b32 v2, %d\nv_mov_b32 v3, 0\nds_write_b32 v2, v3' % (L_CTL + 8))
    for i in range(4): A('v_and_b32 v%d, s59, v%d' % (32 + i, 16 + i))
    for i in range(4): A('v_mov_b32 v%d, v%d' % (40 + i, 32 + i))
    for i in range(4): A('v_permlane16_swap_b32 v%d, v%d' % (32 + i, 40 + i))
    for i in range(4): A('v_add_f32 v%d, v%d, v%d' % (32 + i, 32 + i, 40 + i))
    for i in range(2): A('v_cvt_pk_bf16_f32 v%d, v%d, v%d' % (8 + i, 32 + 2 * i, 33 + 2 * i))
    if ctl: A('v_mov_b32 v2, %d\nv_mov_b32 v3, 0\nds_write_b32 v2, v3' % L_CTL)
    A("""ds_write_b64 v4, v[8:9]
s_waitcnt lgkmcnt(0)
s_barrier
s_branch L_HB2""")
    sec('hb2')
    A('L_HB2:\ns_setprio 0')
    if probe:
        A('''s_mov_b32 s84, s28
s_mov_b32 s85, s29
s_mov_b32 s86, 0x80000000
s_mov_b32 s87, 0x20000
s_mul_i32 s40, s2, %d
s_add_u32 s40, s40, 0x300000
buffer_load_dwordx4 v[16:19], v1, s[84:87], s40 offen nt
s_load_dword s41, s[28:29], 0xF8000
s_waitcnt vmcnt(0) lgkmcnt(0)
v_xor_b32 v20, v16, v17
v_xor_b32 v21, v16, v18
v_xor_b32 v22, v16, v19
%s
v_and_b32 v20, 0xff, v20
v_cmp_eq_u32 s[42:43], 0, v20
v_xor_b32 v21, s41, v16
v_and_b32 v21, 0xff, v21
v_cmp_ne_u32 vcc, 0, v21
s_nop 1
s_and_b64 s[42:43], s[42:43], vcc
s_bcnt1_i32_b64 s94, s[42:43]''' % (0x7f0000 if probe & 1 else 4096, 'v_or3_b32 v20, v20, v21, v22' if probe & 2 else ''))
    stamp(2)
    if loc:
        class_load(14, 15)
        A('s_waitcnt vmcnt(0)')
        class_test(14, 's64')
        A('v_mov_b32 v2, %d\nv_mov_b32 v3, s64\nds_write_b32 v2, v3' % (L_CTL + 8))
        if diag == 6: A('s_mov_b64 exec, 1\nbuffer_store_dword v3, v252, s[80:83], 0 offen offset:56\ns_mov_b64 exec, -1')
    if ck == 1:
        A('''s_cmp_ge_u32 s2, 32
s_cbranch_scc1 L_nozero
s_mul_i32 s40, s2, %d
s_add_u32 s40, s40, %d
v_mov_b32 v2, 0
s_mov_b64 exec, 1
buffer_store_dword v2, v2, s[48:51], s40 offen sc1
s_mov_b64 exec, -1
L_nozero:''' % (rks, RK))
    WF = 64
    OF = 192
    FB = 164
    YA = 44
    A("""v_lshrrev_b32 v8, 4, v0
v_and_b32 v11, 8, v0
v_lshlrev_b32 v11, 3, v11
v_lshl_add_u32 v11, v8, 4, v11
v_and_b32 v10, 7, v0
v_lshl_add_u32 v12, v10, 9, v11
v_mul_u32_u24 v14, {bs}, v10
v_add_u32 v14, v14, v11
s_and_b32 s68, s2, 7
s_bfe_u32 s69, s2, 0x10003
s_lshl_b32 s69, s69, 4
s_add_u32 s68, s68, s69
s_lshl_b32 s72, s68, 12
s_add_u32 s72, s72, {orec}
s_add_u32 s73, s72, 32768
s_lshr_b32 s74, s2, 4
s_lshl_b32 s74, s74, {csh}
s_and_b32 s75, s2, 15
s_mul_i32 s75, s75, {hps}
s_add_u32 s74, s74, s75
s_add_u32 s74, s74, {yin}
s_mov_b32 s71, 0x07060302
""".format(orec=OREC, bs=18 * (128 if ysp else 2048), yin=YIN, csh=8 if ysp else 12, hps=ysp or 128))
    A("""s_cmp_ge_u32 s2, 144
s_cbranch_scc1 L_HB3
s_cmp_lt_u32 s2, 40
s_cselect_b32 s65, {lw}, {lqw}""".format(lw=L_W, lqw=L_QW).replace(', 0', ', 0'))
    trbase(6, 128, 8, 7, 4)
    A('v_add_u32 v6, s65, v6')
    for nt in range(4):
        for ks in range(8):
            for hf in range(2):
                r = WF + (nt * 8 + ks) * 4 + hf * 2
                A('ds_read_b64_tr_b16 v[%d:%d], v6 offset:%d' % (r, r + 1, ks * 4096 + hf * 2048 + nt * 32))
            if ks % 4 == 3: A('s_waitcnt lgkmcnt(0)')
    A('L_HB3:\ns_barrier')
    def checkpoint(k, cnt, gf, gs):
        if not ctl or gf < 0: return
        lab_ = newlab('L_nock')
        core = '''s_and_b32 s41, s2, 7
s_lshr_b32 s42, s2, 6
s_lshl_b32 s42, s42, 3
s_add_u32 s41, s41, s42
v_lshlrev_b32 v2, 2, v0
v_mov_b32 v3, s89
s_lshl_b64 s[42:43], 1, s41
s_mov_b32 exec_hi, 0
buffer_load_dword v4, v2, s[48:51], s40 offen sc1
s_mov_b64 exec, s[42:43]
buffer_store_dword v3, v2, s[48:51], s40 offen sc1
s_mov_b32 exec_lo, -1
s_waitcnt vmcnt(1)
v_cmp_eq_u32 vcc, s89, v4
s_mov_b64 exec, -1
s_mov_b32 s41, {gf}
s_mov_b32 s42, {gs}
s_bcnt1_i32_b32 s40, vcc_lo
''' if ck == 0 else '''s_add_u32 s42, s28, s40
s_addc_u32 s43, s29, 0
s_mov_b32 s40, 1
s_atomic_add s40, s[42:43], 0 glc
s_waitcnt lgkmcnt(0)''' + ('''
s_mov_b32 s41, 1
s_atomic_add s41, s[42:43], 256 glc
s_waitcnt lgkmcnt(0)''' if dum else '') + '''
s_min_u32 s40, s40, ''' + str((256 >> gb) - 1) + '''
s_mov_b32 s41, {gf}
s_mov_b32 s42, {gs}
''' if ck == 1 else '''s_mov_b32 s40, 16
s_mov_b32 s41, {gf}
s_mov_b32 s42, {gs}
'''
        A("""s_bfe_u32 s40, s2, {bfe}
s_mul_i32 s40, s40, {rs}
s_add_u32 s40, s40, {rk}
{core}v_cvt_f32_u32 v2, s40
v_mul_f32 v2, {r16}, v2
v_add_f32 v2, {b0}, v2
v_mul_f32 v3, v2, v2
v_mul_f32 v4, v3, v3
v_mul_f32 v4, v4, v4
v_mul_f32 v4, {c9}, v4
v_fmac_f32 v4, 0.5, v3
v_add_f32 v4, {c1}, v4
v_mul_f32 v2, v2, v4
s_cmp_ge_u32 s40, {hf}
s_cselect_b32 s41, s41, s42
s_cselect_b32 s43, 1, 2
v_fma_f32 v2, abs(v2), s41, 0.5
v_cvt_u32_f32 v2, v2
s_nop 0
v_readfirstlane_b32 s44, v2
s_sub_u32 s45, {c0}, s44
s_max_i32 s45, s45, 0
s_lshl_b32 s45, s45, 2
s_or_b32 s45, s45, s43
s_cmp_eq_u32 s44, 0
s_cselect_b32 s45, 0, s45
v_mov_b32 v2, {lctl}
v_mov_b32 v3, s45
ds_write_b32 v2, v3
{lab}:""".format(core=core.format(gf=hex(f2u(gf / 10)), gs=hex(f2u(gs / 10))), lab=lab_, rk=RK + k * 8 * rks, rs=rks, gf=hex(f2u(gf / 10)), gs=hex(f2u(gs / 10)), r16=hex(f2u(1 / (128 >> gb))), b0=hex(f2u(-((128 >> gb) - 0.5) / (128 >> gb))), bfe=hex(gb << 16 | 3), hf=128 >> gb,
           c9=hex(f2u({3: 0.6, 2: 0.75, 1: 0.9, 0: 1.0}[gb])), c1=hex(f2u(1.2)), c0=cnt - 2, lctl=L_CTL))
    checkpoint(3, info['cntK'], gK, gKs)
    A('s_barrier')
    checkpoint(0, info['cntA'], gA, gAs)
    stamp(14)
    for k, (g1, g2) in enumerate(((gB, gBs), (gC, gCs), (gD, gDs))[:len(info['cps'])]):
        A('s_barrier')
        if k == 0: stamp(15)
        checkpoint(1 + k, info['cps'][k], g1, g2)
    A('s_cmp_ge_u32 s2, 144\ns_cbranch_scc1 ' + ('L_hbend' if hs != 4 else 'L_end'))
    if prio: A('s_setprio %d' % prio)
    A('s_barrier')
    if not sm & 64: A('s_endpgm')
    poll_tag(['buffer_load_dwordx4 v[%d:%d], v12, s[48:51], %s offen offset:%d %s' % (OF + 4 * ks, OF + 4 * ks + 3, 's72' if ks < 4 else 's73', (ks % 4) * 128, 'sc1 nt' if h1nt else 'sc1') for ks in range(8)],
             range(OF, OF + 32), tslp, 1 << 22)
    if b3 == 2: A('s_barrier')
    if diag == 1: A('s_memrealtime s[94:95]')
    if not ilv:
        for half in range(2):
            pack_frags(OF + 16 * half, 4, 's71')
            for ks in range(4 * half, 4 * half + 4):
                for nt in range(4):
                    r = WF + (nt * 8 + ks) * 4
                    A('v_mfma_f32_16x16x32_bf16 v[%d:%d], v[%d:%d], v[%d:%d], %s' % (YA + nt * 4, YA + nt * 4 + 3, r, r + 3, OF + ks * 4, OF + 3 + ks * 4, '0' if ks == 0 else 'v[%d:%d]' % (YA + nt * 4, YA + nt * 4 + 3)))
    else:
        def pk_perm(k):
            r = OF + 4 * k
            A('v_perm_b32 v%d, v%d, v%d, s71\nv_perm_b32 v%d, v%d, v%d, s71' % (r, r + 1, r, r + 1, r + 3, r + 2))
        def pk_dpp(k):
            r = OF + 4 * k
            for t in range(2): A('v_mov_b32_dpp v%d, v%d row_ror:8 row_mask:0xf bank_mask:0xf' % (r + 2 + t, r + t))
        pk_perm(0); pk_perm(1); pk_dpp(0); pk_dpp(1)
        for ks in range(8):
            for nt in range(4):
                r = WF + (nt * 8 + ks) * 4
                A('v_mfma_f32_16x16x32_bf16 v[%d:%d], v[%d:%d], v[%d:%d], %s' % (YA + nt * 4, YA + nt * 4 + 3, r, r + 3, OF + ks * 4, OF + 3 + ks * 4, '0' if ks == 0 else 'v[%d:%d]' % (YA + nt * 4, YA + nt * 4 + 3)))
                if ks + 2 < 8 and nt == 0: pk_perm(ks + 2)
                if ks + 2 < 8 and nt == 2: pk_dpp(ks + 2)
    A('s_nop 5')
    for i in range(2):
        for e in range(4):
            A('v_mov_b32_dpp v%d, v%d row_ror:8 row_mask:0xf bank_mask:0xc' % (YA + 8 * i + e, YA + 8 * i + 4 + e))
        for e in range(4):
            A('v_bfi_b32 v%d, s59, v%d, v%d' % (YA + 8 * i + e, YA + 8 * i + e, TAG + e))
        A('buffer_store_dwordx4 v[%d:%d], v14, s[48:51], s74 offen offset:%d sc1%s' % (YA + 8 * i, YA + 8 * i + 3, i * (128 if ysp else 2048), ' nt' if snt & 2 else '')).replace(' sc1', ' sc0 sc1' if ysc & 1 else ' sc1') if False else A(('buffer_store_dwordx4 v[%d:%d], v14, s[48:51], s74 offen offset:%d sc1' % (YA + 8 * i, YA + 8 * i + 3, i * (128 if ysp else 2048))).replace(' sc1', ' sc0 sc1' if ysc & 1 else ' sc1'))
    if b3 == 1: A('s_barrier')
    stamp(4)
    if diag == 1: A('s_mov_b64 exec, 1\nv_mov_b32 v246, s94\nv_mov_b32 v247, s95\nbuffer_store_dwordx2 v[246:247], v252, s[80:83], 0 offen offset:80\ns_mov_b64 exec, -1')
    A('L_hbend:')
    if probe:
        A('''s_cmp_lt_u32 s94, %d
s_cbranch_scc1 L_end
s_mov_b32 s40, 200
L_prb:
s_sleep 64
s_sub_u32 s40, s40, 1
s_cbranch_scc0 L_prb
s_mov_b32 s84, s24
s_mov_b32 s85, s25
s_mov_b32 s86, 9216
v_mov_b32 v2, 0x7fc07fc0
buffer_store_dword v2, v1, s[84:87], 0 offen''' % (1 if probe & 2 else 8))
    stamp(99)
    A('s_endpgm')

    A("""L_FIN:
s_sub_u32 s64, s2, """ + ('0' if f0 else '40') + """
s_mul_i32 s76, s64, 3641
s_lshr_b32 s76, s76, 16
s_mul_i32 s77, s76, 18
s_sub_u32 s77, s64, s77
s_mul_i32 s56, s76, 1152
s_add_u32 s57, s56, 1152
s_mov_b32 s63, 0xffff0000""")
    if not sm & 32: A('s_endpgm')
    srd(32, 4, 's57')
    srd(36, 22, 1152)
    A("""v_lshlrev_b32 v5, 5, v0
v_lshlrev_b32 v15, 3, v0
buffer_load_dwordx4 v[16:19], v5, s[32:35], s56 offen{f}
buffer_load_dwordx4 v[20:23], v5, s[32:35], s56 offen offset:16{f}
buffer_load_dwordx4 v[24:27], v5, s[36:39], 0 offen{f}
buffer_load_dwordx4 v[28:31], v5, s[36:39], 0 offen offset:16{f}
s_mov_b32 s58, 0x3f803f80
v_mov_b32 v32, 0
s_waitcnt vmcnt(0)""".format(f=' nt' if xnt else ''))
    for r in range(8):
        A("""v_lshlrev_b32 v34, 16, v{x}
v_and_b32 v35, s63, v{x}
v_lshlrev_b32 v36, 16, v{w}
v_and_b32 v37, s63, v{w}
v_mul_f32 v34, v34, v36
v_mul_f32 v35, v35, v37
v_cvt_pk_bf16_f32 v34, v34, v35
v_dot2_f32_bf16 v32, v34, s58, v32""".format(x=16 + r, w=24 + r))
    A("""s_nop 2
v_add_f32_dpp v32, v32, v32 quad_perm:[1,0,3,2] row_mask:0xf bank_mask:0xf
s_nop 1
v_add_f32_dpp v32, v32, v32 quad_perm:[2,3,0,1] row_mask:0xf bank_mask:0xf
s_nop 1
v_add_f32_dpp v32, v32, v32 row_half_mirror row_mask:0xf bank_mask:0xf
s_nop 1""")
    xsum([32], 34)
    A("""v_cvt_pk_bf16_f32 v32, v32, v32
v_and_b32 v32, s63, v32
v_mul_f32 v32, {nl2e}, v32
v_exp_f32 v32, v32
s_nop 0
v_add_f32 v32, 1.0, v32
v_rcp_f32 v32, v32
s_nop 0
v_cvt_pk_bf16_f32 v32, v32, v32
v_and_b32 v{g}, s63, v32
v_sub_f32 v33, 1.0, v{g}
v_cvt_pk_bf16_f32 v33, v33, v33
v_and_b32 v33, s63, v33
s_lshl_b32 s56, s64, 10
s_add_u32 s56, s56, {fin}
s_barrier
s_barrier""".format(nl2e=hex(NLOG2E), fin=FIN, g=FB + 4))
    poll_tag(['buffer_load_dwordx4 v[%d:%d], v1, s[48:51], s56 offen %s' % (FB, FB + 3, MF)], range(FB, FB + 4), slp, 1 << 19, masked=False)
    stamp(13)
    for r in range(FB, FB + 4): A('v_and_b32 v%d, s59, v%d' % (r, r))
    xsum(list(range(FB, FB + 4)), 40)
    round4(range(FB, FB + 4), 40)
    for r in range(FB, FB + 4): A('v_mul_f32 v%d, v33, v%d' % (r, r))
    round4(range(FB, FB + 4), 40)
    A('s_lshl_b32 s56, s77, 6')
    if ysp: A('v_lshrrev_b32 v13, 3, v0\nv_mul_u32_u24 v13, %d, v13\nv_and_b32 v14, 7, v0\nv_lshl_add_u32 v13, v14, 4, v13' % ysp)
    else: A('v_mov_b32 v13, v1')
    A("""s_lshl_b32 s78, s64, {fsh}
s_add_u32 s78, s78, {yin}
s_add_u32 s77, s78, {half}
s_mul_i32 s79, s76, 1152
s_add_u32 s79, s79, s56""".format(yin=YIN, fsh=7 if ysp else 11, half=8 * ysp if ysp else 1024))
    srd(32, 24, 8 * 1152)
    for _ in range(len(info['cps']) - 1): A('s_barrier')
    if pt == 2:
        for i in range(2): A('buffer_load_dwordx4 v[%d:%d], v1, s[48:51], s78 offen offset:%d sc1' % (16 + 4 * i, 19 + 4 * i, i * 1024))
    if prio: A('s_setprio %d' % prio)
    A('s_barrier')
    if not sm & 64:
        stamp(1)
        A('s_endpgm')
    if pt == 1:
        for i in range(2): A('buffer_load_dwordx4 v[%d:%d], v1, s[48:51], s78 offen offset:%d sc1' % (16 + 4 * i, 19 + 4 * i, i * 1024))
    if b3: A('s_barrier')
    poll_tag(['buffer_load_dwordx4 v[%d:%d], v13, s[48:51], %s offen %s' % (16 + 4 * i, 19 + 4 * i, ('s78', 's77')[i], 'sc0 sc1' if ysc & 2 else TF) for i in range(2)],
             range(16, 24), fslp2, 1 << 21)
    if diag == 1: A('s_memrealtime s[94:95]')
    for r in range(16, 24): A('v_and_b32 v%d, s59, v%d' % (r, r))
    for c in range(4): A('v_add_f32 v%d, v%d, v%d' % (16 + c, 16 + c, 20 + c))
    xsum([16, 17, 18, 19], 20)
    round4([16, 17, 18, 19], 20)
    for c in range(4): A('v_mul_f32 v%d, v%d, v%d' % (16 + c, FB + 4, 16 + c))
    round4([16, 17, 18, 19], 20)
    for c in range(4): A('v_add_f32 v%d, v%d, v%d' % (16 + c, 16 + c, FB + c))
    A("""v_cvt_pk_bf16_f32 v20, v16, v17
v_cvt_pk_bf16_f32 v21, v18, v19
s_mov_b64 exec, 0xff
buffer_store_dwordx2 v[20:21], v15, s[32:35], s79 offen
s_cmp_lg_u32 s64, 0
s_cbranch_scc1 L_noepoch
s_mov_b64 exec, 1
v_mov_b32 v2, s88
v_mov_b32 v3, %d
buffer_store_dword v2, v3, s[48:51], 0 offen sc1
L_noepoch:
s_mov_b64 exec, -1""" % EPOCH)
    if diag == 1: A('s_memrealtime s[96:97]')
    if diag:
        A('s_waitcnt vmcnt(0)')
        stamp(1)
    if diag == 1: A('s_mov_b64 exec, 1\nv_mov_b32 v244, s94\nv_mov_b32 v245, s95\nv_mov_b32 v246, s96\nv_mov_b32 v247, s97\nbuffer_store_dwordx2 v[244:245], v252, s[80:83], 0 offen offset:88\nbuffer_store_dwordx2 v[246:247], v252, s[80:83], 0 offen offset:64\ns_mov_b64 exec, -1')
    A('L_end:\ns_endpgm')

    nacc = 0
    nv = max(RING + D * 4, 224)
    if diag: nv = 256
    assert nv <= 256
    out = HEADER + '; @launch grid=(256,1,1) block=(192,1,1) lds=%d\n' % lds
    out += DOC
    out += '.amdgcn_target "amdgcn-amd-amdhsa--gfx950"\n.text\n.globl %s\n.p2align 8\n.type %s,@function\n' % (KN, KN)
    L = []
    titles = {'entry': 'entry: kernel arguments, role dispatch', 'haq': 'HA: partial q (64 columns x 288 rows of wq, 8 batches)',
              'hbq': 'HB: gather q of this (batch, head) into LDS', 'stream': 'S: side loads, K phase, V phase, publish o',
              'stream2': 'S: V loop bodies with a wider / narrower load window', 'ha2': 'HA: FFN gate / up / down slices',
              'hb2': 'HB: window control, out-projection slice ; HA: final sum'}
    for nm in ('entry', 'haq', 'hbq', 'stream', 'stream2', 'ha2', 'hb2'):
        if nm in secs:
            if nm != 'entry': L.append('; ======== ' + titles[nm] + ' ========')
            L += secs[nm]
    out += '\n'.join(('' if x.endswith(':') or x.startswith(';') else '    ') + x for x in L) + '\n'
    out += '''.section .rodata,"a"
.p2align 6
.amdhsa_kernel %s
  .amdhsa_next_free_vgpr %d
  .amdhsa_next_free_sgpr 102
  .amdhsa_accum_offset %d
  .amdhsa_group_segment_fixed_size 0
  .amdhsa_kernarg_size 104
  .amdhsa_user_sgpr_count 2
  .amdhsa_user_sgpr_kernarg_segment_ptr 1
  .amdhsa_system_sgpr_workgroup_id_x 1
.end_amdhsa_kernel
''' % (KN, nv + nacc, nv)
    return out


if __name__ == '__main__':
    names = []
    for spec in sys.argv[1:]:
        kw = {}
        for p in spec.split(','):
            if not p: continue
            k, v = p.split('=')
            kw[k] = int(v)
        nm = 'k_' + (spec.replace(',', '_').replace('=', '') or 'def') + '.s'
        open(nm, 'w').write(gen(**kw))
        names.append(nm)
    print(' '.join(names))
```
